```python
import torch

def _softmax(x, axis=-1):
    return torch.softmax(x, dim=axis)
def _gelu(x):
    return torch.nn.functional.gelu(x, approximate="tanh")
def _silu(x):
    return torch.nn.functional.silu(x)
def _sigmoid(x):
    return torch.sigmoid(x)
def _layernorm(x, axis=-1, eps=1e-5):
    m = x.mean(dim=axis, keepdim=True)
    v = x.var(dim=axis, keepdim=True, unbiased=False)
    return (x - m) / torch.sqrt(v + eps)
def _scatter_add(tgt, idx, src, axis=0):
    return tgt.clone().index_add_(axis, idx, src)
def _segment_sum(src, seg, n):
    out = torch.zeros((n,) + src.shape[1:], dtype=src.dtype)
    return out.index_add_(0, seg, src)
def _pad(x, pw):
    flat = tuple(v for pair in reversed(pw) for v in pair)
    return torch.nn.functional.pad(x, flat)

kernel_name = 'interleave_layers__sliding_block_cached__glu_gated_bilinear__decode'

def setup_inputs():

    _w = (lambda a: (lambda t: t.to(torch.bfloat16) if t.is_floating_point() else t)(torch.as_tensor(a)))
    def _A_setup():
        B, Sq, D = 1, 1, 576
        Hq, Hkv, Sk, Dh = 32, 16, 32768, 128
        assert Hq % Hkv == 0, (Hq, Hkv)
        return {
            "x": _w((lambda *s: torch.randn(*s, dtype=torch.bfloat16) * 0.05)(B, Sq, D)),
            "k_cache": _w((lambda *s: torch.randn(*s, dtype=torch.bfloat16) * 0.8)(B, Hkv, Sk, Dh)),
            "v_cache": _w((lambda *s: torch.randn(*s, dtype=torch.bfloat16) * 0.8)(B, Hkv, Sk, Dh)),
            "wq": _w((lambda *s: torch.randn(*s, dtype=torch.bfloat16) * 0.8)(D, Hq * Dh) * (D ** -0.5)),
            "wo": _w((lambda *s: torch.randn(*s, dtype=torch.bfloat16) * 0.8)(Hq * Dh, D) * ((Hq * Dh) ** -0.5)),
        }
    _A_in = _A_setup()

    def _B_setup():
        B, S, D, F = 1, 1, 576, 4608
        return {
            "x": _w((lambda *s: torch.randn(*s, dtype=torch.bfloat16) * 0.05)(B, S, D)),
            "w_gate": _w((lambda *s: torch.randn(*s, dtype=torch.bfloat16) * 0.2)(D, F) * (D ** -0.5)),
            "w_up": _w((lambda *s: torch.randn(*s, dtype=torch.bfloat16) * 0.2)(D, F) * (D ** -0.5)),
            "w_down": _w((lambda *s: torch.randn(*s, dtype=torch.bfloat16) * 0.2)(F, D) * (F ** -0.5)),
        }
    _B_in = _B_setup()

    return {
        "A_x": _A_in["x"],
        "A_k_cache": _A_in["k_cache"],
        "A_v_cache": _A_in["v_cache"],
        "A_wq": _A_in["wq"],
        "A_wo": _A_in["wo"],
        "B_x": _B_in["x"],
        "B_w_gate": _B_in["w_gate"],
        "B_w_up": _B_in["w_up"],
        "B_w_down": _B_in["w_down"],
    }

def reference(A_x, A_k_cache, A_v_cache, A_wq, A_wo, B_x, B_w_gate, B_w_up, B_w_down):
    def _A_ref(x, k_cache, v_cache, wq, wo):
        B, Sq, D = x.shape
        Hq, Dh = 32, 128
        Hkv, Sk = k_cache.shape[1], k_cache.shape[2]
        W = min(4096, max(256, Sk // 4))
        rep = Hq // Hkv
        q = (lambda x, *d: x.permute(*d))((x @ wq).reshape(B, Sq, Hq, Dh), 0, 2, 1, 3)
        k = (lambda x, n, axis: torch.repeat_interleave(x, n, dim=axis))(k_cache[:, :, Sk - W:, :], rep, axis=1)
        v = (lambda x, n, axis: torch.repeat_interleave(x, n, dim=axis))(v_cache[:, :, Sk - W:, :], rep, axis=1)
        scores = torch.einsum("bhqd,bhkd->bhqk", q, k) * (Dh ** -0.5)
        p = _softmax(scores, axis=-1)
        o = torch.einsum("bhqk,bhkd->bhqd", p, v)
        return (lambda x, *d: x.permute(*d))(o, 0, 2, 1, 3).reshape(B, Sq, Hq * Dh) @ wo

    def _B_ref(x, w_gate, w_up, w_down):
        g = torch.einsum("bsd,df->bsf", x, w_gate)
        u = torch.einsum("bsd,df->bsf", x, w_up)
        h = g * u
        return torch.einsum("bsf,fd->bsd", h, w_down)

    x = A_x
    x = x + _A_ref(_layernorm(x, axis=-1), A_k_cache, A_v_cache, A_wq, A_wo)
    x = x + _B_ref(_layernorm(x, axis=-1), B_w_gate, B_w_up, B_w_down)
    x = x + _A_ref(_layernorm(x, axis=-1), A_k_cache, A_v_cache, A_wq, A_wo)
    x = x + _B_ref(_layernorm(x, axis=-1), B_w_gate, B_w_up, B_w_down)
    return x
```

```python
import re

REG_RE = re.compile(r'\b([vas])(?:(\d+)|\[(\d+):(\d+)\])')
NO_DST_SALU = ('s_cmp', 's_cbranch', 's_waitcnt', 's_barrier', 's_nop', 's_branch', 's_setprio',
               's_sleep', 's_endpgm', 's_bitcmp')
TRANS = ('v_exp_f32', 'v_rcp_f32', 'v_rsq_f32', 'v_sqrt_f32', 'v_log_f32')


def regs_of(tok):
    tok = tok.strip()
    out = set()
    if tok in ('vcc', 'exec', 'm0'):
        return {(tok, 0)}
    if tok in ('vcc_lo', 'vcc_hi'):
        return {('vcc', 0)}
    if tok in ('exec_lo', 'exec_hi'):
        return {('exec', 0)}
    for m in REG_RE.finditer(tok):
        k = m.group(1)
        if m.group(2) is not None:
            out.add((k, int(m.group(2))))
        else:
            for n in range(int(m.group(3)), int(m.group(4)) + 1):
                out.add((k, n))
    return out


class Ins:
    def __init__(self, text, **meta):
        self.text = text
        self.meta = meta
        self.pad = 0
        t = text.split(';')[0].strip()
        parts = t.split(None, 1)
        self.op = parts[0]
        rest = parts[1] if len(parts) > 1 else ''
        ops = [o.strip() for o in rest.split(',')] if rest else []
        mods = ''
        if ops:
            last = ops[-1].split(None, 1)
            ops[-1] = last[0]
            mods = last[1] if len(last) > 1 else ''
        self.ops, self.mods = ops, mods
        op = self.op
        self.defs, self.uses = set(), set()
        self.cls = None
        self.srcA = self.srcB = self.srcC = set()
        self.passes = 0
        R = [regs_of(o) for o in ops]
        allr = lambda rs: set().union(*rs) if rs else set()
        if op.startswith('v_mfma') or op.startswith('v_smfmac'):
            self.cls = 'mfma'
            self.passes = 2 if '4x4x4' in op else 4
            self.defs = R[0]
            self.srcA, self.srcB = R[1], R[2]
            self.srcC = R[3] if op.startswith('v_mfma') else set(R[0])
            self.uses = self.srcA | self.srcB | self.srcC | (R[3] if op.startswith('v_smfmac') else set())
        elif op.startswith('v_'):
            self.cls = 'valu'
            self.defs = set(R[0])
            self.uses = allr(R[1:])
            self.dpp = ('row_' in mods) or ('quad_perm' in mods)
            if op.startswith(('v_fmac', 'v_dot2c')) or self.dpp:
                self.uses |= R[0]
            if op.startswith('v_permlane'):
                self.defs |= R[1]
                self.uses |= R[0]
            if op.startswith(('v_add_co', 'v_addc_co')):
                self.defs |= R[1]
                self.uses = allr(R[2:])
        elif op.startswith(('buffer_', 'global_')):
            self.cls = 'vmem'
            self.lds = 'lds' in mods.split() or '_lds_' in op
            self.store = 'store' in op or ('atomic' in op)
            if self.store or self.lds or op.startswith(('buffer_wbl2', 'buffer_inv')):
                self.uses = allr(R)
            else:
                self.defs = set(R[0])
                self.uses = allr(R[1:])
            if self.lds:
                self.uses |= {('m0', 0)}
        elif op.startswith('ds_'):
            self.cls = 'ds'
            if op.startswith('ds_read') or 'permute' in op or 'swizzle' in op:
                self.defs = set(R[0])
                self.uses = allr(R[1:])
            else:
                self.uses = allr(R)
        elif op.startswith(('s_load', 's_memtime', 's_memrealtime')):
            self.cls = 'smem'
            self.defs = set(R[0])
            self.uses = allr(R[1:])
        elif op.startswith('s_'):
            self.cls = 'salu'
            if op.startswith(NO_DST_SALU):
                self.uses = allr(R)
            else:
                self.defs = set(R[0])
                self.uses = allr(R[1:])
                if 'saveexec' in op:
                    self.defs |= {('exec', 0)}
        else:
            raise ValueError('unknown op ' + text)

    def states(self):
        if self.op == 's_nop':
            return int(self.ops[0], 0) + 1
        return 1


class Label:
    def __init__(self, name):
        self.name = name


class Raw:
    def __init__(self, text):
        self.text = text


def need(prod, cons):
    n = 0
    pv = {r for r in prod.defs if r[0] in 'va' and len(r[0]) == 1}
    ps = {r for r in prod.defs if r[0] in ('s', 'vcc')}
    if prod.cls == 'valu':
        if cons.cls == 'mfma' and pv & cons.uses:
            n = max(n, 2)
        if cons.cls == 'valu':
            if cons.dpp and pv & regs_of(cons.ops[1]):
                n = max(n, 2)
            if cons.dpp and pv & cons.defs:
                n = max(n, 2)
            if cons.op.startswith(('v_readlane', 'v_readfirstlane')) and pv & cons.uses:
                n = max(n, 1)
            if cons.op.startswith('v_permlane') and pv & cons.uses:
                n = max(n, 2)
            if prod.op.startswith(TRANS) and not cons.op.startswith(TRANS) and pv & cons.uses:
                n = max(n, 1)
            if prod.op.startswith('v_dot2') and cons.op != prod.op and pv & (cons.uses | cons.defs):
                n = max(n, 3)
            if ps & cons.uses:
                n = max(n, 4 if cons.op.startswith(('v_readlane', 'v_writelane')) else 2)
            if ('exec', 0) in prod.defs:
                n = max(n, 5)
        if prod.op.startswith('v_dot2') and cons.cls in ('vmem', 'ds', 'mfma') and pv & cons.uses:
            n = max(n, 3)
        if cons.cls == 'vmem' and ps & cons.uses:
            n = max(n, 5)
        if cons.cls == 'salu' and ps & cons.uses and not cons.op.startswith('s_cbranch'):
            n = max(n, 1)
    if prod.cls == 'mfma':
        p = prod.passes
        if cons.cls == 'mfma':
            if pv & (cons.srcA | cons.srcB):
                n = max(n, 5 if p == 2 else 8)
            if pv & cons.srcC:
                if cons.srcC == pv and cons.passes == p:
                    n = max(n, 2 if p == 2 else 0)
                else:
                    n = max(n, 4 if p == 2 else 6)
            elif pv & cons.defs:
                n = max(n, 5 if p == 2 else 8)
        elif cons.cls in ('valu', 'vmem', 'ds'):
            if pv & (cons.uses | cons.defs):
                n = max(n, 5 if p == 2 else 8)
        if cons.cls == 'valu' and prod.srcC & cons.defs:
            n = max(n, 1 if p == 2 else 3)
    if prod.cls == 'salu' and ('m0', 0) in prod.defs and cons.cls == 'vmem' and cons.lds:
        n = max(n, 1)
    if prod.cls == 'vmem' and prod.store and ('x3' in prod.op or 'x4' in prod.op):
        data = regs_of(prod.ops[0])
        if cons.cls == 'valu' and data & cons.defs:
            n = max(n, 2)
        elif data & cons.defs:
            n = max(n, 1)
    return n


class Asm:
    def __init__(self):
        self.items = []

    def __call__(self, text, **meta):
        for line in text.strip().split('\n'):
            line = line.strip()
            if line and not line.startswith(';'):
                self.items.append(Ins(line, **meta))

    def label(self, name):
        self.items.append(Label(name))

    def raw(self, text):
        self.items.append(Raw(text))

    def br(self, op, target, taken):
        self.items.append(Ins('%s %s' % (op, target), taken=taken, target=target))

    def jmp(self, target):
        self.items.append(Ins('s_branch %s' % target, taken=lambda c: True, target=target))

    def act(self, fn):
        self.items.append(Raw(''))
        self.items[-1].act = fn

    def trace(self, ctx, limit=200000):
        pos = {it.name: k for k, it in enumerate(self.items) if isinstance(it, Label)}
        k, out = 0, []
        while k < len(self.items):
            it = self.items[k]
            k += 1
            if isinstance(it, Raw):
                if hasattr(it, 'act'):
                    it.act(ctx)
                continue
            if isinstance(it, Label):
                continue
            out.append(it)
            if len(out) > limit:
                raise RuntimeError('trace too long')
            if it.op == 's_endpgm':
                return out
            if 'taken' in it.meta and it.meta['taken'](ctx):
                k = pos[it.meta['target']]
        raise RuntimeError('trace ran off the end')

    def fix_hazards(self, ctxs):
        changed = True
        while changed:
            changed = False
            for mk in ctxs:
                tr = self.trace(mk())
                for k, cons in enumerate(tr):
                    dist = cons.pad
                    j = k - 1
                    while j >= 0 and dist < 12:
                        n = need(tr[j], cons)
                        if n > dist:
                            cons.pad += n - dist
                            dist = n
                            changed = True
                        dist += tr[j].states() + tr[j].pad
                        j -= 1

    def check_waits(self, ctxs):
        errs = []
        for mk in ctxs:
            ctx = mk()
            name = ctx.get('name', '?')
            tr = self.trace(ctx)
            vm, lg = [], []
            maxvm = 0
            for ins in tr:
                touched = ins.uses | ins.defs
                for q, qn in ((vm, 'vm'), (lg, 'lgkm')):
                    for e in q:
                        hit = e.defs & touched
                        if hit and not (ins.cls == e.cls and ins.meta.get('dummy') and e.meta.get('dummy')):
                            errs.append('%s: %s touches %s pending (%s) from: %s' % (name, ins.text, sorted(hit)[:2], qn, e.text))
                for reg in ins.meta.get('needs', ()):
                    for e in vm + lg:
                        if e.meta.get('fills') == reg:
                            errs.append('%s: %s needs LDS region %s still pending from: %s' % (name, ins.text, reg, e.text))
                if ins.op == 's_waitcnt':
                    m = re.search(r'vmcnt\((\d+)\)', ins.text)
                    if m:
                        n = int(m.group(1))
                        del vm[:max(0, len(vm) - n)]
                    m = re.search(r'lgkmcnt\((\d+)\)', ins.text)
                    if m:
                        n = int(m.group(1))
                        if any(e.cls == 'smem' for e in lg) and n:
                            pass
                        else:
                            del lg[:max(0, len(lg) - n)]
                elif ins.cls == 'vmem':
                    vm.append(ins)
                    maxvm = max(maxvm, len(vm))
                elif ins.cls in ('ds', 'smem'):
                    lg.append(ins)
                    if len([e for e in lg]) > 15 and ins.meta.get('strict'):
                        errs.append('%s: more than 15 lgkm outstanding' % name)
            if maxvm > 63:
                errs.append('%s: %d vmem ops outstanding' % (name, maxvm))
        return errs

    def text(self):
        out = []
        for it in self.items:
            if isinstance(it, Label):
                out.append(it.name + ':')
            elif isinstance(it, Raw):
                if it.text:
                    out.append(it.text)
            else:
                p = it.pad
                while p > 0:
                    q = min(p, 16)
                    out.append('    s_nop %d' % (q - 1))
                    p -= q
                out.append('    ' + it.text)
        return '\n'.join(out) + '\n'

    def pads(self):
        return [(it.pad, it.text) for it in self.items if isinstance(it, Ins) and it.pad]
```

```python
import sys
from asmlib import Asm

KNAME = 'interleave_layers__sliding_block_cached__glu_gated_bilinear__decode_kernel'

DEFAULTS = dict(
    stamps=0,
    dump=0,
    k0=8,
    v0=8,
    gu3=6,
    gu4=8,
    wd4=23,
    pretouch=1, prewrite=1, codepf=1,
    ackwait=1,
    xbar=1,
    forceslow=0,
)

OFF_AD, OFF_CQ, OFF_BD = 0x1000, 0x41000, 0x81000
OFF_DD, OFF_CG = 0xC1000, 0x121000
OFF_AS, OFF_DS, OFF_BS = 0x181000, 0x182000, 0x183000
OFF_X = 0x190000
WS_USED = 0x1D0000
OFF_DBG = 0x200000
WS_SRD = 0x1000000
OOB = 0x80000000
L_K, L_V, L_WQ = 0, 65536, 131072
L_WO, L_GU, L_WD = 0, 20480, 65536
L_X = 149504
L_Q = L_X + 128
L_O = L_Q + 512
L_H = L_O + 512
L_PS = L_H + 640
L_DUM = L_PS + 64
L_PO = (L_DUM + 1024 + 255) // 256 * 256
L_END = L_PO + 4096
LDS_BYTES = L_END
assert LDS_BYTES <= 163840 and LDS_BYTES > 81920

S_K, S_V, S_WQ, S_WO, S_WG, S_WU, S_WD, S_X, S_OUT, S_W, S_F, S_S = range(28, 76, 4)
(sW, sG, sI, sROT, sT, sThi, sTsh, sLAY, sBUD, sXCC, sCQ, sBD, sDS, sCG, sSLOT,
 sR0, sR1, sT0, sT1, sT2, sT3, sE) = range(76, 98)
sM9 = 98
sP = 100
sC, sINV = 4, 5
sHIM, sTS = 6, 8


def srd(b):
    return 's[%d:%d]' % (b, b + 3)


class V:
    def __init__(self):
        self.n = 1

    def __call__(self, k=1, al=1):
        if k > 1:
            al = max(al, 2)
        self.n = (self.n + al - 1) // al * al
        r = self.n
        self.n += k
        assert self.n <= 256
        return r


def vr(b, k):
    return 'v[%d:%d]' % (b, b + k - 1)


def ar(b, k):
    return 'a[%d:%d]' % (b, b + k - 1)


A_K, A_V, A_GU, A_WO, A_WD = 0, 64, 128, 184, 216


def build(**kw):
    P = dict(DEFAULTS)
    P.update(kw)
    a = Asm()
    v = V()
    L1 = lambda c: c['layer'] == 0
    L2 = lambda c: c['layer'] == 1
    W3 = lambda c: c['wave'] == 3
    NW3 = lambda c: c['wave'] != 3

    vL, vRow, vN = v(), v(), v()
    t = [v() for _ in range(8)]
    (aXQR, aAPUB, aAGET, aASGET, aASPUB, aBSGET, aBSPUB, aQW, aQR, aPOW, aPOR, aPSW, aPSR, aOR, aXPUB,
     aXGET, aXQW, aDPUB, aDG1, aDG1b, aDG2, aHW1, aHW2, aOUT) = [v() for _ in range(24)]
    SEL4, MASK4, SELX, SELD = v(4, 4), v(4, 4), v(4, 4), v(4, 4)
    vSELH, vTAB, vTD, vEPS, vMP = v(), v(), v(), v(), v()
    XG, ST, BST, PSV = v(4, 4), v(4, 4), v(4, 4), v(4, 4)
    WQ = v(18, 2)
    XQ, QA, PA = v(2), v(4, 2), v(2)
    ONE = v(2)
    ACC = [v(4, 4) for _ in range(4)]
    G = [v(4, 4) for _ in range(7)]
    OP = v(36, 4)
    G2 = [OP + 4 * q for q in range(6)]
    AW = [OP + 4 * q for q in range(4)]
    XC, XR, CI = v(4, 4), v(4, 4), v(4, 4)
    CSQ = v()
    CSG = v(4, 2)
    Y, PK2 = v(2), v(2)
    PO, PS = v(4, 2), v(8, 2)
    vDM, vRS, vE0, vE1, vE2 = v(), v(), v(), v(), v()
    aK = [v() for _ in range(4)]
    aV, aWQ, aTR, aTR2, aDM = v(), v(), v(), v(), v()
    aGU = [v() for _ in range(7)]
    vTS, vDUM = v(), v()
    nstamp = [0]
    names = []

    def stamp(name):
        if not P['stamps']:
            return
        k = nstamp[0]
        nstamp[0] += 1
        names.append(name)
        assert k < 31
        a('s_memtime s[%d:%d]' % (sTS, sTS + 1))
        a('s_lshl_b32 s%d, s%d, 5' % (sT3, sLAY))
        a('s_add_u32 s%d, s%d, %d' % (sT3, sT3, k))
        a('s_mov_b32 m0, s%d' % sT3)
        a('s_waitcnt lgkmcnt(0)')
        a('v_writelane_b32 v%d, s%d, m0' % (vTS, sTS))

    def dump(idx, reg):
        if not P['dump']:
            return
        a('s_lshl_b32 s%d, s%d, 18' % (sT3, sLAY))
        a('s_add_u32 s%d, s%d, 0x%x' % (sT3, sT3, OFF_DBG + 0x100000 + idx * 0x80000))
        a('buffer_store_dword v%d, v%d, %s, s%d offen' % (reg, aDM, srd(S_W), sT3))
        a('s_waitcnt vmcnt(0)')

    def mk_srd(b, ptr, off_sgpr, size):
        if off_sgpr is None:
            a('s_mov_b32 s%d, s%d' % (b, ptr))
            a('s_and_b32 s%d, s%d, 0xffff' % (b + 1, ptr + 1))
        else:
            a('s_add_u32 s%d, s%d, s%d' % (b, ptr, off_sgpr))
            a('s_addc_u32 s%d, s%d, 0' % (b + 1, ptr + 1))
            a('s_and_b32 s%d, s%d, 0xffff' % (b + 1, b + 1))
        a('s_mov_b32 s%d, 0x%x' % (b + 2, size))
        a('s_mov_b32 s%d, 0x20000' % (b + 3))

    def pub(op, data, addr, soff, off=''):
        a('%s %s, v%d, %s, %s offen%s' % (op, data, addr, srd(S_F), soff, off))
        a('%s %s, v%d, %s, %s offen%s sc1' % (op, data, addr, srd(S_S), soff, off))

    def gload(dst, addr, soff, off=0):
        a('buffer_load_dwordx4 %s, v%d, %s, %s offen%s sc1' % (
            vr(dst, 4), addr, srd(S_W), soff, (' offset:%d' % off) if off else ''))

    retry_blocks = []

    def retry(tag, issue_label):
        def taken(c):
            k = (tag, c['layer'])
            if c.get('retry') and k not in c.setdefault('_done', set()):
                c['_done'].add(k)
                return True
            return False
        a.br('s_cbranch_scc1', 'RETRY_' + tag, taken)
        a.label('CONT_' + tag)
        retry_blocks.append((tag, issue_label))

    def lay_test():
        a('s_cmp_lg_u32 s%d, 0' % sLAY)

    def kdma(j):
        a('s_add_u32 s%d, s%d, %d' % (sT0, sROT, j))
        a('s_and_b32 s%d, s%d, 15' % (sT0, sT0))
        a('s_lshl_b32 s%d, s%d, 12' % (sT0, sT0))
        a('s_add_u32 m0, s%d, %d' % (sT1, L_K + 1024 * j))
        a('buffer_load_dwordx4 v%d, %s, s%d offen nt lds' % (aK[j & 3], srd(S_K), sT0), fills='K')

    def vdma(j):
        a('s_add_u32 s%d, s%d, %d' % (sT0, sROT, j))
        a('s_and_b32 s%d, s%d, 15' % (sT0, sT0))
        a('s_lshl_b32 s%d, s%d, 12' % (sT0, sT0))
        a('s_add_u32 m0, s%d, %d' % (sT1, L_V + 1024 * j))
        a('buffer_load_dwordx4 v%d, %s, s%d offen nt lds' % (aV, srd(S_V), sT0), fills='V%d' % (j // 4))

    def wave16k():
        a('s_lshl_b32 s%d, s%d, 14' % (sT1, sW))

    def tall_dma(S, region, instr_sgpr_base, k, fills, half=False):
        a('s_add_u32 s%d, s%d, %d' % (sT0, instr_sgpr_base, k))
        a('s_lshl_b32 s%d, s%d, 6' % (sT3, sT0))
        a('v_add_u32 v%d, s%d, v%d' % (t[0], sT3, vL))
        a('v_mul_u32_u24 v%d, 52429, v%d' % (t[1], t[0]))
        a('v_lshrrev_b32 v%d, 18, v%d' % (t[1], t[1]))
        a('v_mul_u32_u24 v%d, 1072, v%d' % (t[1], t[1]))
        a('v_lshl_add_u32 v%d, v%d, 4, v%d' % (t[1], t[0], t[1]))
        a('s_lshl_b32 s%d, s%d, 10' % (sT0, sT0))
        a('s_add_u32 m0, s%d, %d' % (sT0, region))
        if half:
            a('s_mov_b32 exec_hi, 0')
        a('buffer_load_dwordx4 v%d, %s, 0 offen nt lds' % (t[1], srd(S)), fills=fills)
        if half:
            a('s_mov_b32 exec_hi, -1')

    def gudma(k):
        j, mu = k >> 1, k & 1
        a('s_add_u32 m0, s%d, %d' % (sT2, L_GU + 6912 * mu + 1024 * j))
        if j == 6:
            a('s_mov_b32 exec_hi, 0xffff')
        a('buffer_load_dwordx4 v%d, %s, 0 offen nt lds' % (aGU[j], srd(S_WU if mu else S_WG)), fills='GU')
        if j == 6:
            a('s_mov_b32 exec_hi, -1')

    def set_tags():
        a('s_and_b32 s%d, s%d, 0x1fff1fff' % (sT, sT))
        a('s_add_u32 s%d, s%d, 0x10001' % (sT, sT))
        a('s_and_b32 s%d, s%d, 0x1fff1fff' % (sT, sT))
        a('s_or_b32 s%d, s%d, 0x20002000' % (sT, sT))
        a('s_lshr_b32 s%d, s%d, 16' % (sThi, sT))
        a('s_lshl_b32 s%d, s%d, 16' % (sTsh, sT))
        a('s_and_b32 s%d, s%d, 0xffff0000' % (sT0, sT))
        a('v_mov_b32 v%d, s%d' % (t[0], sTsh))
        a('v_mov_b32 v%d, s%d' % (t[1], sT0))
        a('v_and_b32 v%d, 1, v%d' % (t[2], vL))
        a('v_cmp_eq_u32 vcc, 0, v%d' % t[2])
        a('v_cndmask_b32 v%d, v%d, v%d, vcc' % (vTAB, t[1], t[0]))
        a('v_and_b32 v%d, 4, v%d' % (t[2], vL))
        a('v_cmp_eq_u32 vcc, 0, v%d' % t[2])
        a('v_cndmask_b32 v%d, v%d, v%d, vcc' % (vTD, t[1], t[0]))
        a('v_mov_b32 v%d, s%d' % (XG + 3, sT))
        a('v_mov_b32 v%d, s%d' % (ST + 3, sT))
        a('v_mov_b32 v%d, s%d' % (BST + 3, sT))

    DPP = ' row_mask:0xf bank_mask:0xf'

    def ror_steps(op, regs, first_src=None):
        out = []
        for k, sh in enumerate((8, 4, 2, 1)):
            grp = []
            for q, r in enumerate(regs):
                s = first_src[q] if (k == 0 and first_src) else r
                grp.append('%s_dpp v%d, v%d, v%d row_ror:%d%s' % (op, r, s, s, sh, DPP))
            out.append(grp)
        return out

    def stats_ops():
        o = ['v_add_f32 v%d, v%d, v%d' % (t[4], XC, XC + 1),
             'v_mul_f32 v%d, v%d, v%d' % (t[5], XC, XC),
             'v_add_f32 v%d, v%d, v%d' % (t[6], XC + 2, XC + 3),
             'v_fmac_f32 v%d, v%d, v%d' % (t[5], XC + 1, XC + 1),
             'v_add_f32 v%d, v%d, v%d' % (t[4], t[4], t[6]),
             'v_fmac_f32 v%d, v%d, v%d' % (t[5], XC + 2, XC + 2),
             'v_cndmask_b32 v%d, 0, v%d, s[%d:%d]' % (ST, t[4], sM9, sM9 + 1),
             'v_fmac_f32 v%d, v%d, v%d' % (t[5], XC + 3, XC + 3),
             'v_cndmask_b32 v%d, 0, v%d, s[%d:%d]' % (ST + 1, t[5], sM9, sM9 + 1)]
        for g in ror_steps('v_add_f32', [ST, ST + 1]):
            o += g
        return o

    def resid_ops():
        o = []
        for r in range(4):
            o.append('v_add_f32 v%d, v%d, v%d' % (XR + r, XC + r, vMP))
        o.append('v_cvt_pk_bf16_f32 v%d, v%d, v%d' % (XR + 1, XR, XR + 1))
        o.append('v_cvt_pk_bf16_f32 v%d, v%d, v%d' % (XR + 3, XR + 2, XR + 3))
        o.append('v_lshlrev_b32 v%d, 16, v%d' % (XR, XR + 1))
        o.append('v_lshlrev_b32 v%d, 16, v%d' % (XR + 2, XR + 3))
        o.append('v_and_b32 v%d, s%d, v%d' % (XR + 1, sHIM, XR + 1))
        o.append('v_and_b32 v%d, s%d, v%d' % (XR + 3, sHIM, XR + 3))
        return o

    def ln_ops(S):
        o = []
        for g in ror_steps('v_add_f32', [vE0, vE1], [S, S + 1]):
            o.append(g)
        o.append(['v_mul_f32 v%d, s%d, v%d' % (vDM, sINV, vE0),
                  'v_fma_f32 v%d, v%d, s%d, v%d' % (vRS, vE1, sINV, vEPS)])
        o.append(['v_fma_f32 v%d, -v%d, v%d, v%d' % (vRS, vDM, vDM, vRS)])
        o.append(['v_rsq_f32 v%d, v%d' % (vRS, vRS)])
        return o

    def newmean_ops():
        o = ['v_add_f32 v%d, v%d, v%d' % (vMP, vMP, vDM)]
        for r in range(4):
            o.append('v_sub_f32 v%d, v%d, v%d' % (CI + r, XR + r, vMP))
        return o

    def m16(d, A, B, C):
        a('v_mfma_f32_16x16x32_bf16 %s, %s, %s, %s' % (vr(d, 4), A, B, C))

    def m4(d, A, B, first, abid):
        a('v_mfma_f32_4x4x4_16b_bf16 %s, %s, %s, %s cbsz:4 abid:%d' % (vr(d, 4), A, B, '0' if first else vr(d, 4), abid))

    def chk_ab(acc, g, first):
        a('v_bitop3_b32 v%d, v%d, v%d, s%d bitop3:0x7e' % (t[0], g, g + 2, sT))
        a('v_bitop3_b32 v%d, v%d, v%d, s%d bitop3:0x7e' % (t[1], g + 1, g + 3, sThi))
        if first:
            a('v_or_b32 v%d, v%d, v%d' % (acc, t[0], t[1]))
        else:
            a('v_or3_b32 v%d, v%d, v%d, v%d' % (acc, t[0], t[1], acc))

    def chk_d(acc, g, h, first):
        a('v_bitop3_b32 v%d, v%d, v%d, s%d bitop3:0x7e' % (t[0], g + 1, h + 1, sTsh))
        a('v_bitop3_b32 v%d, v%d, v%d, s%d bitop3:0x7e' % (t[1], g + 3, h + 3, sT))
        if first:
            a('v_or_b32 v%d, v%d, v%d' % (acc, t[0], t[1]))
        else:
            a('v_or3_b32 v%d, v%d, v%d, v%d' % (acc, t[0], t[1], acc))

    a('s_cmp_ge_u32 s2, 256')
    a.br('s_cbranch_scc1', 'END', lambda c: False)
    a('s_load_dwordx16 s[4:19], s[0:1], 0')
    a('s_load_dwordx8 s[20:27], s[0:1], 64')
    a('v_lshrrev_b32 v%d, 6, v0' % t[0])
    a('v_and_b32 v%d, 63, v0' % vL)
    a('v_readfirstlane_b32 s%d, v%d' % (sW, t[0]))
    a('s_and_b32 s%d, s2, 7' % sT0)
    a('s_lshl_b32 s%d, s%d, 1' % (sT0, sT0))
    a('s_bfe_u32 s%d, s2, 0x10003' % sT1)
    a('s_add_u32 s%d, s%d, s%d' % (sG, sT0, sT1))
    a('s_lshr_b32 s%d, s2, 4' % sI)
    a('s_lshr_b32 s%d, s2, 3' % sROT)
    a('s_mov_b32 s%d, 0' % sLAY)
    a('v_lshrrev_b32 v%d, 4, v%d' % (vRow, vL))
    a('v_and_b32 v%d, 15, v%d' % (vN, vL))
    a('v_lshrrev_b32 v%d, 3, v%d' % (t[0], vL))
    a('v_and_b32 v%d, 7, v%d' % (t[1], vL))
    a('v_lshlrev_b32 v%d, 13, v%d' % (t[0], t[0]))
    a('v_lshl_add_u32 v%d, v%d, 4, v%d' % (t[0], t[1], t[0]))
    a('s_lshl_b32 s%d, s%d, 7' % (sT0, sW))
    a('v_add_u32 v%d, s%d, v%d' % (aWQ, sT0, t[0]))
    a('s_lshl_b32 s%d, s%d, 10' % (sT0, sW))
    a('v_lshl_add_u32 v%d, v%d, 8, s%d' % (t[0], vRow, sT0))
    a('v_xor_b32 v%d, v%d, v%d' % (t[1], vN, vRow))
    a('v_lshl_add_u32 v%d, v%d, 4, v%d' % (aK[0], t[1], t[0]))
    for j in (1, 2, 3):
        a('v_xor_b32 v%d, %d, v%d' % (aK[j], 64 * j, aK[0]))
    a('v_lshlrev_b32 v%d, 2, v%d' % (t[1], vRow))
    a('v_xor_b32 v%d, v%d, v%d' % (t[1], vN, t[1]))
    a('v_lshl_add_u32 v%d, v%d, 4, v%d' % (aV, t[1], t[0]))
    a('s_mul_i32 s%d, s%d, %d' % (sT0, sI, 36 * 8192))
    a('s_lshl_b32 s%d, s%d, 9' % (sT1, sG))
    a('s_add_u32 s%d, s%d, s%d' % (sT0, sT0, sT1))
    a('s_lshl_b32 s%d, s%d, 23' % (sT2, sG))
    a('s_lshl_b32 s%d, s%d, 16' % (sT3, sI))
    a('s_add_u32 s%d, s%d, s%d' % (sT2, sT2, sT3))
    a('s_add_u32 s%d, s%d, %d' % (sT2, sT2, 28672 * 256))
    a('s_mul_i32 s%d, s%d, 4608' % (sT1, sW))
    a('s_waitcnt lgkmcnt(0)')
    a('s_load_dword s%d, s[26:27], 0' % sE)
    mk_srd(S_WQ, 10, sT0, 35 * 8192 + 512)
    for k in range(5):
        a('s_add_u32 m0, s%d, %d' % (sT1, L_WQ + 1024 * k))
        a('s_mov_b32 s%d, %d' % (sT0, 65536 * k))
        if k == 4:
            a('s_mov_b32 exec_hi, 0')
        a('buffer_load_dwordx4 v%d, %s, s%d offen nt lds' % (aWQ, srd(S_WQ), sT0), fills='WQ')
        if k == 4:
            a('s_mov_b32 exec_hi, -1')
    mk_srd(S_K, 6, sT2, 65536)
    mk_srd(S_V, 8, sT2, 65536)
    mk_srd(S_X, 4, None, 1152)
    a('s_cmp_lg_u32 s%d, 3' % sW)
    a.br('s_cbranch_scc1', 'NOX', NW3)
    a('v_lshlrev_b32 v%d, 4, v%d' % (t[0], vL))
    a('s_mul_i32 s%d, s%d, 72' % (sT0, sI))
    a('v_lshl_add_u32 v%d, v%d, 3, s%d' % (t[1], vN, sT0))
    a('buffer_load_dwordx4 %s, v%d, %s, 0 offen' % (vr(G[0], 4), t[0], srd(S_X)))
    a('buffer_load_dwordx4 %s, v%d, %s, 0 offen offset:1024' % (vr(G[1], 4), t[0], srd(S_X)))
    a('buffer_load_dwordx2 %s, v%d, %s, 0 offen' % (vr(G[2], 2), t[1], srd(S_X)))
    a.label('NOX')
    if P['codepf']:
        a('s_getpc_b64 s[%d:%d]' % (sP, sP + 1))
        a.label('PCREF')
        a('s_lshl_b32 s%d, s%d, 12' % (sT0, sW))
        a('v_lshl_add_u32 v%d, v%d, 6, s%d' % (t[2], vL, sT0))
        a('v_min_u32 v%d, CODE_END-PCREF-4, v%d' % (t[2], t[2]))
        a('global_load_dword v%d, v%d, s[%d:%d]' % (vDUM, t[2], sP, sP + 1), dummy=1)
    wave16k()
    for j in range(P['k0']):
        kdma(j)
    a('s_mul_i32 s%d, s%d, %d' % (sT0, sG, 256 * 1152))
    a('s_mul_i32 s%d, s%d, 72' % (sT2, sI))
    a('s_and_b32 s%d, s%d, 0xfffffff0' % (sT2, sT2))
    a('s_add_u32 s%d, s%d, s%d' % (sT0, sT0, sT2))
    mk_srd(S_WO, 12, sT0, 255 * 1152 + 80)
    a('s_mul_i32 s%d, s%d, %d' % (sT0, sG, 288 * 1152))
    a('s_add_u32 s%d, s%d, s%d' % (sT0, sT0, sT2))
    mk_srd(S_WD, 20, sT0, 287 * 1152 + 80)
    a('s_mul_i32 s%d, s%d, %d' % (sT0, sI, 36 * 9216))
    a('s_mul_i32 s%d, s%d, 576' % (sT2, sG))
    a('s_add_u32 s%d, s%d, s%d' % (sT0, sT0, sT2))
    mk_srd(S_WG, 16, sT0, 35 * 9216 + 576)
    mk_srd(S_WU, 18, sT0, 35 * 9216 + 576)
    mk_srd(S_OUT, 22, None, 1152)
    WSZ = WS_SRD if (P['dump'] or P['stamps']) else WS_USED
    mk_srd(S_W, 26, None, WSZ)
    mk_srd(S_F, 26, None, 0)
    mk_srd(S_S, 26, None, WS_USED)
    a('s_mov_b32 s%d, 0x%x' % (sCQ, OFF_CQ - OFF_AD))
    a('s_mov_b32 s%d, 0x%x' % (sBD, OFF_BD - OFF_AD))
    a('s_mov_b32 s%d, 0x%x' % (sDS, OFF_DS - OFF_AS))
    a('s_mov_b32 s%d, 0x%x' % (sCG, OFF_CG - OFF_DD))
    a('s_mov_b32 s%d, 0' % sSLOT)
    a('s_mov_b32 s%d, 0x3e0293ee' % sC)
    a('s_mov_b32 s%d, 0x3ae38e39' % sINV)
    a('s_mov_b32 s%d, 0xffff0000' % sHIM)
    a('s_mov_b32 s%d, 200000' % sBUD)
    a('s_getreg_b32 s%d, hwreg(HW_REG_XCC_ID)' % sXCC)
    a('s_and_b32 s%d, s%d, 15' % (sXCC, sXCC))
    a('s_mov_b32 s%d, 0x01ff01ff' % sM9)
    a('s_mov_b32 s%d, 0x01ff01ff' % (sM9 + 1))
    a('v_mov_b32 v%d, 0x3727c5ac' % vEPS)
    a('v_mov_b32 v%d, 0x3f803f80' % ONE)
    a('v_mov_b32 v%d, 0x3f803f80' % (ONE + 1))
    a('v_mov_b32 v%d, 0' % (XG + 2))
    a('v_mov_b32 v%d, 0' % (BST + 2))
    a('v_mov_b32 v%d, s%d' % (ST + 2, sXCC))
    if P['stamps']:
        a('v_mov_b32 v%d, 0' % vTS)
    if P['dump'] or P['stamps']:
        a('s_lshl_b32 s%d, s2, 10' % sT0)
        a('v_lshl_add_u32 v%d, v0, 2, s%d' % (aDM, sT0))
    for q in range(4):
        a('v_cmp_eq_u32 vcc, %d, v%d' % (4 * q, vN))
        a('v_cndmask_b32 v%d, 0, -1, vcc' % t[0])
        a('v_and_b32 v%d, 0xffff0000, v%d' % (MASK4 + q, t[0]))
        a('v_and_b32 v%d, 0x3f800000, v%d' % (SEL4 + q, t[0]))

    def sel(dst, lo_n, hi_n):
        a('v_mov_b32 v%d, 0' % dst)
        for nn, val in ((lo_n, 0x3f80), (hi_n, 0x3f800000)):
            if nn is None:
                continue
            a('v_mov_b32 v%d, 0x%x' % (t[1], val))
            a('v_cmp_eq_u32 vcc, %d, v%d' % (nn, vN))
            a('v_cndmask_b32 v%d, v%d, v%d, vcc' % (dst, dst, t[1]))
    sel(SELX, 0, 1)
    sel(SELX + 1, 2, 3)
    sel(SELX + 2, None, None)
    sel(SELX + 3, None, None)
    sel(SELD, 0, 1)
    sel(SELD + 1, 8, None)
    sel(SELD + 2, 4, 5)
    sel(SELD + 3, 9, None)
    a('v_and_b32 v%d, 1, v%d' % (t[0], vL))
    a('v_cmp_eq_u32 vcc, 0, v%d' % t[0])
    a('v_mov_b32 v%d, 0x03020706' % t[1])
    a('v_mov_b32 v%d, 0x05040100' % t[2])
    a('v_cndmask_b32 v%d, v%d, v%d, vcc' % (vSELH, t[1], t[2]))
    a('v_mov_b32 v%d, 0x%x' % (t[7], OOB))
    a('v_lshrrev_b32 v%d, 2, v%d' % (t[0], vL))
    a('v_lshlrev_b32 v%d, 3, v%d' % (t[0], t[0]))
    a('v_add_u32 v%d, %d, v%d' % (aXQR, L_X, t[0]))
    a('v_and_b32 v%d, 1, v%d' % (t[1], vL))
    a('v_lshl_add_u32 v%d, v%d, 8, v%d' % (t[0], t[1], t[0]))
    a('v_add_u32 v%d, %d, v%d' % (aQR, L_Q, t[0]))
    a('s_lshl_b32 s%d, s%d, 14' % (sT0, sG))
    a('s_lshl_b32 s%d, s%d, 8' % (sT2, sW))
    a('s_add_u32 s%d, s%d, s%d' % (sT0, sT0, sT2))
    a('s_add_u32 s%d, s%d, 0x%x' % (sT0, sT0, OFF_AD))
    a('v_lshl_add_u32 v%d, v%d, 12, s%d' % (t[0], vRow, sT0))
    a('v_lshl_add_u32 v%d, v%d, 4, v%d' % (aAGET, vN, t[0]))
    a('s_lshl_b32 s%d, s%d, 10' % (sT3, sI))
    a('s_add_u32 s%d, s%d, s%d' % (sT0, sT0, sT3))
    a('v_lshl_add_u32 v%d, v%d, 2, s%d' % (aAPUB, vL, sT0))
    a('s_lshl_b32 s%d, s%d, 8' % (sT0, sG))
    a('s_add_u32 s%d, s%d, 0x%x' % (sT0, sT0, OFF_AS))
    a('v_lshl_add_u32 v%d, v%d, 4, s%d' % (aASGET, vN, sT0))
    a('s_lshl_b32 s%d, s%d, 4' % (sT3, sI))
    a('s_add_u32 s%d, s%d, s%d' % (sT0, sT0, sT3))
    a('v_mov_b32 v%d, s%d' % (t[0], sT0))
    a('v_cmp_eq_u32 vcc, 192, v0')
    a('v_cndmask_b32 v%d, v%d, v%d, vcc' % (aASPUB, t[7], t[0]))
    a('s_lshl_b32 s%d, s%d, 9' % (sT0, sG))
    a('s_lshr_b32 s%d, s%d, 1' % (sT2, sW))
    a('s_lshl_b32 s%d, s%d, 8' % (sT2, sT2))
    a('s_add_u32 s%d, s%d, s%d' % (sT0, sT0, sT2))
    a('s_add_u32 s%d, s%d, 0x%x' % (sT0, sT0, OFF_BS))
    a('v_lshl_add_u32 v%d, v%d, 2, v%d' % (t[0], vRow, vN))
    a('v_and_b32 v%d, 15, v%d' % (t[0], t[0]))
    a('v_lshl_add_u32 v%d, v%d, 4, s%d' % (aBSGET, t[0], sT0))
    a('s_add_u32 s%d, s%d, s%d' % (sT0, sT0, sT3))
    a('v_mov_b32 v%d, s%d' % (t[0], sT0))
    a('v_and_b32 v%d, 127, v0' % t[1])
    a('v_cmp_eq_u32 vcc, 0, v%d' % t[1])
    a('v_cndmask_b32 v%d, v%d, v%d, vcc' % (aBSPUB, t[7], t[0]))
    a('s_lshl_b32 s%d, s%d, 7' % (sT0, sW))
    a('s_add_u32 s%d, s%d, %d' % (sT0, sT0, L_Q))
    a('v_lshl_add_u32 v%d, v%d, 2, v%d' % (t[0], vN, vRow))
    a('v_lshl_add_u32 v%d, v%d, 1, s%d' % (aQW, t[0], sT0))
    a('s_lshl_b32 s%d, s%d, 8' % (sT0, sW))
    a('s_add_u32 s%d, s%d, %d' % (sT0, sT0, L_PO))
    a('v_lshl_add_u32 v%d, v%d, 2, s%d' % (aPOW, vL, sT0))
    a('s_lshl_b32 s%d, s%d, 10' % (sT0, sW))
    a('s_add_u32 s%d, s%d, %d' % (sT0, sT0, L_PO))
    a('v_lshl_add_u32 v%d, v%d, 2, s%d' % (aPOR, vL, sT0))
    a('s_mov_b32 s%d, %d' % (sT2, L_DUM))
    a('v_lshl_add_u32 v%d, v%d, 4, s%d' % (t[6], vL, sT2))
    a('s_lshl_b32 s%d, s%d, 4' % (sT0, sW))
    a('s_add_u32 s%d, s%d, %d' % (sT0, sT0, L_PS))
    a('v_mov_b32 v%d, s%d' % (t[0], sT0))
    a('v_cmp_eq_u32 vcc, 63, v%d' % vL)
    a('v_cndmask_b32 v%d, v%d, v%d, vcc' % (aPSW, t[6], t[0]))
    a('s_lshr_b32 s%d, s%d, 1' % (sT0, sW))
    a('s_lshl_b32 s%d, s%d, 3' % (sT0, sT0))
    a('s_add_u32 s%d, s%d, %d' % (sT0, sT0, L_PS))
    a('v_mov_b32 v%d, s%d' % (aPSR, sT0))
    a('s_mov_b32 s%d, %d' % (sT0, L_O))
    a('v_lshl_add_u32 v%d, v%d, 4, s%d' % (aOR, vRow, sT0))
    a('s_lshl_b32 s%d, s%d, 12' % (sT0, sI))
    a('s_add_u32 s%d, s%d, 0x%x' % (sT0, sT0, OFF_X))
    a('v_min_u32 v%d, 8, v%d' % (t[0], vN))
    a('v_mul_u32_u24 v%d, 43, v%d' % (t[1], t[0]))
    a('v_lshrrev_b32 v%d, 7, v%d' % (t[1], t[1]))
    a('v_add_u32 v%d, v%d, v%d' % (t[0], t[0], t[1]))
    a('v_lshl_add_u32 v%d, v%d, 10, s%d' % (t[1], vRow, sT0))
    a('v_lshl_add_u32 v%d, v%d, 4, v%d' % (aXGET, t[0], t[1]))
    a('s_lshl_b32 s%d, s%d, 8' % (sT2, sG))
    a('s_add_u32 s%d, s%d, s%d' % (sT0, sT0, sT2))
    a('s_lshl_b32 s%d, s%d, 6' % (sT2, sW))
    a('s_add_u32 s%d, s%d, s%d' % (sT2, sT0, sT2))
    a('v_lshl_add_u32 v%d, v%d, 4, s%d' % (t[0], vRow, sT2))
    a('s_mov_b32 s%d, 0x00010001' % sP)
    a('s_mov_b32 s%d, 0x00000001' % (sP + 1))
    a('v_cndmask_b32 v%d, v%d, v%d, s[%d:%d]' % (aXPUB, t[7], t[0], sP, sP + 1))
    if P['prewrite']:
        a('v_lshl_add_u32 v%d, v%d, 16, s%d' % (t[0], vRow, sT0))
        a('v_lshl_add_u32 v%d, v%d, 4, v%d' % (aTR2, vN, t[0]))
    a('s_mov_b32 s%d, %d' % (sT0, L_X))
    a('v_lshl_add_u32 v%d, v%d, 3, s%d' % (t[0], vN, sT0))
    a('v_cmp_gt_u32 vcc, 16, v%d' % vL)
    a('v_cndmask_b32 v%d, v%d, v%d, vcc' % (aXQW, t[6], t[0]))
    a('s_mul_i32 s%d, s%d, 72' % (sT0, sI))
    a('v_lshl_add_u32 v%d, v%d, 3, s%d' % (t[0], vN, sT0))
    a('v_cmp_gt_u32 vcc, 9, v%d' % vL)
    a('v_cndmask_b32 v%d, v%d, v%d, vcc' % (aOUT, t[7], t[0]))
    a('s_mul_i32 s%d, s%d, %d' % (sT0, sG, 16 * 1536))
    a('s_add_u32 s%d, s%d, 0x%x' % (sT0, sT0, OFF_DD))
    a('s_mul_i32 s%d, s%d, 1536' % (sT2, sI))
    a('s_lshl_b32 s%d, s%d, 9' % (sT3, sW))
    a('s_add_u32 s%d, s%d, s%d' % (sT2, sT2, sT3))
    a('s_add_u32 s%d, s%d, s%d' % (sT2, sT2, sT0))
    a('v_lshrrev_b32 v%d, 3, v%d' % (t[0], vL))
    a('v_lshl_add_u32 v%d, v%d, 6, s%d' % (t[0], t[0], sT2))
    a('v_and_b32 v%d, 3, v%d' % (t[1], vL))
    a('v_lshl_add_u32 v%d, v%d, 4, v%d' % (t[0], t[1], t[0]))
    a('v_and_b32 v%d, 4, v%d' % (t[1], vL))
    a('v_lshl_add_u32 v%d, v%d, 1, v%d' % (aDPUB, t[1], t[0]))
    a('s_mul_i32 s%d, s%d, 384' % (sT2, sW))
    a('s_add_u32 s%d, s%d, s%d' % (sT0, sT0, sT2))
    a('v_mul_u32_u24 v%d, 6144, v%d' % (t[0], vRow))
    a('v_add_u32 v%d, s%d, v%d' % (t[0], sT0, t[0]))
    a('v_lshl_add_u32 v%d, v%d, 4, v%d' % (aDG1, vN, t[0]))
    a('v_add_u32 v%d, 3072, v%d' % (aDG1b, aDG1))
    a('v_lshrrev_b32 v%d, 3, v%d' % (t[1], vN))
    a('v_mul_u32_u24 v%d, 3072, v%d' % (t[1], t[1]))
    a('v_and_b32 v%d, 7, v%d' % (t[2], vN))
    a('v_lshl_add_u32 v%d, v%d, 4, v%d' % (t[1], t[2], t[1]))
    a('v_add_u32 v%d, v%d, v%d' % (t[0], t[0], t[1]))
    a('v_add_u32 v%d, 256, v%d' % (aDG2, t[0]))
    a('s_mul_i32 s%d, s%d, 24' % (sT0, sW))
    for dst, base, src in ((aHW1, 0, vN), (aHW2, 16, t[2])):
        a('v_add_u32 v%d, s%d, v%d' % (t[0], sT0, src))
        if base:
            a('v_add_u32 v%d, %d, v%d' % (t[0], base, t[0]))
        a('v_lshrrev_b32 v%d, 5, v%d' % (t[1], t[0]))
        a('v_mul_u32_u24 v%d, 96, v%d' % (t[1], t[1]))
        a('v_and_b32 v%d, 31, v%d' % (t[0], t[0]))
        a('v_and_b32 v%d, 28, v%d' % (t[3], t[0]))
        a('v_add_u32 v%d, v%d, v%d' % (t[3], t[3], t[0]))
        a('v_lshl_add_u32 v%d, v%d, 2, v%d' % (t[3], vRow, t[3]))
        a('v_add_u32 v%d, 64, v%d' % (t[0], t[0]))
        a('v_cmp_eq_u32 vcc, 2, v%d' % vRow)
        a('v_cndmask_b32 v%d, v%d, v%d, vcc' % (t[0], t[3], t[0]))
        a('v_add_u32 v%d, v%d, v%d' % (t[0], t[0], t[1]))
        a('v_lshlrev_b32 v%d, 1, v%d' % (t[0], t[0]))
        a('v_add_u32 v%d, %d, v%d' % (t[0], L_H, t[0]))
        a('v_cmp_eq_u32 vcc, 3, v%d' % vRow)
        a('v_cndmask_b32 v%d, v%d, v%d, vcc' % (dst, t[0], t[6]))
    a('s_mul_i32 s%d, s%d, 192' % (sT0, sW))
    for j in range(7):
        a('v_add_u32 v%d, %d, v%d' % (t[0], 64 * j, vL))
        a('v_mul_u32_u24 v%d, 43691, v%d' % (t[1], t[0]))
        a('v_lshrrev_b32 v%d, 19, v%d' % (t[1], t[1]))
        a('v_mul_u32_u24 v%d, 9024, v%d' % (t[1], t[1]))
        a('v_lshl_add_u32 v%d, v%d, 4, v%d' % (t[1], t[0], t[1]))
        a('v_add_u32 v%d, s%d, v%d' % (aGU[j], sT0, t[1]))
    a('s_waitcnt lgkmcnt(0)')
    a('s_mov_b32 s%d, s%d' % (sT, sE))
    set_tags()
    stamp('prologue')
    a('s_cmp_lg_u32 s%d, 3' % sW)
    a.br('s_cbranch_scc1', 'Q_ENTRY', NW3)
    nyoung = P['k0'] + (1 if P['codepf'] else 0)
    a('s_waitcnt vmcnt(%d)' % nyoung)
    a('v_mov_b32 v%d, 0' % t[0])
    for q in range(4):
        a('v_dot2c_f32_bf16 v%d, v%d, v%d' % (t[0], G[0] + q, ONE))
    for q in range(4):
        a('v_dot2c_f32_bf16 v%d, v%d, v%d' % (t[0], G[1] + q, ONE))
    for g in ror_steps('v_add_f32', [t[0]]):
        a('\n'.join(g))
    a('v_add_f32_dpp v%d, v%d, v%d row_bcast:15 row_mask:0xa bank_mask:0xf' % (t[0], t[0], t[0]))
    a('v_add_f32_dpp v%d, v%d, v%d row_bcast:31 row_mask:0xc bank_mask:0xf' % (t[0], t[0], t[0]))
    a('v_readlane_b32 s%d, v%d, 63' % (sT0, t[0]))
    a('v_mov_b32 v%d, s%d' % (t[0], sT0))
    a('v_mul_f32 v%d, s%d, v%d' % (vMP, sINV, t[0]))
    a('v_lshlrev_b32 v%d, 16, v%d' % (XC, G[2]))
    a('v_and_b32 v%d, s%d, v%d' % (XC + 1, sHIM, G[2]))
    a('v_lshlrev_b32 v%d, 16, v%d' % (XC + 2, G[2] + 1))
    a('v_and_b32 v%d, s%d, v%d' % (XC + 3, sHIM, G[2] + 1))
    for r in range(4):
        a('v_sub_f32 v%d, v%d, v%d' % (XC + r, XC + r, vMP))
    if P['prewrite']:
        for r in range(4):
            a('v_mov_b32 v%d, 0' % (G[3] + r))
        a('buffer_store_dwordx4 %s, v%d, %s, 0 offen sc1' % (vr(G[3], 4), aTR2, srd(S_W)))
    a.jmp('XQ_WRITE_A')

    a.label('Q_ENTRY')
    a('s_barrier')
    a('ds_read_b64 %s, v%d' % (vr(XQ, 2), aXQR))
    lay_test()
    a.br('s_cbranch_scc1', 'Q_GO', L2)
    a('s_waitcnt vmcnt(%d)' % nyoung)
    a('v_lshrrev_b32 v%d, 2, v%d' % (t[0], vN))
    a('v_lshlrev_b32 v%d, 7, v%d' % (t[0], t[0]))
    a('v_lshl_add_u32 v%d, v%d, 5, v%d' % (t[0], vRow, t[0]))
    a('v_and_b32 v%d, 3, v%d' % (t[1], vL))
    a('v_lshl_add_u32 v%d, v%d, 3, v%d' % (t[0], t[1], t[0]))
    a('s_mul_i32 s%d, s%d, 4608' % (sT0, sW))
    a('s_add_u32 s%d, s%d, %d' % (sT0, sT0, L_WQ))
    a('v_add_u32 v%d, s%d, v%d' % (aTR, sT0, t[0]))
    for j in range(9):
        a('ds_read_b64_tr_b16 %s, v%d offset:%d' % (vr(WQ + 2 * j, 2), aTR, 512 * j), needs=('WQ',))
    a('s_waitcnt lgkmcnt(0)')
    for j in range(9):
        m4(ACC[j % 3], vr(ONE, 2), vr(WQ + 2 * j, 2), j < 3, 0)
    a('v_add_f32 v%d, v%d, v%d' % (t[0], ACC[0], ACC[1]))
    a('v_add_f32 v%d, v%d, v%d' % (t[0], t[0], ACC[2]))
    a('v_cvt_pk_bf16_f32 v%d, v%d, v%d' % (t[3], vTAB, t[0]))
    pub('buffer_store_dword', 'v%d' % t[3], aAPUB, 's%d' % sCQ)
    a.label('Q_GO')
    so = stats_ops()
    a('\n'.join(so[:9]))
    a('s_waitcnt lgkmcnt(0)')
    rest = so[9:]
    for j in range(9):
        m4(ACC[j % 3], vr(XQ, 2), vr(WQ + 2 * j, 2), j < 3, j)
        if j < 8:
            a(rest[j])
    pub('buffer_store_dwordx4', vr(ST, 4), aASPUB, '0')
    a('v_add_f32 v%d, v%d, v%d' % (t[0], ACC[0], ACC[1]))
    a('v_add_f32 v%d, v%d, v%d' % (t[0], t[0], ACC[2]))
    a('v_cvt_pk_bf16_f32 v%d, v%d, v%d' % (t[2], vTAB, t[0]))
    pub('buffer_store_dword', 'v%d' % t[2], aAPUB, '0')
    dump(0, t[0])
    stamp('A pub')
    a('\n'.join(resid_ops()))
    lay_test()
    a.br('s_cbranch_scc1', 'GA_PRE', L2)
    if P['pretouch']:
        a('v_subrev_u32 v%d, 8, v%d' % (t[0], vL))
        a('v_cmp_gt_u32 vcc, 20, v%d' % vL)
        a('v_mov_b32 v%d, %d' % (t[1], OFF_CG - OFF_DD - 12 * 128))
        a('v_cndmask_b32 v%d, v%d, 0, vcc' % (t[1], t[1]))
        a('v_lshl_add_u32 v%d, v%d, 7, v%d' % (t[0], t[0], t[1]))
        a('s_lshl_b32 s%d, s%d, 4' % (sT0, sG))
        a('s_add_u32 s%d, s%d, s%d' % (sT0, sT0, sI))
        a('s_mul_i32 s%d, s%d, 1536' % (sT2, sT0))
        a('s_add_u32 s%d, s%d, 0x%x' % (sT2, sT2, OFF_DD))
        a('v_add_u32 v%d, s%d, v%d' % (t[0], sT2, t[0]))
        a('s_lshl_b32 s%d, s%d, 10' % (sT2, sT0))
        a('s_add_u32 s%d, s%d, 0x%x' % (sT2, sT2, OFF_BD))
        a('v_lshl_add_u32 v%d, v%d, 7, s%d' % (t[1], vL, sT2))
        a('v_cmp_gt_u32 vcc, 8, v%d' % vL)
        a('v_cndmask_b32 v%d, v%d, v%d, vcc' % (t[0], t[0], t[1]))
        a('v_add_u32 v%d, s%d, v%d' % (t[1], sDS, aASGET))
        a('v_cmp_gt_u32 vcc, 32, v%d' % vL)
        a('v_cndmask_b32 v%d, v%d, v%d, vcc' % (t[0], t[1], t[0]))
        a('v_cmp_gt_u32 vcc, 48, v%d' % vL)
        a('v_cndmask_b32 v%d, v%d, v%d, vcc' % (t[0], aBSGET, t[0]))
        a('buffer_load_dword v%d, v%d, %s, 0 offen sc1' % (vDUM, t[0], srd(S_W)), dummy=1)
    wave16k()
    for j in range(P['k0'], 16):
        kdma(j)
    a.label('GCQ_ISSUE')
    for q in range(4):
        gload(G2[q], aAGET, 's%d' % sCQ, 1024 * q)
    gload(G[4], aASGET, '0')
    for q in range(4):
        gload(G[q], aAGET, '0', 1024 * q)
    a('s_cmp_eq_u32 s%d, 1' % sSLOT)
    a.br('s_cbranch_scc1', 'GCQ_AGAIN', lambda c: c.get('_vhead', False))
    a.act(lambda c: c.__setitem__('_vhead', True))
    a('s_mov_b32 s%d, 1' % sSLOT)
    for j in range(P['v0']):
        vdma(j)
    a('s_waitcnt vmcnt(%d)' % (P['v0'] + 9))
    a('v_lshlrev_b32 v%d, 8, v%d' % (t[0], vL))
    a('v_lshl_add_u32 v%d, v%d, 4, v%d' % (t[0], vN, t[0]))
    a('v_add_u32 v%d, s%d, v%d' % (aTR, sT1, t[0]))
    for p in range(16):
        a('v_xor_b32 v%d, %d, v%d' % (t[p & 1], 16 * p, aTR))
        a('ds_read_b128 %s, v%d' % (ar(A_K + 4 * p, 4), t[p & 1]), needs=('K',))
    a('s_waitcnt vmcnt(%d)' % P['v0'])
    a.jmp('GCQ_CHECK')
    a.label('GCQ_AGAIN')
    a('s_waitcnt vmcnt(0)')
    a.label('GCQ_CHECK')
    for q in range(4):
        m16(ACC[1], vr(SEL4, 4), vr(G2[q], 4), '0' if q == 0 else vr(ACC[1], 4))
        chk_ab(vE2, G2[q], q == 0)
    a('v_cmp_ne_u16 vcc, 0, v%d' % vE2)
    a('s_cmp_lg_u64 vcc, 0')
    retry('CQ', 'GCQ_ISSUE')
    a('v_mov_b32 v%d, v%d' % (CSQ, ACC[1]))
    a('s_mov_b32 s%d, 0' % sSLOT)

    def a_reduce(waits):
        lo = ln_ops(G[4])
        a('v_cmp_ne_u32 s[%d:%d], s%d, v%d' % (sP, sP + 1, sT, G[4] + 3))
        a('\n'.join(lo[0]))
        for q in range(4):
            if waits:
                a('s_waitcnt vmcnt(%d)' % (3 - q))
            m16(ACC[0], vr(SEL4, 4), vr(G[q], 4), '0' if q == 0 else vr(ACC[0], 4))
            chk_ab(vE2, G[q], q == 0)
            a('\n'.join(lo[1 + q]))
        a('v_cmp_ne_u16 vcc, 0, v%d' % vE2)
        a('\n'.join(lo[5]))
        a('s_or_b64 vcc, vcc, s[%d:%d]' % (sP, sP + 1))
        return lo
    a_reduce(False)
    a.jmp('GA_CHECK')
    a.label('GA_PRE')
    if P['ackwait']:
        a('s_waitcnt vmcnt(0)')
    a.label('GA_ISSUE')
    gload(G[4], aASGET, '0')
    for q in range(4):
        gload(G[q], aAGET, '0', 1024 * q)
    a('s_waitcnt vmcnt(4)')
    lo = a_reduce(True)
    a.label('GA_CHECK')
    retry('A', 'GA_ISSUE')
    a('\n'.join(lo[6]))
    a('v_fma_f32 v%d, -v%d, v%d, v%d' % (t[0], vDM, CSQ, ACC[0]))
    a('v_mul_f32 v%d, v%d, v%d' % (t[0], t[0], vRS))
    a('v_cvt_pk_bf16_f32 v%d, v%d, v%d' % (t[1], t[0], t[0]))
    a('ds_write_b16 v%d, v%d' % (aQW, t[1]))
    dump(1, t[0])
    a('s_waitcnt lgkmcnt(0)')
    a('s_barrier')
    a('ds_read_b64 %s, v%d' % (vr(QA, 2), aQR))
    a('ds_read_b64 %s, v%d offset:128' % (vr(QA + 2, 2), aQR))
    stamp('q ready')
    a('\n'.join(newmean_ops()))
    lay_test()
    a.br('s_cbranch_scc1', 'S_GO', L2)
    a('v_cmp_ne_u32 vcc, s%d, v%d' % (sXCC, G[4] + 2))
    a('s_cmp_eq_u64 vcc, 0')
    if P['forceslow']:
        a('s_cmp_eq_u32 s%d, 77' % sW)
    a('s_cselect_b32 s%d, 0x%x, 0' % (S_F + 2, WS_USED))
    a('s_cselect_b32 s%d, 0, 0x%x' % (S_S + 2, WS_USED))
    wave16k()
    for j in range(P['v0'], 16):
        vdma(j)
    a.label('S_GO')
    a('s_waitcnt lgkmcnt(0)')
    for j in range(32):
        m4(ACC[j % 3], vr(QA + 2 * (j >> 4), 2), ar(A_K + 2 * j, 2), j < 3, j & 15)
    a('v_pk_add_f32 %s, %s, %s' % (vr(Y, 2), vr(ACC[2], 2), vr(ACC[0], 2)))
    a('v_pk_add_f32 %s, %s, %s' % (vr(Y, 2), vr(Y, 2), vr(ACC[1], 2)))
    a('v_mul_f32 v%d, s%d, v%d' % (Y, sC, Y))
    a('v_mul_f32 v%d, s%d, v%d' % (Y + 1, sC, Y + 1))
    dump(2, Y)
    for g in ror_steps('v_max_f32', [PSV, PSV + 2], [Y, Y + 1]):
        a('\n'.join(g))
    for bc, rm in ((15, '0xa'), (31, '0xc')):
        for r in (PSV, PSV + 2):
            a('v_max_f32_dpp v%d, v%d, v%d row_bcast:%d row_mask:%s bank_mask:0xf' % (r, r, r, bc, rm))
    a('v_ceil_f32 v%d, v%d' % (PSV, PSV))
    a('v_ceil_f32 v%d, v%d' % (PSV + 2, PSV + 2))
    a('v_readlane_b32 s%d, v%d, 63' % (sR0, PSV))
    a('v_readlane_b32 s%d, v%d, 63' % (sR1, PSV + 2))
    a('v_subrev_f32 v%d, s%d, v%d' % (Y, sR0, Y))
    a('v_subrev_f32 v%d, s%d, v%d' % (Y + 1, sR1, Y + 1))
    a('v_exp_f32 v%d, v%d' % (Y, Y))
    a('v_exp_f32 v%d, v%d' % (Y + 1, Y + 1))
    a('v_cvt_pk_bf16_f32 v%d, v%d, v%d' % (t[0], Y, Y + 1))
    a('v_mov_b32_dpp v%d, v%d quad_perm:[1,0,3,2]%s' % (t[1], t[0], DPP))
    a('v_perm_b32 v%d, v%d, v%d, v%d' % (PA, t[1], t[0], vSELH))
    a('v_mov_b32_dpp v%d, v%d quad_perm:[2,3,2,3]%s' % (PA + 1, PA, DPP))
    stamp('p ready')
    lay_test()
    a.br('s_cbranch_scc1', 'PV_GO', L2)
    a('s_mov_b32 s%d, s%d' % (sT2, sW))
    for k in range(5):
        tall_dma(S_WO, L_WO, sT2, 4 * k, 'WO')
    n3 = 5
    if P['gu3']:
        a('s_cmp_eq_u32 s%d, 3' % sW)
        a.br('s_cbranch_scc1', 'NOGU3', W3)
        a('s_mul_i32 s%d, s%d, 13824' % (sT2, sW))
        for k in range(P['gu3']):
            gudma(k)
        a.label('NOGU3')
    a('v_lshrrev_b32 v%d, 2, v%d' % (t[0], vN))
    a('v_lshlrev_b32 v%d, 2, v%d' % (t[1], t[0]))
    a('v_bfe_u32 v%d, v%d, 1, 1' % (t[2], vL))
    a('v_lshl_add_u32 v%d, v%d, 1, v%d' % (t[2], vRow, t[2]))
    a('v_xor_b32 v%d, v%d, v%d' % (t[2], t[2], t[1]))
    a('v_lshlrev_b32 v%d, 8, v%d' % (t[0], t[0]))
    a('v_lshl_add_u32 v%d, v%d, 4, v%d' % (t[0], t[2], t[0]))
    a('v_and_b32 v%d, 1, v%d' % (t[1], vL))
    a('v_lshl_add_u32 v%d, v%d, 3, v%d' % (t[0], t[1], t[0]))
    wave16k()
    a('s_add_u32 s%d, s%d, %d' % (sT1, sT1, L_V))
    a('v_add_u32 v%d, s%d, v%d' % (aTR, sT1, t[0]))
    a('v_xor_b32 v%d, 128, v%d' % (aTR2, aTR))
    for grp in range(4):
        if P['gu3']:
            a('s_cmp_eq_u32 s%d, 3' % sW)
            a.br('s_cbranch_scc1', 'VW3_%d' % grp, W3)
            a('s_waitcnt vmcnt(%d)' % (n3 + P['gu3'] + 12 - 4 * grp))
            a.jmp('VW_%d' % grp)
            a.label('VW3_%d' % grp)
        a('s_waitcnt vmcnt(%d)' % (n3 + 12 - 4 * grp))
        a.label('VW_%d' % grp)
        for b in range(4 * grp, 4 * grp + 4):
            for eta in range(2):
                a('ds_read_b64_tr_b16 %s, v%d offset:%d' % (ar(A_V + 4 * b + 2 * eta, 2), aTR2 if eta else aTR, 1024 * b),
                  needs=('V%d' % grp,))
    a('s_waitcnt lgkmcnt(0)')
    a.label('PV_GO')
    ls = []
    for g in ror_steps('v_add_f32', [PSV + 1, PSV + 3], [Y, Y + 1]):
        ls += g
    for bc, rm in ((15, '0xa'), (31, '0xc')):
        for r in (PSV + 1, PSV + 3):
            ls.append('v_add_f32_dpp v%d, v%d, v%d row_bcast:%d row_mask:%s bank_mask:0xf' % (r, r, r, bc, rm))
    k = 0
    for b in range(16):
        for eta in range(2):
            m4(ACC[2 * (b & 1) + eta], vr(PA, 2), ar(A_V + 4 * b + 2 * eta, 2), b < 2, b)
            if k < len(ls):
                a(ls[k])
                k += 1
    a('ds_write_b128 v%d, %s' % (aPSW, vr(PSV, 4)))
    a('v_pk_add_f32 %s, %s, %s' % (vr(PO, 2), vr(ACC[0], 2), vr(ACC[2], 2)))
    a('v_pk_add_f32 %s, %s, %s' % (vr(PO + 2, 2), vr(ACC[1], 2), vr(ACC[3], 2)))
    a('ds_write2st64_b32 v%d, v%d, v%d offset0:0 offset1:8' % (aPOW, PO, PO + 1))
    a('ds_write2st64_b32 v%d, v%d, v%d offset0:4 offset1:12' % (aPOW, PO + 2, PO + 3))
    a('s_waitcnt lgkmcnt(0)')
    a('s_barrier')
    a('ds_read2_b64 %s, v%d offset0:0 offset1:2' % (vr(PS, 4), aPSR))
    a('ds_read2_b64 %s, v%d offset0:4 offset1:6' % (vr(PS + 4, 4), aPSR))
    a('ds_read2st64_b32 %s, v%d offset0:0 offset1:1' % (vr(PO, 2), aPOR))
    a('ds_read2st64_b32 %s, v%d offset0:2 offset1:3' % (vr(PO + 2, 2), aPOR))
    a('s_waitcnt lgkmcnt(2)')
    a('v_max3_f32 v%d, v%d, v%d, v%d' % (BST, PS, PS + 2, PS + 4))
    a('v_max_f32 v%d, v%d, v%d' % (BST, BST, PS + 6))
    for q in range(4):
        a('v_sub_f32 v%d, v%d, v%d' % (PS + 2 * q, PS + 2 * q, BST))
    for q in range(4):
        a('v_exp_f32 v%d, v%d' % (PS + 2 * q, PS + 2 * q))
    a('s_waitcnt lgkmcnt(0)')
    a('v_mul_f32 v%d, v%d, v%d' % (t[0], PS, PO))
    for q in range(1, 4):
        a('v_fmac_f32 v%d, v%d, v%d' % (t[0], PS + 2 * q, PO + q))
    a('v_cvt_pk_bf16_f32 v%d, v%d, v%d' % (t[2], vTAB, t[0]))
    pub('buffer_store_dword', 'v%d' % t[2], aAPUB, 's%d' % sBD)
    a('v_mul_f32 v%d, v%d, v%d' % (BST + 1, PS, PS + 1))
    for q in range(1, 4):
        a('v_fmac_f32 v%d, v%d, v%d' % (BST + 1, PS + 2 * q, PS + 2 * q + 1))
    pub('buffer_store_dwordx4', vr(BST, 4), aBSPUB, '0')
    dump(3, t[0])
    stamp('B pub')
    if P['ackwait']:
        a('s_waitcnt vmcnt(0)')
    a.label('GB_ISSUE')
    gload(G[4], aBSGET, '0')
    for q in range(4):
        gload(G[q], aAGET, 's%d' % sBD, 1024 * q)
    a('s_waitcnt vmcnt(4)')
    a('v_cmp_ne_u32 s[%d:%d], s%d, v%d' % (sP, sP + 1, sT, G[4] + 3))
    for g in ror_steps('v_max_f32', [vE0], [G[4]]):
        a('\n'.join(g))
    a('v_sub_f32 v%d, v%d, v%d' % (vE0, G[4], vE0))
    a('v_exp_f32 v%d, v%d' % (vE0, vE0))
    a('v_mul_f32 v%d, v%d, v%d' % (vE1, vE0, G[4] + 1))
    lsum = [g[0] for g in ror_steps('v_add_f32', [vE1])]
    for q in range(4):
        for d in range(4):
            a('v_and_b32_dpp v%d, v%d, v%d row_newbcast:%d%s' % (AW[q] + d, vE0, MASK4 + d, q, DPP))
        a(lsum[q])
        a('s_waitcnt vmcnt(%d)' % (3 - q))
        chk_ab(vE2, G[q], q == 0)
        m16(ACC[0], vr(AW[q], 4), vr(G[q], 4), '0' if q == 0 else vr(ACC[0], 4))
    a('v_cmp_ne_u16 vcc, 0, v%d' % vE2)
    a('v_rcp_f32 v%d, v%d' % (vE1, vE1))
    a('s_or_b64 vcc, vcc, s[%d:%d]' % (sP, sP + 1))
    retry('B', 'GB_ISSUE')
    a('v_mul_f32 v%d, v%d, v%d' % (t[0], ACC[0], vE1))
    a('v_cvt_pk_bf16_f32 v%d, v%d, v%d' % (t[1], t[0], t[0]))
    a('ds_write_b16 v%d, v%d offset:%d' % (aQW, t[1], L_O - L_Q))
    dump(4, t[0])
    a('s_waitcnt lgkmcnt(0)')
    a('s_barrier', needs=('WO',))
    stamp('o ready')
    a('s_cmp_eq_u32 s%d, 3' % sW)
    a.br('s_cbranch_scc1', 'W3_C', W3)

    def tall_addr(region):
        a('v_lshrrev_b32 v%d, 2, v%d' % (t[0], vN))
        a('v_lshl_add_u32 v%d, v%d, 3, v%d' % (t[0], vRow, t[0]))
        a('v_mul_u32_u24 v%d, 80, v%d' % (t[0], t[0]))
        a('v_and_b32 v%d, 3, v%d' % (t[1], vL))
        a('v_lshl_add_u32 v%d, v%d, 3, v%d' % (t[0], t[1], t[0]))
        a('s_and_b32 s%d, s%d, 1' % (sT0, sI))
        a('s_lshl_b32 s%d, s%d, 3' % (sT0, sT0))
        a('s_mul_i32 s%d, s%d, 24' % (sT3, sW))
        a('s_add_u32 s%d, s%d, s%d' % (sT0, sT0, sT3))
        a('s_add_u32 s%d, s%d, %d' % (sT0, sT0, region))
        a('v_add_u32 v%d, s%d, v%d' % (aTR, sT0, t[0]))

    def tall_stage(nk, AB, ldsoff):
        for k in range(nk):
            a('s_waitcnt lgkmcnt(%d)' % (nk - 1 - k))
            m16(ACC[0], ar(AB + 4 * k, 4), vr(OP + 4 * k, 4), '0' if k == 0 else vr(ACC[0], 4))
        a('v_cvt_pk_bf16_f32 v%d, v%d, v%d' % (XG, ACC[0], ACC[0] + 1))
        a('v_cvt_pk_bf16_f32 v%d, v%d, v%d' % (XG + 1, ACC[0] + 2, ACC[0] + 3))
        a('buffer_store_dwordx4 %s, v%d, %s, s%d offen sc1' % (vr(XG, 4), aXPUB, srd(S_W), sSLOT))

    lay_test()
    a.br('s_cbranch_scc1', 'O_GO', L2)
    a('s_mul_i32 s%d, s%d, 13824' % (sT2, sW))
    for k in range(P['gu3'], P['gu3'] + P['gu4']):
        gudma(k)
    tall_addr(L_WO)
    for k in range(8):
        for u in range(2):
            a('ds_read_b64_tr_b16 %s, v%d offset:%d' % (ar(A_WO + 4 * k + 2 * u, 2), aTR, 2560 * k + 320 * u))
    a('s_waitcnt lgkmcnt(0)')
    a.label('O_GO')
    for k in range(8):
        a('ds_read_b128 %s, v%d offset:%d' % (vr(OP + 4 * k, 4), aOR, 64 * k))
    tall_stage(8, A_WO, 0)
    dump(5, ACC[0])
    stamp('C pub')
    lay_test()
    a.br('s_cbranch_scc1', 'C_WAIT', L2)
    a('s_mul_i32 s%d, s%d, 13824' % (sT2, sW))
    for k in range(P['gu3'] + P['gu4'], 14):
        gudma(k)
    if P['xbar']:
        a('s_waitcnt vmcnt(%d)' % (14 - P['gu3'] - P['gu4']))
        a('s_barrier')
    a('v_lshrrev_b32 v%d, 2, v%d' % (t[0], vN))
    a('v_mul_u32_u24 v%d, 192, v%d' % (t[0], t[0]))
    a('s_add_u32 s%d, s%d, %d' % (sT2, sT2, L_GU))
    a('v_add_u32 v%d, s%d, v%d' % (t[0], sT2, t[0]))
    a('v_and_b32 v%d, 3, v%d' % (t[1], vL))
    a('v_lshl_add_u32 v%d, v%d, 2, v%d' % (t[2], vRow, t[1]))
    a('v_lshl_add_u32 v%d, v%d, 3, v%d' % (aTR, t[2], t[0]))
    a('v_lshrrev_b32 v%d, 1, v%d' % (t[2], t[2]))
    a('v_lshl_add_u32 v%d, v%d, 3, v%d' % (t[0], t[2], t[0]))
    a('v_and_b32 v%d, 1, v%d' % (t[1], vL))
    a('v_mul_u32_u24 v%d, 6912, v%d' % (t[1], t[1]))
    a('v_add_u32 v%d, v%d, v%d' % (aTR2, t[0], t[1]))
    a('s_waitcnt vmcnt(0)')
    for j in range(9):
        a('ds_read_b64_tr_b16 %s, v%d offset:%d' % (ar(A_GU + 2 * j, 2), aTR, 768 * j), needs=('GU',))
        a('ds_read_b64_tr_b16 %s, v%d offset:%d' % (ar(A_GU + 18 + 2 * j, 2), aTR, 6912 + 768 * j), needs=('GU',))
        a('ds_read_b64_tr_b16 %s, v%d offset:%d' % (ar(A_GU + 36 + 2 * j, 2), aTR2, 128 + 768 * j), needs=('GU',))
    a('s_waitcnt lgkmcnt(0)')
    for j in range(9):
        for b in range(3):
            m4(ACC[b], vr(ONE, 2), ar(A_GU + 18 * b + 2 * j, 2), j == 0, 0)
    a('v_cvt_pk_bf16_f32 v%d, v%d, v%d' % (PK2, ACC[0], ACC[1]))
    a('v_cvt_pk_bf16_f32 v%d, v%d, v%d' % (PK2 + 1, ACC[2], vTD))
    pub('buffer_store_dwordx2', vr(PK2, 2), aDPUB, 's%d' % sCG)
    a.jmp('G_ENTRY')
    a.label('C_WAIT')
    if P['xbar']:
        a('s_waitcnt vmcnt(0)')
        a('s_barrier')
    a.label('G_ENTRY')
    a('s_barrier')
    a('ds_read_b64 %s, v%d' % (vr(XQ, 2), aXQR))
    a('s_add_u32 s%d, s%d, 0x10000' % (sSLOT, sSLOT))
    a('s_waitcnt lgkmcnt(0)')
    for j in range(9):
        for b in range(3):
            m4(ACC[b], vr(XQ, 2), ar(A_GU + 18 * b + 2 * j, 2), j == 0, j)
    a('v_cvt_pk_bf16_f32 v%d, v%d, v%d' % (PK2, ACC[0], ACC[1]))
    a('v_cvt_pk_bf16_f32 v%d, v%d, v%d' % (PK2 + 1, ACC[2], vTD))
    pub('buffer_store_dwordx2', vr(PK2, 2), aDPUB, '0')
    dump(6, ACC[0])
    a.label('GD_PRE')
    stamp('D pub')
    lay_test()
    a.br('s_cbranch_scc1', 'GD_ACK', L2)
    a.label('GCG_ISSUE')
    gload(G2[0], aDG1, 's%d' % sCG)
    gload(G2[1], aDG1, 's%d' % sCG, 1536)
    gload(G2[2], aDG1b, 's%d' % sCG)
    gload(G2[3], aDG1b, 's%d' % sCG, 1536)
    gload(G2[4], aDG2, 's%d' % sCG)
    gload(G2[5], aDG2, 's%d' % sCG, 1536)
    a('s_waitcnt vmcnt(0)')
    for q in range(4):
        m16(ACC[2], vr(SELD, 4), vr(G2[q], 4), '0' if q == 0 else vr(ACC[2], 4))
    for q in range(2):
        m16(ACC[3], vr(SELD, 4), vr(G2[4 + q], 4), '0' if q == 0 else vr(ACC[3], 4))
    for q in range(3):
        chk_d(vE2, G2[2 * q], G2[2 * q + 1], q == 0)
    a('v_cmp_lt_u32 vcc, 0xffff, v%d' % vE2)
    a('s_cmp_lg_u64 vcc, 0')
    retry('CG', 'GCG_ISSUE')
    a('v_mov_b32 v%d, v%d' % (CSG, ACC[2]))
    a('v_mov_b32 v%d, v%d' % (CSG + 1, ACC[2] + 1))
    a('v_add_f32_dpp v%d, v%d, v%d row_ror:8%s' % (CSG + 2, ACC[3], ACC[3], DPP))
    a('v_add_f32_dpp v%d, v%d, v%d row_ror:8%s' % (CSG + 3, ACC[3] + 1, ACC[3] + 1, DPP))
    a.label('GD_ACK')
    if P['ackwait']:
        a('s_waitcnt vmcnt(0)')
    a.label('GD_ISSUE')
    gload(G[6], aASGET, 's%d' % sDS)
    gload(G[4], aDG2, '0')
    gload(G[5], aDG2, '0', 1536)
    gload(G[0], aDG1, '0')
    gload(G[1], aDG1, '0', 1536)
    gload(G[2], aDG1b, '0')
    gload(G[3], aDG1b, '0', 1536)
    a('s_waitcnt vmcnt(6)')
    lo = ln_ops(G[6])
    a('v_cmp_ne_u32 s[%d:%d], s%d, v%d' % (sP, sP + 1, sT, G[6] + 3))
    a('\n'.join(lo[0]))
    a('s_waitcnt vmcnt(5)')
    m16(ACC[1], vr(SELD, 4), vr(G[4], 4), '0')
    a('\n'.join(lo[1]))
    a('s_waitcnt vmcnt(4)')
    m16(ACC[1], vr(SELD, 4), vr(G[5], 4), vr(ACC[1], 4))
    chk_d(vE2, G[4], G[5], True)
    a('\n'.join(lo[2]))
    a('s_waitcnt vmcnt(3)')
    m16(ACC[0], vr(SELD, 4), vr(G[0], 4), '0')
    a('\n'.join(lo[3]))
    a('s_waitcnt vmcnt(2)')
    m16(ACC[0], vr(SELD, 4), vr(G[1], 4), vr(ACC[0], 4))
    chk_d(vE2, G[0], G[1], False)
    a('\n'.join(lo[4] + lo[5] + lo[6]))
    a('s_waitcnt vmcnt(1)')
    m16(ACC[0], vr(SELD, 4), vr(G[2], 4), vr(ACC[0], 4))
    a('v_add_f32_dpp v%d, v%d, v%d row_ror:8%s' % (t[4], ACC[1], ACC[1], DPP))
    a('v_add_f32_dpp v%d, v%d, v%d row_ror:8%s' % (t[5], ACC[1] + 1, ACC[1] + 1, DPP))
    a('v_mul_f32 v%d, v%d, v%d' % (vRS, vRS, vRS))
    a('s_waitcnt vmcnt(0)')
    m16(ACC[0], vr(SELD, 4), vr(G[3], 4), vr(ACC[0], 4))
    chk_d(vE2, G[2], G[3], False)
    a('v_cmp_lt_u32 vcc, 0xffff, v%d' % vE2)
    a('v_fma_f32 v%d, -v%d, v%d, v%d' % (t[4], vDM, CSG + 2, t[4]))
    a('v_fma_f32 v%d, -v%d, v%d, v%d' % (t[5], vDM, CSG + 3, t[5]))
    a('s_or_b64 vcc, vcc, s[%d:%d]' % (sP, sP + 1))
    retry('D', 'GD_ISSUE')
    a('v_mul_f32 v%d, v%d, v%d' % (t[4], t[4], vRS))
    a('v_mul_f32 v%d, v%d, v%d' % (t[4], t[4], t[5]))
    a('v_fma_f32 v%d, -v%d, v%d, v%d' % (t[0], vDM, CSG, ACC[0]))
    a('v_fma_f32 v%d, -v%d, v%d, v%d' % (t[1], vDM, CSG + 1, ACC[0] + 1))
    a('v_mul_f32 v%d, v%d, v%d' % (t[0], t[0], vRS))
    a('v_mul_f32 v%d, v%d, v%d' % (t[0], t[0], t[1]))
    a('v_cvt_pk_bf16_f32 v%d, v%d, v%d' % (t[1], t[0], t[4]))
    a('ds_write_b16 v%d, v%d' % (aHW1, t[1]))
    a('ds_write_b16_d16_hi v%d, v%d' % (aHW2, t[1]))
    dump(7, t[0])
    a('s_waitcnt lgkmcnt(0)')
    a('s_barrier', needs=('WD',))
    stamp('h ready')
    a('s_cmp_eq_u32 s%d, 3' % sW)
    a.br('s_cbranch_scc1', 'W3_E', W3)
    lay_test()
    a.br('s_cbranch_scc1', 'D_GO', L2)
    tall_addr(L_WD)
    for k in range(9):
        for u in range(2):
            a('ds_read_b64_tr_b16 %s, v%d offset:%d' % (ar(A_WD + 4 * k + 2 * u, 2), aTR, 2560 * k + 320 * u))
    a('s_waitcnt lgkmcnt(0)')
    a.label('D_GO')
    for k in range(9):
        a('ds_read_b128 %s, v%d offset:%d' % (vr(OP + 4 * k, 4), aOR, L_H - L_O + 64 * k))
    tall_stage(9, A_WD, 0)
    dump(8, ACC[0])
    stamp('E pub')
    if P['xbar']:
        a('s_waitcnt vmcnt(0)')
        a('s_barrier')
    lay_test()
    a.br('s_cbranch_scc1', 'FINISH', L2)
    a('s_add_u32 s%d, s%d, 0x10000' % (sSLOT, sSLOT))
    a('s_mov_b32 s%d, 1' % sLAY)
    a.act(lambda c: c.__setitem__('layer', 1))
    set_tags()
    a.jmp('Q_ENTRY')

    def xgather(tag):
        a.label('GX_ISSUE_' + tag)
        for q in range(4):
            gload(G[q], aXGET, 's%d' % sSLOT, 256 * q)
        for q in range(4):
            a('s_waitcnt vmcnt(%d)' % (3 - q))
            m16(XC, vr(SELX, 4), vr(G[q], 4), vr(CI, 4) if q == 0 else vr(XC, 4))
            if q & 1:
                a('v_bitop3_b32 v%d, v%d, v%d, s%d bitop3:0x7e' % (t[q >> 1], G[q - 1] + 3, G[q] + 3, sT))
        a('v_or_b32 v%d, v%d, v%d' % (t[0], t[0], t[1]))
        a('v_cmp_ne_u32 vcc, 0, v%d' % t[0])
        a('s_cmp_lg_u64 vcc, 0')
        retry(tag, 'GX_ISSUE_' + tag)

    def xq_write():
        a('v_cvt_pk_bf16_f32 v%d, v%d, v%d' % (PK2, XC, XC + 1))
        a('v_cvt_pk_bf16_f32 v%d, v%d, v%d' % (PK2 + 1, XC + 2, XC + 3))
        a('ds_write_b64 v%d, %s' % (aXQW, vr(PK2, 2)))
        a('s_waitcnt lgkmcnt(0)')

    a.label('W3_C')
    lay_test()
    a.br('s_cbranch_scc1', 'W3_C2', L2)
    a('s_mov_b32 s%d, 0' % sT2)
    for k in range(P['wd4']):
        tall_dma(S_WD, L_WD, sT2, k, 'WD', half=(k == 22))
    a.label('W3_C2')
    if P['xbar']:
        a('s_barrier')
    xgather('C')
    xq_write()
    a('s_barrier')
    stamp('x1 ready(w3)')
    a('\n'.join(stats_ops()))
    pub('buffer_store_dwordx4', vr(ST, 4), aASPUB, 's%d' % sDS)
    a('s_add_u32 s%d, s%d, 0x10000' % (sSLOT, sSLOT))
    dump(9, XC)
    a('\n'.join(resid_ops()))
    lay_test()
    a.br('s_cbranch_scc1', 'W3_EPOCH', L2)
    a('s_mov_b32 s%d, 0' % sT2)
    for k in range(P['wd4'], 23):
        tall_dma(S_WD, L_WD, sT2, k, 'WD', half=(k == 22))
    a.jmp('GD_PRE')
    a.label('W3_EPOCH')
    a('s_cmp_lg_u32 s2, 0')
    a.br('s_cbranch_scc1', 'GD_PRE', lambda c: not c['final'])
    a('v_mov_b32 v%d, 0' % t[0])
    a('s_mov_b64 exec, 1')
    a('buffer_store_dword v%d, v%d, %s, 0 offen' % (XG + 3, t[0], srd(S_W)))
    a('s_mov_b64 exec, -1')
    a.jmp('GD_PRE')

    a.label('W3_E')
    a('\n'.join(newmean_ops()))
    if P['xbar']:
        a('s_barrier')
    lay_test()
    a.br('s_cbranch_scc0', 'W3_E2', L1)
    a('s_cmp_lg_u32 s%d, s%d' % (sG, sI))
    a.br('s_cbranch_scc1', 'FINISH', lambda c: not c['final'])
    a.label('W3_E2')
    xgather('E')
    dump(10, XC)
    lay_test()
    a.br('s_cbranch_scc1', 'W3_OUT', L2)
    a('s_add_u32 s%d, s%d, 0x10000' % (sSLOT, sSLOT))
    a('s_mov_b32 s%d, 1' % sLAY)
    a.act(lambda c: c.__setitem__('layer', 1))
    xq_write()
    a.jmp('W3_TAGS')
    a.label('XQ_WRITE_A')
    xq_write()
    a.jmp('Q_ENTRY')
    a.label('W3_TAGS')
    a('s_barrier')
    a('ds_read_b64 %s, v%d' % (vr(XQ, 2), aXQR))
    set_tags()
    a.jmp('Q_GO')
    a.label('W3_OUT')
    for r in range(4):
        a('v_add_f32 v%d, v%d, v%d' % (XR + r, XC + r, vMP))
    a('v_cvt_pk_bf16_f32 v%d, v%d, v%d' % (PK2, XR, XR + 1))
    a('v_cvt_pk_bf16_f32 v%d, v%d, v%d' % (PK2 + 1, XR + 2, XR + 3))
    a('buffer_store_dwordx2 %s, v%d, %s, 0 offen' % (vr(PK2, 2), aOUT, srd(S_OUT)))
    a.label('FINISH')
    if P['stamps']:
        stamp('end')
        a('s_memrealtime s[%d:%d]' % (sTS, sTS + 1))
        a('s_waitcnt lgkmcnt(0)')
        a('v_writelane_b32 v%d, s%d, 31' % (vTS, sTS))
        a('s_mov_b32 s%d, 0x%x' % (sT3, OFF_DBG))
        a('buffer_store_dword v%d, v%d, %s, s%d offen' % (vTS, aDM, srd(S_W), sT3))
    a.label('END')
    a('s_endpgm')
    for tag, issue in retry_blocks:
        a.label('RETRY_' + tag)
        a('s_sub_u32 s%d, s%d, 1' % (sBUD, sBUD))
        a.br('s_cbranch_scc0', issue, lambda c: True)
        a('s_mov_b32 s%d, 0' % sBUD)
        a.jmp('CONT_' + tag)
    a.label('CODE_END')

    ctxs = []
    for w in (0, 3):
        for fin in (True, False):
            for rt in (False, True):
                ctxs.append(lambda w=w, fin=fin, rt=rt: dict(layer=0, wave=w, final=fin, retry=rt,
                                                              name='w%d fin%d retry%d' % (w, fin, rt)))
    a.fix_hazards(ctxs)
    errs = a.check_waits(ctxs)
    return a, errs, v.n, names


HEADER = '''; Persistent decode kernel: 256 workgroups (one per CU) keep K, V and all weights on chip for both layers.
; @launch grid=(256,1,1) block=(256,1,1) lds=%d
.amdgcn_target "amdgcn-amd-amdhsa--gfx950"
.text
.globl %s
.p2align 8
.type %s,@function
%s:
'''
FOOTER = '''.section .rodata,"a"
.p2align 6
.amdhsa_kernel %s
  .amdhsa_next_free_vgpr 512
  .amdhsa_next_free_sgpr 102
  .amdhsa_accum_offset 256
  .amdhsa_group_segment_fixed_size 0
  .amdhsa_kernarg_size 96
  .amdhsa_user_sgpr_count 2
  .amdhsa_user_sgpr_kernarg_segment_ptr 1
  .amdhsa_system_sgpr_workgroup_id_x 1
.end_amdhsa_kernel
'''


def render(**kw):
    a, errs, nv, names = build(**kw)
    txt = HEADER % (LDS_BYTES, KNAME, KNAME, KNAME) + a.text() + FOOTER % KNAME
    return txt, a, errs, nv, names


if __name__ == '__main__':
    out = sys.argv[1]
    kw = {}
    for s in sys.argv[2:]:
        k, x = s.split('=')
        kw[k] = int(x)
    txt, a, errs, nv, names = render(**kw)
    for e in sorted(set(errs)):
        print('WAIT ERROR', e)
    open(out, 'w').write(txt)
    print('vgprs', nv, 'lds', LDS_BYTES, 'pads', sum(p for p, _ in a.pads()), 'stamps', names)
    if errs:
        sys.exit(1)
```

```python
import sys
from asmlib import Asm

KNAME = 'interleave_layers__sliding_block_cached__glu_gated_bilinear__decode_kernel'

DEFAULTS = dict(
    stamps=0,
    dump=0,
    k0=8,
    v0=8,
    gu3=6,
    gu4=8,
    wd4=23,
    pretouch=1, prewrite=1, codepf=1,
    ackwait=1,
    xbar=1,
    forceslow=0,
)

OFF_AD, OFF_CQ, OFF_BD = 0x1000, 0x41000, 0x81000
OFF_DD, OFF_CG = 0xC1000, 0x121000
OFF_AS, OFF_DS, OFF_BS = 0x181000, 0x182000, 0x183000
OFF_X = 0x190000
WS_USED = 0x1D0000
OFF_DBG = 0x200000
WS_SRD = 0x1000000
OOB = 0x80000000
L_K, L_V, L_WQ = 0, 65536, 131072
L_WO, L_GU, L_WD = 0, 20480, 65536
L_X = 149504
L_Q = L_X + 128
L_O = L_Q + 512
L_H = L_O + 512
L_PS = L_H + 640
L_DUM = L_PS + 64
L_PO = (L_DUM + 1024 + 255) // 256 * 256
L_END = L_PO + 4096
LDS_BYTES = L_END
assert LDS_BYTES <= 163840 and LDS_BYTES > 81920

S_K, S_V, S_WQ, S_WO, S_WG, S_WU, S_WD, S_X, S_OUT, S_W, S_F, S_S = range(28, 76, 4)
(sW, sG, sI, sROT, sT, sThi, sTsh, sLAY, sBUD, sXCC, sCQ, sBD, sDS, sCG, sSLOT,
 sR0, sR1, sT0, sT1, sT2, sT3, sE) = range(76, 98)
sM9 = 98
sP = 100
sC, sINV = 4, 5
sHIM, sTS = 6, 8


def srd(b):
    return 's[%d:%d]' % (b, b + 3)


class V:
    def __init__(self):
        self.n = 1

    def __call__(self, k=1, al=1):
        if k > 1:
            al = max(al, 2)
        self.n = (self.n + al - 1) // al * al
        r = self.n
        self.n += k
        assert self.n <= 256
        return r


def vr(b, k):
    return 'v[%d:%d]' % (b, b + k - 1)


def ar(b, k):
    return 'a[%d:%d]' % (b, b + k - 1)


A_K, A_V, A_GU, A_WO, A_WD = 0, 64, 128, 184, 216


def build(**kw):
    P = dict(DEFAULTS)
    P.update(kw)
    a = Asm()
    v = V()
    L1 = lambda c: c['layer'] == 0
    L2 = lambda c: c['layer'] == 1
    W3 = lambda c: c['wave'] == 3
    NW3 = lambda c: c['wave'] != 3

    vL, vRow, vN = v(), v(), v()
    t = [v() for _ in range(8)]
    (aXQR, aAPUB, aAGET, aASGET, aASPUB, aBSGET, aBSPUB, aQW, aQR, aPOW, aPOR, aPSW, aPSR, aOR, aXPUB,
     aXGET, aXQW, aDPUB, aDG1, aDG1b, aDG2, aHW1, aHW2, aOUT) = [v() for _ in range(24)]
    SEL4, MASK4, SELX, SELD = v(4, 4), v(4, 4), v(4, 4), v(4, 4)
    vSELH, vTAB, vTD, vEPS, vMP = v(), v(), v(), v(), v()
    XG, ST, BST, PSV = v(4, 4), v(4, 4), v(4, 4), v(4, 4)
    WQ = v(18, 2)
    XQ, QA, PA = v(2), v(4, 2), v(2)
    ONE = v(2)
    ACC = [v(4, 4) for _ in range(4)]
    G = [v(4, 4) for _ in range(7)]
    OP = v(36, 4)
    G2 = [OP + 4 * q for q in range(6)]
    AW = [OP + 4 * q for q in range(4)]
    XC, XR, CI = v(4, 4), v(4, 4), v(4, 4)
    CSQ = v()
    CSG = v(4, 2)
    Y, PK2 = v(2), v(2)
    PO, PS = v(4, 2), v(8, 2)
    vDM, vRS, vE0, vE1, vE2 = v(), v(), v(), v(), v()
    aK = [v() for _ in range(4)]
    aV, aWQ, aTR, aTR2, aDM = v(), v(), v(), v(), v()
    aGU = [v() for _ in range(7)]
    vTS, vDUM = v(), v()
    nstamp = [0]
    names = []

    def stamp(name):
        if not P['stamps']:
            return
        k = nstamp[0]
        nstamp[0] += 1
        names.append(name)
        assert k < 31
        a('s_memtime s[%d:%d]' % (sTS, sTS + 1))
        a('s_lshl_b32 s%d, s%d, 5' % (sT3, sLAY))
        a('s_add_u32 s%d, s%d, %d' % (sT3, sT3, k))
        a('s_mov_b32 m0, s%d' % sT3)
        a('s_waitcnt lgkmcnt(0)')
        a('v_writelane_b32 v%d, s%d, m0' % (vTS, sTS))

    def dump(idx, reg):
        if not P['dump']:
            return
        a('s_lshl_b32 s%d, s%d, 18' % (sT3, sLAY))
        a('s_add_u32 s%d, s%d, 0x%x' % (sT3, sT3, OFF_DBG + 0x100000 + idx * 0x80000))
        a('buffer_store_dword v%d, v%d, %s, s%d offen' % (reg, aDM, srd(S_W), sT3))
        a('s_waitcnt vmcnt(0)')

    def mk_srd(b, ptr, off_sgpr, size):
        if off_sgpr is None:
            a('s_mov_b32 s%d, s%d' % (b, ptr))
            a('s_and_b32 s%d, s%d, 0xffff' % (b + 1, ptr + 1))
        else:
            a('s_add_u32 s%d, s%d, s%d' % (b, ptr, off_sgpr))
            a('s_addc_u32 s%d, s%d, 0' % (b + 1, ptr + 1))
            a('s_and_b32 s%d, s%d, 0xffff' % (b + 1, b + 1))
        a('s_mov_b32 s%d, 0x%x' % (b + 2, size))
        a('s_mov_b32 s%d, 0x20000' % (b + 3))

    def pub(op, data, addr, soff, off=''):
        a('%s %s, v%d, %s, %s offen%s' % (op, data, addr, srd(S_F), soff, off))
        a('%s %s, v%d, %s, %s offen%s sc1' % (op, data, addr, srd(S_S), soff, off))

    def gload(dst, addr, soff, off=0):
        a('buffer_load_dwordx4 %s, v%d, %s, %s offen%s sc1' % (
            vr(dst, 4), addr, srd(S_W), soff, (' offset:%d' % off) if off else ''))

    retry_blocks = []

    def retry(tag, issue_label):
        def taken(c):
            k = (tag, c['layer'])
            if c.get('retry') and k not in c.setdefault('_done', set()):
                c['_done'].add(k)
                return True
            return False
        a.br('s_cbranch_scc1', 'RETRY_' + tag, taken)
        a.label('CONT_' + tag)
        retry_blocks.append((tag, issue_label))

    def lay_test():
        a('s_cmp_lg_u32 s%d, 0' % sLAY)

    def kdma(j):
        a('s_add_u32 s%d, s%d, %d' % (sT0, sROT, j))
        a('s_and_b32 s%d, s%d, 15' % (sT0, sT0))
        a('s_lshl_b32 s%d, s%d, 12' % (sT0, sT0))
        a('s_add_u32 m0, s%d, %d' % (sT1, L_K + 1024 * j))
        a('buffer_load_dwordx4 v%d, %s, s%d offen nt lds' % (aK[j & 3], srd(S_K), sT0), fills='K')

    def vdma(j):
        a('s_add_u32 s%d, s%d, %d' % (sT0, sROT, j))
        a('s_and_b32 s%d, s%d, 15' % (sT0, sT0))
        a('s_lshl_b32 s%d, s%d, 12' % (sT0, sT0))
        a('s_add_u32 m0, s%d, %d' % (sT1, L_V + 1024 * j))
        a('buffer_load_dwordx4 v%d, %s, s%d offen nt lds' % (aV, srd(S_V), sT0), fills='V%d' % (j // 4))

    def wave16k():
        a('s_lshl_b32 s%d, s%d, 14' % (sT1, sW))

    def tall_dma(S, region, instr_sgpr_base, k, fills, half=False):
        a('s_add_u32 s%d, s%d, %d' % (sT0, instr_sgpr_base, k))
        a('s_lshl_b32 s%d, s%d, 6' % (sT3, sT0))
        a('v_add_u32 v%d, s%d, v%d' % (t[0], sT3, vL))
        a('v_mul_u32_u24 v%d, 52429, v%d' % (t[1], t[0]))
        a('v_lshrrev_b32 v%d, 18, v%d' % (t[1], t[1]))
        a('v_mul_u32_u24 v%d, 1072, v%d' % (t[1], t[1]))
        a('v_lshl_add_u32 v%d, v%d, 4, v%d' % (t[1], t[0], t[1]))
        a('s_lshl_b32 s%d, s%d, 10' % (sT0, sT0))
        a('s_add_u32 m0, s%d, %d' % (sT0, region))
        if half:
            a('s_mov_b32 exec_hi, 0')
        a('buffer_load_dwordx4 v%d, %s, 0 offen nt lds' % (t[1], srd(S)), fills=fills)
        if half:
            a('s_mov_b32 exec_hi, -1')

    def gudma(k):
        j, mu = k >> 1, k & 1
        a('s_add_u32 m0, s%d, %d' % (sT2, L_GU + 6912 * mu + 1024 * j))
        if j == 6:
            a('s_mov_b32 exec_hi, 0xffff')
        a('buffer_load_dwordx4 v%d, %s, 0 offen nt lds' % (aGU[j], srd(S_WU if mu else S_WG)), fills='GU')
        if j == 6:
            a('s_mov_b32 exec_hi, -1')

    def set_tags():
        a('s_and_b32 s%d, s%d, 0x1fff1fff' % (sT, sT))
        a('s_add_u32 s%d, s%d, 0x10001' % (sT, sT))
        a('s_and_b32 s%d, s%d, 0x1fff1fff' % (sT, sT))
        a('s_or_b32 s%d, s%d, 0x20002000' % (sT, sT))
        a('s_lshr_b32 s%d, s%d, 16' % (sThi, sT))
        a('s_lshl_b32 s%d, s%d, 16' % (sTsh, sT))
        a('s_and_b32 s%d, s%d, 0xffff0000' % (sT0, sT))
        a('v_mov_b32 v%d, s%d' % (t[0], sTsh))
        a('v_mov_b32 v%d, s%d' % (t[1], sT0))
        a('v_and_b32 v%d, 1, v%d' % (t[2], vL))
        a('v_cmp_eq_u32 vcc, 0, v%d' % t[2])
        a('v_cndmask_b32 v%d, v%d, v%d, vcc' % (vTAB, t[1], t[0]))
        a('v_and_b32 v%d, 4, v%d' % (t[2], vL))
        a('v_cmp_eq_u32 vcc, 0, v%d' % t[2])
        a('v_cndmask_b32 v%d, v%d, v%d, vcc' % (vTD, t[1], t[0]))
        a('v_mov_b32 v%d, s%d' % (XG + 3, sT))
        a('v_mov_b32 v%d, s%d' % (ST + 3, sT))
        a('v_mov_b32 v%d, s%d' % (BST + 3, sT))

    DPP = ' row_mask:0xf bank_mask:0xf'

    def ror_steps(op, regs, first_src=None):
        out = []
        for k, sh in enumerate((8, 4, 2, 1)):
            grp = []
            for q, r in enumerate(regs):
                s = first_src[q] if (k == 0 and first_src) else r
                grp.append('%s_dpp v%d, v%d, v%d row_ror:%d%s' % (op, r, s, s, sh, DPP))
            out.append(grp)
        return out

    def stats_ops():
        o = ['v_add_f32 v%d, v%d, v%d' % (t[4], XC, XC + 1),
             'v_mul_f32 v%d, v%d, v%d' % (t[5], XC, XC),
             'v_add_f32 v%d, v%d, v%d' % (t[6], XC + 2, XC + 3),
             'v_fmac_f32 v%d, v%d, v%d' % (t[5], XC + 1, XC + 1),
             'v_add_f32 v%d, v%d, v%d' % (t[4], t[4], t[6]),
             'v_fmac_f32 v%d, v%d, v%d' % (t[5], XC + 2, XC + 2),
             'v_cndmask_b32 v%d, 0, v%d, s[%d:%d]' % (ST, t[4], sM9, sM9 + 1),
             'v_fmac_f32 v%d, v%d, v%d' % (t[5], XC + 3, XC + 3),
             'v_cndmask_b32 v%d, 0, v%d, s[%d:%d]' % (ST + 1, t[5], sM9, sM9 + 1)]
        for g in ror_steps('v_add_f32', [ST, ST + 1]):
            o += g
        return o

    def resid_ops():
        o = []
        for r in range(4):
            o.append('v_add_f32 v%d, v%d, v%d' % (XR + r, XC + r, vMP))
        o.append('v_cvt_pk_bf16_f32 v%d, v%d, v%d' % (XR + 1, XR, XR + 1))
        o.append('v_cvt_pk_bf16_f32 v%d, v%d, v%d' % (XR + 3, XR + 2, XR + 3))
        o.append('v_lshlrev_b32 v%d, 16, v%d' % (XR, XR + 1))
        o.append('v_lshlrev_b32 v%d, 16, v%d' % (XR + 2, XR + 3))
        o.append('v_and_b32 v%d, s%d, v%d' % (XR + 1, sHIM, XR + 1))
        o.append('v_and_b32 v%d, s%d, v%d' % (XR + 3, sHIM, XR + 3))
        return o

    def ln_ops(S):
        o = []
        for g in ror_steps('v_add_f32', [vE0, vE1], [S, S + 1]):
            o.append(g)
        o.append(['v_mul_f32 v%d, s%d, v%d' % (vDM, sINV, vE0),
                  'v_fma_f32 v%d, v%d, s%d, v%d' % (vRS, vE1, sINV, vEPS)])
        o.append(['v_fma_f32 v%d, -v%d, v%d, v%d' % (vRS, vDM, vDM, vRS)])
        o.append(['v_rsq_f32 v%d, v%d' % (vRS, vRS)])
        return o

    def newmean_ops():
        o = ['v_add_f32 v%d, v%d, v%d' % (vMP, vMP, vDM)]
        for r in range(4):
            o.append('v_sub_f32 v%d, v%d, v%d' % (CI + r, XR + r, vMP))
        return o

    def m16(d, A, B, C):
        a('v_mfma_f32_16x16x32_bf16 %s, %s, %s, %s' % (vr(d, 4), A, B, C))

    def m4(d, A, B, first, abid):
        a('v_mfma_f32_4x4x4_16b_bf16 %s, %s, %s, %s cbsz:4 abid:%d' % (vr(d, 4), A, B, '0' if first else vr(d, 4), abid))

    def chk_ab(acc, g, first):
        a('v_bitop3_b32 v%d, v%d, v%d, s%d bitop3:0x7e' % (t[0], g, g + 2, sT))
        a('v_bitop3_b32 v%d, v%d, v%d, s%d bitop3:0x7e' % (t[1], g + 1, g + 3, sThi))
        if first:
            a('v_or_b32 v%d, v%d, v%d' % (acc, t[0], t[1]))
        else:
            a('v_or3_b32 v%d, v%d, v%d, v%d' % (acc, t[0], t[1], acc))

    def chk_d(acc, g, h, first):
        a('v_bitop3_b32 v%d, v%d, v%d, s%d bitop3:0x7e' % (t[0], g + 1, h + 1, sTsh))
        a('v_bitop3_b32 v%d, v%d, v%d, s%d bitop3:0x7e' % (t[1], g + 3, h + 3, sT))
        if first:
            a('v_or_b32 v%d, v%d, v%d' % (acc, t[0], t[1]))
        else:
            a('v_or3_b32 v%d, v%d, v%d, v%d' % (acc, t[0], t[1], acc))

    a('s_cmp_ge_u32 s2, 256')
    a.br('s_cbranch_scc1', 'END', lambda c: False)
    if P['stamps']:
        a('s_memtime s[86:87]')
        a('s_memrealtime s[90:91]')
        nstamp[0] = 1
        names.append('start')
    a('s_load_dwordx16 s[4:19], s[0:1], 0')
    a('s_load_dwordx8 s[20:27], s[0:1], 64')
    a('v_lshrrev_b32 v%d, 6, v0' % t[0])
    a('v_and_b32 v%d, 63, v0' % vL)
    a('v_readfirstlane_b32 s%d, v%d' % (sW, t[0]))
    a('s_and_b32 s%d, s2, 7' % sT0)
    a('s_lshl_b32 s%d, s%d, 1' % (sT0, sT0))
    a('s_bfe_u32 s%d, s2, 0x10003' % sT1)
    a('s_add_u32 s%d, s%d, s%d' % (sG, sT0, sT1))
    a('s_lshr_b32 s%d, s2, 4' % sI)
    a('s_lshr_b32 s%d, s2, 3' % sROT)
    a('s_mov_b32 s%d, 0' % sLAY)
    a('v_lshrrev_b32 v%d, 4, v%d' % (vRow, vL))
    a('v_and_b32 v%d, 15, v%d' % (vN, vL))
    a('v_lshrrev_b32 v%d, 3, v%d' % (t[0], vL))
    a('v_and_b32 v%d, 7, v%d' % (t[1], vL))
    a('v_lshlrev_b32 v%d, 13, v%d' % (t[0], t[0]))
    a('v_lshl_add_u32 v%d, v%d, 4, v%d' % (t[0], t[1], t[0]))
    a('s_lshl_b32 s%d, s%d, 7' % (sT0, sW))
    a('v_add_u32 v%d, s%d, v%d' % (aWQ, sT0, t[0]))
    a('s_lshl_b32 s%d, s%d, 10' % (sT0, sW))
    a('v_lshl_add_u32 v%d, v%d, 8, s%d' % (t[0], vRow, sT0))
    a('v_xor_b32 v%d, v%d, v%d' % (t[1], vN, vRow))
    a('v_lshl_add_u32 v%d, v%d, 4, v%d' % (aK[0], t[1], t[0]))
    for j in (1, 2, 3):
        a('v_xor_b32 v%d, %d, v%d' % (aK[j], 64 * j, aK[0]))
    a('v_lshlrev_b32 v%d, 2, v%d' % (t[1], vRow))
    a('v_xor_b32 v%d, v%d, v%d' % (t[1], vN, t[1]))
    a('v_lshl_add_u32 v%d, v%d, 4, v%d' % (aV, t[1], t[0]))
    a('s_mul_i32 s%d, s%d, %d' % (sT0, sI, 36 * 8192))
    a('s_lshl_b32 s%d, s%d, 9' % (sT1, sG))
    a('s_add_u32 s%d, s%d, s%d' % (sT0, sT0, sT1))
    a('s_lshl_b32 s%d, s%d, 23' % (sT2, sG))
    a('s_lshl_b32 s%d, s%d, 16' % (sT3, sI))
    a('s_add_u32 s%d, s%d, s%d' % (sT2, sT2, sT3))
    a('s_add_u32 s%d, s%d, %d' % (sT2, sT2, 28672 * 256))
    a('s_mul_i32 s%d, s%d, 4608' % (sT1, sW))
    a('s_waitcnt lgkmcnt(0)')
    if P['stamps']:
        a('s_mov_b32 s%d, s90' % sR1)
        a('s_mov_b32 s%d, s86' % sR0)
    a('s_load_dword s%d, s[26:27], 0' % sE)
    mk_srd(S_WQ, 10, sT0, 35 * 8192 + 512)
    for k in range(5):
        a('s_add_u32 m0, s%d, %d' % (sT1, L_WQ + 1024 * k))
        a('s_mov_b32 s%d, %d' % (sT0, 65536 * k))
        if k == 4:
            a('s_mov_b32 exec_hi, 0')
        a('buffer_load_dwordx4 v%d, %s, s%d offen nt lds' % (aWQ, srd(S_WQ), sT0), fills='WQ')
        if k == 4:
            a('s_mov_b32 exec_hi, -1')
    mk_srd(S_K, 6, sT2, 65536)
    mk_srd(S_V, 8, sT2, 65536)
    mk_srd(S_X, 4, None, 1152)
    a('s_cmp_lg_u32 s%d, 3' % sW)
    a.br('s_cbranch_scc1', 'NOX', NW3)
    a('v_lshlrev_b32 v%d, 4, v%d' % (t[0], vL))
    a('s_mul_i32 s%d, s%d, 72' % (sT0, sI))
    a('v_lshl_add_u32 v%d, v%d, 3, s%d' % (t[1], vN, sT0))
    a('buffer_load_dwordx4 %s, v%d, %s, 0 offen' % (vr(G[0], 4), t[0], srd(S_X)))
    a('buffer_load_dwordx4 %s, v%d, %s, 0 offen offset:1024' % (vr(G[1], 4), t[0], srd(S_X)))
    a('buffer_load_dwordx2 %s, v%d, %s, 0 offen' % (vr(G[2], 2), t[1], srd(S_X)))
    a.label('NOX')
    if P['codepf']:
        a('s_getpc_b64 s[%d:%d]' % (sP, sP + 1))
        a.label('PCREF')
        a('s_lshl_b32 s%d, s%d, 12' % (sT0, sW))
        a('v_lshl_add_u32 v%d, v%d, 6, s%d' % (t[2], vL, sT0))
        a('v_min_u32 v%d, CODE_END-PCREF-4, v%d' % (t[2], t[2]))
        a('global_load_dword v%d, v%d, s[%d:%d]' % (vDUM, t[2], sP, sP + 1), dummy=1)
    wave16k()
    for j in range(P['k0']):
        kdma(j)
    a('s_mul_i32 s%d, s%d, %d' % (sT0, sG, 256 * 1152))
    a('s_mul_i32 s%d, s%d, 72' % (sT2, sI))
    a('s_and_b32 s%d, s%d, 0xfffffff0' % (sT2, sT2))
    a('s_add_u32 s%d, s%d, s%d' % (sT0, sT0, sT2))
    mk_srd(S_WO, 12, sT0, 255 * 1152 + 80)
    a('s_mul_i32 s%d, s%d, %d' % (sT0, sG, 288 * 1152))
    a('s_add_u32 s%d, s%d, s%d' % (sT0, sT0, sT2))
    mk_srd(S_WD, 20, sT0, 287 * 1152 + 80)
    a('s_mul_i32 s%d, s%d, %d' % (sT0, sI, 36 * 9216))
    a('s_mul_i32 s%d, s%d, 576' % (sT2, sG))
    a('s_add_u32 s%d, s%d, s%d' % (sT0, sT0, sT2))
    mk_srd(S_WG, 16, sT0, 35 * 9216 + 576)
    mk_srd(S_WU, 18, sT0, 35 * 9216 + 576)
    mk_srd(S_OUT, 22, None, 1152)
    WSZ = WS_SRD if (P['dump'] or P['stamps']) else WS_USED
    mk_srd(S_W, 26, None, WSZ)
    mk_srd(S_F, 26, None, 0)
    mk_srd(S_S, 26, None, WS_USED)
    a('s_mov_b32 s%d, 0x%x' % (sCQ, OFF_CQ - OFF_AD))
    a('s_mov_b32 s%d, 0x%x' % (sBD, OFF_BD - OFF_AD))
    a('s_mov_b32 s%d, 0x%x' % (sDS, OFF_DS - OFF_AS))
    a('s_mov_b32 s%d, 0x%x' % (sCG, OFF_CG - OFF_DD))
    a('s_mov_b32 s%d, 0' % sSLOT)
    a('s_mov_b32 s%d, 0x3e0293ee' % sC)
    a('s_mov_b32 s%d, 0x3ae38e39' % sINV)
    a('s_mov_b32 s%d, 0xffff0000' % sHIM)
    a('s_mov_b32 s%d, 200000' % sBUD)
    a('s_getreg_b32 s%d, hwreg(HW_REG_XCC_ID)' % sXCC)
    a('s_and_b32 s%d, s%d, 15' % (sXCC, sXCC))
    a('s_mov_b32 s%d, 0x01ff01ff' % sM9)
    a('s_mov_b32 s%d, 0x01ff01ff' % (sM9 + 1))
    a('v_mov_b32 v%d, 0x3727c5ac' % vEPS)
    a('v_mov_b32 v%d, 0x3f803f80' % ONE)
    a('v_mov_b32 v%d, 0x3f803f80' % (ONE + 1))
    a('v_mov_b32 v%d, 0' % (XG + 2))
    a('v_mov_b32 v%d, 0' % (BST + 2))
    a('v_mov_b32 v%d, s%d' % (ST + 2, sXCC))
    if P['stamps']:
        a('v_mov_b32 v%d, 0' % vTS)
        a('v_writelane_b32 v%d, s%d, 0' % (vTS, sR0))
        a('v_writelane_b32 v%d, s%d, 63' % (vTS, sR1))
    if P['dump'] or P['stamps']:
        a('s_lshl_b32 s%d, s2, 10' % sT0)
        a('v_lshl_add_u32 v%d, v0, 2, s%d' % (aDM, sT0))
    for q in range(4):
        a('v_cmp_eq_u32 vcc, %d, v%d' % (4 * q, vN))
        a('v_cndmask_b32 v%d, 0, -1, vcc' % t[0])
        a('v_and_b32 v%d, 0xffff0000, v%d' % (MASK4 + q, t[0]))
        a('v_and_b32 v%d, 0x3f800000, v%d' % (SEL4 + q, t[0]))

    def sel(dst, lo_n, hi_n):
        a('v_mov_b32 v%d, 0' % dst)
        for nn, val in ((lo_n, 0x3f80), (hi_n, 0x3f800000)):
            if nn is None:
                continue
            a('v_mov_b32 v%d, 0x%x' % (t[1], val))
            a('v_cmp_eq_u32 vcc, %d, v%d' % (nn, vN))
            a('v_cndmask_b32 v%d, v%d, v%d, vcc' % (dst, dst, t[1]))
    sel(SELX, 0, 1)
    sel(SELX + 1, 2, 3)
    sel(SELX + 2, None, None)
    sel(SELX + 3, None, None)
    sel(SELD, 0, 1)
    sel(SELD + 1, 8, None)
    sel(SELD + 2, 4, 5)
    sel(SELD + 3, 9, None)
    a('v_and_b32 v%d, 1, v%d' % (t[0], vL))
    a('v_cmp_eq_u32 vcc, 0, v%d' % t[0])
    a('v_mov_b32 v%d, 0x03020706' % t[1])
    a('v_mov_b32 v%d, 0x05040100' % t[2])
    a('v_cndmask_b32 v%d, v%d, v%d, vcc' % (vSELH, t[1], t[2]))
    a('v_mov_b32 v%d, 0x%x' % (t[7], OOB))
    a('v_lshrrev_b32 v%d, 2, v%d' % (t[0], vL))
    a('v_lshlrev_b32 v%d, 3, v%d' % (t[0], t[0]))
    a('v_add_u32 v%d, %d, v%d' % (aXQR, L_X, t[0]))
    a('v_and_b32 v%d, 1, v%d' % (t[1], vL))
    a('v_lshl_add_u32 v%d, v%d, 8, v%d' % (t[0], t[1], t[0]))
    a('v_add_u32 v%d, %d, v%d' % (aQR, L_Q, t[0]))
    a('s_lshl_b32 s%d, s%d, 14' % (sT0, sG))
    a('s_lshl_b32 s%d, s%d, 8' % (sT2, sW))
    a('s_add_u32 s%d, s%d, s%d' % (sT0, sT0, sT2))
    a('s_add_u32 s%d, s%d, 0x%x' % (sT0, sT0, OFF_AD))
    a('v_lshl_add_u32 v%d, v%d, 12, s%d' % (t[0], vRow, sT0))
    a('v_lshl_add_u32 v%d, v%d, 4, v%d' % (aAGET, vN, t[0]))
    a('s_lshl_b32 s%d, s%d, 10' % (sT3, sI))
    a('s_add_u32 s%d, s%d, s%d' % (sT0, sT0, sT3))
    a('v_lshl_add_u32 v%d, v%d, 2, s%d' % (aAPUB, vL, sT0))
    a('s_lshl_b32 s%d, s%d, 8' % (sT0, sG))
    a('s_add_u32 s%d, s%d, 0x%x' % (sT0, sT0, OFF_AS))
    a('v_lshl_add_u32 v%d, v%d, 4, s%d' % (aASGET, vN, sT0))
    a('s_lshl_b32 s%d, s%d, 4' % (sT3, sI))
    a('s_add_u32 s%d, s%d, s%d' % (sT0, sT0, sT3))
    a('v_mov_b32 v%d, s%d' % (t[0], sT0))
    a('v_cmp_eq_u32 vcc, 192, v0')
    a('v_cndmask_b32 v%d, v%d, v%d, vcc' % (aASPUB, t[7], t[0]))
    a('s_lshl_b32 s%d, s%d, 9' % (sT0, sG))
    a('s_lshr_b32 s%d, s%d, 1' % (sT2, sW))
    a('s_lshl_b32 s%d, s%d, 8' % (sT2, sT2))
    a('s_add_u32 s%d, s%d, s%d' % (sT0, sT0, sT2))
    a('s_add_u32 s%d, s%d, 0x%x' % (sT0, sT0, OFF_BS))
    a('v_lshl_add_u32 v%d, v%d, 2, v%d' % (t[0], vRow, vN))
    a('v_and_b32 v%d, 15, v%d' % (t[0], t[0]))
    a('v_lshl_add_u32 v%d, v%d, 4, s%d' % (aBSGET, t[0], sT0))
    a('s_add_u32 s%d, s%d, s%d' % (sT0, sT0, sT3))
    a('v_mov_b32 v%d, s%d' % (t[0], sT0))
    a('v_and_b32 v%d, 127, v0' % t[1])
    a('v_cmp_eq_u32 vcc, 0, v%d' % t[1])
    a('v_cndmask_b32 v%d, v%d, v%d, vcc' % (aBSPUB, t[7], t[0]))
    a('s_lshl_b32 s%d, s%d, 7' % (sT0, sW))
    a('s_add_u32 s%d, s%d, %d' % (sT0, sT0, L_Q))
    a('v_lshl_add_u32 v%d, v%d, 2, v%d' % (t[0], vN, vRow))
    a('v_lshl_add_u32 v%d, v%d, 1, s%d' % (aQW, t[0], sT0))
    a('s_lshl_b32 s%d, s%d, 8' % (sT0, sW))
    a('s_add_u32 s%d, s%d, %d' % (sT0, sT0, L_PO))
    a('v_lshl_add_u32 v%d, v%d, 2, s%d' % (aPOW, vL, sT0))
    a('s_lshl_b32 s%d, s%d, 10' % (sT0, sW))
    a('s_add_u32 s%d, s%d, %d' % (sT0, sT0, L_PO))
    a('v_lshl_add_u32 v%d, v%d, 2, s%d' % (aPOR, vL, sT0))
    a('s_mov_b32 s%d, %d' % (sT2, L_DUM))
    a('v_lshl_add_u32 v%d, v%d, 4, s%d' % (t[6], vL, sT2))
    a('s_lshl_b32 s%d, s%d, 4' % (sT0, sW))
    a('s_add_u32 s%d, s%d, %d' % (sT0, sT0, L_PS))
    a('v_mov_b32 v%d, s%d' % (t[0], sT0))
    a('v_cmp_eq_u32 vcc, 63, v%d' % vL)
    a('v_cndmask_b32 v%d, v%d, v%d, vcc' % (aPSW, t[6], t[0]))
    a('s_lshr_b32 s%d, s%d, 1' % (sT0, sW))
    a('s_lshl_b32 s%d, s%d, 3' % (sT0, sT0))
    a('s_add_u32 s%d, s%d, %d' % (sT0, sT0, L_PS))
    a('v_mov_b32 v%d, s%d' % (aPSR, sT0))
    a('s_mov_b32 s%d, %d' % (sT0, L_O))
    a('v_lshl_add_u32 v%d, v%d, 4, s%d' % (aOR, vRow, sT0))
    a('s_lshl_b32 s%d, s%d, 12' % (sT0, sI))
    a('s_add_u32 s%d, s%d, 0x%x' % (sT0, sT0, OFF_X))
    a('v_min_u32 v%d, 8, v%d' % (t[0], vN))
    a('v_mul_u32_u24 v%d, 43, v%d' % (t[1], t[0]))
    a('v_lshrrev_b32 v%d, 7, v%d' % (t[1], t[1]))
    a('v_add_u32 v%d, v%d, v%d' % (t[0], t[0], t[1]))
    a('v_lshl_add_u32 v%d, v%d, 10, s%d' % (t[1], vRow, sT0))
    a('v_lshl_add_u32 v%d, v%d, 4, v%d' % (aXGET, t[0], t[1]))
    a('s_lshl_b32 s%d, s%d, 8' % (sT2, sG))
    a('s_add_u32 s%d, s%d, s%d' % (sT0, sT0, sT2))
    a('s_lshl_b32 s%d, s%d, 6' % (sT2, sW))
    a('s_add_u32 s%d, s%d, s%d' % (sT2, sT0, sT2))
    a('v_lshl_add_u32 v%d, v%d, 4, s%d' % (t[0], vRow, sT2))
    a('s_mov_b32 s%d, 0x00010001' % sP)
    a('s_mov_b32 s%d, 0x00000001' % (sP + 1))
    a('v_cndmask_b32 v%d, v%d, v%d, s[%d:%d]' % (aXPUB, t[7], t[0], sP, sP + 1))
    if P['prewrite']:
        a('v_lshl_add_u32 v%d, v%d, 16, s%d' % (t[0], vRow, sT0))
        a('v_lshl_add_u32 v%d, v%d, 4, v%d' % (aTR2, vN, t[0]))
    a('s_mov_b32 s%d, %d' % (sT0, L_X))
    a('v_lshl_add_u32 v%d, v%d, 3, s%d' % (t[0], vN, sT0))
    a('v_cmp_gt_u32 vcc, 16, v%d' % vL)
    a('v_cndmask_b32 v%d, v%d, v%d, vcc' % (aXQW, t[6], t[0]))
    a('s_mul_i32 s%d, s%d, 72' % (sT0, sI))
    a('v_lshl_add_u32 v%d, v%d, 3, s%d' % (t[0], vN, sT0))
    a('v_cmp_gt_u32 vcc, 9, v%d' % vL)
    a('v_cndmask_b32 v%d, v%d, v%d, vcc' % (aOUT, t[7], t[0]))
    a('s_mul_i32 s%d, s%d, %d' % (sT0, sG, 16 * 1536))
    a('s_add_u32 s%d, s%d, 0x%x' % (sT0, sT0, OFF_DD))
    a('s_mul_i32 s%d, s%d, 1536' % (sT2, sI))
    a('s_lshl_b32 s%d, s%d, 9' % (sT3, sW))
    a('s_add_u32 s%d, s%d, s%d' % (sT2, sT2, sT3))
    a('s_add_u32 s%d, s%d, s%d' % (sT2, sT2, sT0))
    a('v_lshrrev_b32 v%d, 3, v%d' % (t[0], vL))
    a('v_lshl_add_u32 v%d, v%d, 6, s%d' % (t[0], t[0], sT2))
    a('v_and_b32 v%d, 3, v%d' % (t[1], vL))
    a('v_lshl_add_u32 v%d, v%d, 4, v%d' % (t[0], t[1], t[0]))
    a('v_and_b32 v%d, 4, v%d' % (t[1], vL))
    a('v_lshl_add_u32 v%d, v%d, 1, v%d' % (aDPUB, t[1], t[0]))
    a('s_mul_i32 s%d, s%d, 384' % (sT2, sW))
    a('s_add_u32 s%d, s%d, s%d' % (sT0, sT0, sT2))
    a('v_mul_u32_u24 v%d, 6144, v%d' % (t[0], vRow))
    a('v_add_u32 v%d, s%d, v%d' % (t[0], sT0, t[0]))
    a('v_lshl_add_u32 v%d, v%d, 4, v%d' % (aDG1, vN, t[0]))
    a('v_add_u32 v%d, 3072, v%d' % (aDG1b, aDG1))
    a('v_lshrrev_b32 v%d, 3, v%d' % (t[1], vN))
    a('v_mul_u32_u24 v%d, 3072, v%d' % (t[1], t[1]))
    a('v_and_b32 v%d, 7, v%d' % (t[2], vN))
    a('v_lshl_add_u32 v%d, v%d, 4, v%d' % (t[1], t[2], t[1]))
    a('v_add_u32 v%d, v%d, v%d' % (t[0], t[0], t[1]))
    a('v_add_u32 v%d, 256, v%d' % (aDG2, t[0]))
    a('s_mul_i32 s%d, s%d, 24' % (sT0, sW))
    for dst, base, src in ((aHW1, 0, vN), (aHW2, 16, t[2])):
        a('v_add_u32 v%d, s%d, v%d' % (t[0], sT0, src))
        if base:
            a('v_add_u32 v%d, %d, v%d' % (t[0], base, t[0]))
        a('v_lshrrev_b32 v%d, 5, v%d' % (t[1], t[0]))
        a('v_mul_u32_u24 v%d, 96, v%d' % (t[1], t[1]))
        a('v_and_b32 v%d, 31, v%d' % (t[0], t[0]))
        a('v_and_b32 v%d, 28, v%d' % (t[3], t[0]))
        a('v_add_u32 v%d, v%d, v%d' % (t[3], t[3], t[0]))
        a('v_lshl_add_u32 v%d, v%d, 2, v%d' % (t[3], vRow, t[3]))
        a('v_add_u32 v%d, 64, v%d' % (t[0], t[0]))
        a('v_cmp_eq_u32 vcc, 2, v%d' % vRow)
        a('v_cndmask_b32 v%d, v%d, v%d, vcc' % (t[0], t[3], t[0]))
        a('v_add_u32 v%d, v%d, v%d' % (t[0], t[0], t[1]))
        a('v_lshlrev_b32 v%d, 1, v%d' % (t[0], t[0]))
        a('v_add_u32 v%d, %d, v%d' % (t[0], L_H, t[0]))
        a('v_cmp_eq_u32 vcc, 3, v%d' % vRow)
        a('v_cndmask_b32 v%d, v%d, v%d, vcc' % (dst, t[0], t[6]))
    a('s_mul_i32 s%d, s%d, 192' % (sT0, sW))
    for j in range(7):
        a('v_add_u32 v%d, %d, v%d' % (t[0], 64 * j, vL))
        a('v_mul_u32_u24 v%d, 43691, v%d' % (t[1], t[0]))
        a('v_lshrrev_b32 v%d, 19, v%d' % (t[1], t[1]))
        a('v_mul_u32_u24 v%d, 9024, v%d' % (t[1], t[1]))
        a('v_lshl_add_u32 v%d, v%d, 4, v%d' % (t[1], t[0], t[1]))
        a('v_add_u32 v%d, s%d, v%d' % (aGU[j], sT0, t[1]))
    a('s_waitcnt lgkmcnt(0)')
    a('s_mov_b32 s%d, s%d' % (sT, sE))
    set_tags()
    stamp('prologue')
    a('s_cmp_lg_u32 s%d, 3' % sW)
    a.br('s_cbranch_scc1', 'Q_ENTRY', NW3)
    nyoung = P['k0'] + (1 if P['codepf'] else 0)
    a('s_waitcnt vmcnt(%d)' % nyoung)
    a('v_mov_b32 v%d, 0' % t[0])
    for q in range(4):
        a('v_dot2c_f32_bf16 v%d, v%d, v%d' % (t[0], G[0] + q, ONE))
    for q in range(4):
        a('v_dot2c_f32_bf16 v%d, v%d, v%d' % (t[0], G[1] + q, ONE))
    for g in ror_steps('v_add_f32', [t[0]]):
        a('\n'.join(g))
    a('v_add_f32_dpp v%d, v%d, v%d row_bcast:15 row_mask:0xa bank_mask:0xf' % (t[0], t[0], t[0]))
    a('v_add_f32_dpp v%d, v%d, v%d row_bcast:31 row_mask:0xc bank_mask:0xf' % (t[0], t[0], t[0]))
    a('v_readlane_b32 s%d, v%d, 63' % (sT0, t[0]))
    a('v_mov_b32 v%d, s%d' % (t[0], sT0))
    a('v_mul_f32 v%d, s%d, v%d' % (vMP, sINV, t[0]))
    a('v_lshlrev_b32 v%d, 16, v%d' % (XC, G[2]))
    a('v_and_b32 v%d, s%d, v%d' % (XC + 1, sHIM, G[2]))
    a('v_lshlrev_b32 v%d, 16, v%d' % (XC + 2, G[2] + 1))
    a('v_and_b32 v%d, s%d, v%d' % (XC + 3, sHIM, G[2] + 1))
    for r in range(4):
        a('v_sub_f32 v%d, v%d, v%d' % (XC + r, XC + r, vMP))
    if P['prewrite']:
        for r in range(4):
            a('v_mov_b32 v%d, 0' % (G[3] + r))
        a('buffer_store_dwordx4 %s, v%d, %s, 0 offen sc1' % (vr(G[3], 4), aTR2, srd(S_W)))
    a.jmp('XQ_WRITE_A')

    a.label('Q_ENTRY')
    a('s_barrier')
    a('ds_read_b64 %s, v%d' % (vr(XQ, 2), aXQR))
    lay_test()
    a.br('s_cbranch_scc1', 'Q_GO', L2)
    a('s_waitcnt vmcnt(%d)' % nyoung)
    a('v_lshrrev_b32 v%d, 2, v%d' % (t[0], vN))
    a('v_lshlrev_b32 v%d, 7, v%d' % (t[0], t[0]))
    a('v_lshl_add_u32 v%d, v%d, 5, v%d' % (t[0], vRow, t[0]))
    a('v_and_b32 v%d, 3, v%d' % (t[1], vL))
    a('v_lshl_add_u32 v%d, v%d, 3, v%d' % (t[0], t[1], t[0]))
    a('s_mul_i32 s%d, s%d, 4608' % (sT0, sW))
    a('s_add_u32 s%d, s%d, %d' % (sT0, sT0, L_WQ))
    a('v_add_u32 v%d, s%d, v%d' % (aTR, sT0, t[0]))
    for j in range(9):
        a('ds_read_b64_tr_b16 %s, v%d offset:%d' % (vr(WQ + 2 * j, 2), aTR, 512 * j), needs=('WQ',))
    a('s_waitcnt lgkmcnt(0)')
    for j in range(9):
        m4(ACC[j % 3], vr(ONE, 2), vr(WQ + 2 * j, 2), j < 3, 0)
    a('v_add_f32 v%d, v%d, v%d' % (t[0], ACC[0], ACC[1]))
    a('v_add_f32 v%d, v%d, v%d' % (t[0], t[0], ACC[2]))
    a('v_cvt_pk_bf16_f32 v%d, v%d, v%d' % (t[3], vTAB, t[0]))
    pub('buffer_store_dword', 'v%d' % t[3], aAPUB, 's%d' % sCQ)
    a.label('Q_GO')
    so = stats_ops()
    a('\n'.join(so[:9]))
    a('s_waitcnt lgkmcnt(0)')
    rest = so[9:]
    for j in range(9):
        m4(ACC[j % 3], vr(XQ, 2), vr(WQ + 2 * j, 2), j < 3, j)
        if j < 8:
            a(rest[j])
    pub('buffer_store_dwordx4', vr(ST, 4), aASPUB, '0')
    a('v_add_f32 v%d, v%d, v%d' % (t[0], ACC[0], ACC[1]))
    a('v_add_f32 v%d, v%d, v%d' % (t[0], t[0], ACC[2]))
    a('v_cvt_pk_bf16_f32 v%d, v%d, v%d' % (t[2], vTAB, t[0]))
    pub('buffer_store_dword', 'v%d' % t[2], aAPUB, '0')
    dump(0, t[0])
    stamp('A pub')
    a('\n'.join(resid_ops()))
    lay_test()
    a.br('s_cbranch_scc1', 'GA_PRE', L2)
    if P['pretouch']:
        a('v_subrev_u32 v%d, 8, v%d' % (t[0], vL))
        a('v_cmp_gt_u32 vcc, 20, v%d' % vL)
        a('v_mov_b32 v%d, %d' % (t[1], OFF_CG - OFF_DD - 12 * 128))
        a('v_cndmask_b32 v%d, v%d, 0, vcc' % (t[1], t[1]))
        a('v_lshl_add_u32 v%d, v%d, 7, v%d' % (t[0], t[0], t[1]))
        a('s_lshl_b32 s%d, s%d, 4' % (sT0, sG))
        a('s_add_u32 s%d, s%d, s%d' % (sT0, sT0, sI))
        a('s_mul_i32 s%d, s%d, 1536' % (sT2, sT0))
        a('s_add_u32 s%d, s%d, 0x%x' % (sT2, sT2, OFF_DD))
        a('v_add_u32 v%d, s%d, v%d' % (t[0], sT2, t[0]))
        a('s_lshl_b32 s%d, s%d, 10' % (sT2, sT0))
        a('s_add_u32 s%d, s%d, 0x%x' % (sT2, sT2, OFF_BD))
        a('v_lshl_add_u32 v%d, v%d, 7, s%d' % (t[1], vL, sT2))
        a('v_cmp_gt_u32 vcc, 8, v%d' % vL)
        a('v_cndmask_b32 v%d, v%d, v%d, vcc' % (t[0], t[0], t[1]))
        a('v_add_u32 v%d, s%d, v%d' % (t[1], sDS, aASGET))
        a('v_cmp_gt_u32 vcc, 32, v%d' % vL)
        a('v_cndmask_b32 v%d, v%d, v%d, vcc' % (t[0], t[1], t[0]))
        a('v_cmp_gt_u32 vcc, 48, v%d' % vL)
        a('v_cndmask_b32 v%d, v%d, v%d, vcc' % (t[0], aBSGET, t[0]))
        a('buffer_load_dword v%d, v%d, %s, 0 offen sc1' % (vDUM, t[0], srd(S_W)), dummy=1)
    wave16k()
    for j in range(P['k0'], 16):
        kdma(j)
    a.label('GCQ_ISSUE')
    for q in range(4):
        gload(G2[q], aAGET, 's%d' % sCQ, 1024 * q)
    gload(G[4], aASGET, '0')
    for q in range(4):
        gload(G[q], aAGET, '0', 1024 * q)
    a('s_cmp_eq_u32 s%d, 1' % sSLOT)
    a.br('s_cbranch_scc1', 'GCQ_AGAIN', lambda c: c.get('_vhead', False))
    a.act(lambda c: c.__setitem__('_vhead', True))
    a('s_mov_b32 s%d, 1' % sSLOT)
    for j in range(P['v0']):
        vdma(j)
    a('s_waitcnt vmcnt(%d)' % (P['v0'] + 9))
    a('v_lshlrev_b32 v%d, 8, v%d' % (t[0], vL))
    a('v_lshl_add_u32 v%d, v%d, 4, v%d' % (t[0], vN, t[0]))
    a('v_add_u32 v%d, s%d, v%d' % (aTR, sT1, t[0]))
    for p in range(16):
        a('v_xor_b32 v%d, %d, v%d' % (t[p & 1], 16 * p, aTR))
        a('ds_read_b128 %s, v%d' % (ar(A_K + 4 * p, 4), t[p & 1]), needs=('K',))
    a('s_waitcnt vmcnt(%d)' % P['v0'])
    a.jmp('GCQ_CHECK')
    a.label('GCQ_AGAIN')
    a('s_waitcnt vmcnt(0)')
    a.label('GCQ_CHECK')
    for q in range(4):
        m16(ACC[1], vr(SEL4, 4), vr(G2[q], 4), '0' if q == 0 else vr(ACC[1], 4))
        chk_ab(vE2, G2[q], q == 0)
    a('v_cmp_ne_u16 vcc, 0, v%d' % vE2)
    a('s_cmp_lg_u64 vcc, 0')
    retry('CQ', 'GCQ_ISSUE')
    a('v_mov_b32 v%d, v%d' % (CSQ, ACC[1]))
    a('s_mov_b32 s%d, 0' % sSLOT)

    def a_reduce(waits):
        lo = ln_ops(G[4])
        a('v_cmp_ne_u32 s[%d:%d], s%d, v%d' % (sP, sP + 1, sT, G[4] + 3))
        a('\n'.join(lo[0]))
        for q in range(4):
            if waits:
                a('s_waitcnt vmcnt(%d)' % (3 - q))
            m16(ACC[0], vr(SEL4, 4), vr(G[q], 4), '0' if q == 0 else vr(ACC[0], 4))
            chk_ab(vE2, G[q], q == 0)
            a('\n'.join(lo[1 + q]))
        a('v_cmp_ne_u16 vcc, 0, v%d' % vE2)
        a('\n'.join(lo[5]))
        a('s_or_b64 vcc, vcc, s[%d:%d]' % (sP, sP + 1))
        return lo
    a_reduce(False)
    a.jmp('GA_CHECK')
    a.label('GA_PRE')
    if P['ackwait']:
        a('s_waitcnt vmcnt(0)')
    a.label('GA_ISSUE')
    gload(G[4], aASGET, '0')
    for q in range(4):
        gload(G[q], aAGET, '0', 1024 * q)
    a('s_waitcnt vmcnt(4)')
    lo = a_reduce(True)
    a.label('GA_CHECK')
    retry('A', 'GA_ISSUE')
    a('\n'.join(lo[6]))
    a('v_fma_f32 v%d, -v%d, v%d, v%d' % (t[0], vDM, CSQ, ACC[0]))
    a('v_mul_f32 v%d, v%d, v%d' % (t[0], t[0], vRS))
    a('v_cvt_pk_bf16_f32 v%d, v%d, v%d' % (t[1], t[0], t[0]))
    a('ds_write_b16 v%d, v%d' % (aQW, t[1]))
    dump(1, t[0])
    a('s_waitcnt lgkmcnt(0)')
    a('s_barrier')
    a('ds_read_b64 %s, v%d' % (vr(QA, 2), aQR))
    a('ds_read_b64 %s, v%d offset:128' % (vr(QA + 2, 2), aQR))
    stamp('q ready')
    a('\n'.join(newmean_ops()))
    lay_test()
    a.br('s_cbranch_scc1', 'S_GO', L2)
    a('v_cmp_ne_u32 vcc, s%d, v%d' % (sXCC, G[4] + 2))
    a('s_cmp_eq_u64 vcc, 0')
    if P['forceslow']:
        a('s_cmp_eq_u32 s%d, 77' % sW)
    a('s_cselect_b32 s%d, 0x%x, 0' % (S_F + 2, WS_USED))
    a('s_cselect_b32 s%d, 0, 0x%x' % (S_S + 2, WS_USED))
    wave16k()
    for j in range(P['v0'], 16):
        vdma(j)
    a.label('S_GO')
    a('s_waitcnt lgkmcnt(0)')
    for j in range(32):
        m4(ACC[j % 3], vr(QA + 2 * (j >> 4), 2), ar(A_K + 2 * j, 2), j < 3, j & 15)
    a('v_pk_add_f32 %s, %s, %s' % (vr(Y, 2), vr(ACC[2], 2), vr(ACC[0], 2)))
    a('v_pk_add_f32 %s, %s, %s' % (vr(Y, 2), vr(Y, 2), vr(ACC[1], 2)))
    a('v_mul_f32 v%d, s%d, v%d' % (Y, sC, Y))
    a('v_mul_f32 v%d, s%d, v%d' % (Y + 1, sC, Y + 1))
    dump(2, Y)
    for g in ror_steps('v_max_f32', [PSV, PSV + 2], [Y, Y + 1]):
        a('\n'.join(g))
    for bc, rm in ((15, '0xa'), (31, '0xc')):
        for r in (PSV, PSV + 2):
            a('v_max_f32_dpp v%d, v%d, v%d row_bcast:%d row_mask:%s bank_mask:0xf' % (r, r, r, bc, rm))
    a('v_ceil_f32 v%d, v%d' % (PSV, PSV))
    a('v_ceil_f32 v%d, v%d' % (PSV + 2, PSV + 2))
    a('v_readlane_b32 s%d, v%d, 63' % (sR0, PSV))
    a('v_readlane_b32 s%d, v%d, 63' % (sR1, PSV + 2))
    a('v_subrev_f32 v%d, s%d, v%d' % (Y, sR0, Y))
    a('v_subrev_f32 v%d, s%d, v%d' % (Y + 1, sR1, Y + 1))
    a('v_exp_f32 v%d, v%d' % (Y, Y))
    a('v_exp_f32 v%d, v%d' % (Y + 1, Y + 1))
    a('v_cvt_pk_bf16_f32 v%d, v%d, v%d' % (t[0], Y, Y + 1))
    a('v_mov_b32_dpp v%d, v%d quad_perm:[1,0,3,2]%s' % (t[1], t[0], DPP))
    a('v_perm_b32 v%d, v%d, v%d, v%d' % (PA, t[1], t[0], vSELH))
    a('v_mov_b32_dpp v%d, v%d quad_perm:[2,3,2,3]%s' % (PA + 1, PA, DPP))
    stamp('p ready')
    lay_test()
    a.br('s_cbranch_scc1', 'PV_GO', L2)
    a('s_mov_b32 s%d, s%d' % (sT2, sW))
    for k in range(5):
        tall_dma(S_WO, L_WO, sT2, 4 * k, 'WO')
    n3 = 5
    if P['gu3']:
        a('s_cmp_eq_u32 s%d, 3' % sW)
        a.br('s_cbranch_scc1', 'NOGU3', W3)
        a('s_mul_i32 s%d, s%d, 13824' % (sT2, sW))
        for k in range(P['gu3']):
            gudma(k)
        a.label('NOGU3')
    a('v_lshrrev_b32 v%d, 2, v%d' % (t[0], vN))
    a('v_lshlrev_b32 v%d, 2, v%d' % (t[1], t[0]))
    a('v_bfe_u32 v%d, v%d, 1, 1' % (t[2], vL))
    a('v_lshl_add_u32 v%d, v%d, 1, v%d' % (t[2], vRow, t[2]))
    a('v_xor_b32 v%d, v%d, v%d' % (t[2], t[2], t[1]))
    a('v_lshlrev_b32 v%d, 8, v%d' % (t[0], t[0]))
    a('v_lshl_add_u32 v%d, v%d, 4, v%d' % (t[0], t[2], t[0]))
    a('v_and_b32 v%d, 1, v%d' % (t[1], vL))
    a('v_lshl_add_u32 v%d, v%d, 3, v%d' % (t[0], t[1], t[0]))
    wave16k()
    a('s_add_u32 s%d, s%d, %d' % (sT1, sT1, L_V))
    a('v_add_u32 v%d, s%d, v%d' % (aTR, sT1, t[0]))
    a('v_xor_b32 v%d, 128, v%d' % (aTR2, aTR))
    for grp in range(4):
        if P['gu3']:
            a('s_cmp_eq_u32 s%d, 3' % sW)
            a.br('s_cbranch_scc1', 'VW3_%d' % grp, W3)
            a('s_waitcnt vmcnt(%d)' % (n3 + P['gu3'] + 12 - 4 * grp))
            a.jmp('VW_%d' % grp)
            a.label('VW3_%d' % grp)
        a('s_waitcnt vmcnt(%d)' % (n3 + 12 - 4 * grp))
        a.label('VW_%d' % grp)
        for b in range(4 * grp, 4 * grp + 4):
            for eta in range(2):
                a('ds_read_b64_tr_b16 %s, v%d offset:%d' % (ar(A_V + 4 * b + 2 * eta, 2), aTR2 if eta else aTR, 1024 * b),
                  needs=('V%d' % grp,))
    a('s_waitcnt lgkmcnt(0)')
    a.label('PV_GO')
    ls = []
    for g in ror_steps('v_add_f32', [PSV + 1, PSV + 3], [Y, Y + 1]):
        ls += g
    for bc, rm in ((15, '0xa'), (31, '0xc')):
        for r in (PSV + 1, PSV + 3):
            ls.append('v_add_f32_dpp v%d, v%d, v%d row_bcast:%d row_mask:%s bank_mask:0xf' % (r, r, r, bc, rm))
    k = 0
    for b in range(16):
        for eta in range(2):
            m4(ACC[2 * (b & 1) + eta], vr(PA, 2), ar(A_V + 4 * b + 2 * eta, 2), b < 2, b)
            if k < len(ls):
                a(ls[k])
                k += 1
    a('ds_write_b128 v%d, %s' % (aPSW, vr(PSV, 4)))
    a('v_pk_add_f32 %s, %s, %s' % (vr(PO, 2), vr(ACC[0], 2), vr(ACC[2], 2)))
    a('v_pk_add_f32 %s, %s, %s' % (vr(PO + 2, 2), vr(ACC[1], 2), vr(ACC[3], 2)))
    a('ds_write2st64_b32 v%d, v%d, v%d offset0:0 offset1:8' % (aPOW, PO, PO + 1))
    a('ds_write2st64_b32 v%d, v%d, v%d offset0:4 offset1:12' % (aPOW, PO + 2, PO + 3))
    a('s_waitcnt lgkmcnt(0)')
    a('s_barrier')
    a('ds_read2_b64 %s, v%d offset0:0 offset1:2' % (vr(PS, 4), aPSR))
    a('ds_read2_b64 %s, v%d offset0:4 offset1:6' % (vr(PS + 4, 4), aPSR))
    a('ds_read2st64_b32 %s, v%d offset0:0 offset1:1' % (vr(PO, 2), aPOR))
    a('ds_read2st64_b32 %s, v%d offset0:2 offset1:3' % (vr(PO + 2, 2), aPOR))
    a('s_waitcnt lgkmcnt(2)')
    a('v_max3_f32 v%d, v%d, v%d, v%d' % (BST, PS, PS + 2, PS + 4))
    a('v_max_f32 v%d, v%d, v%d' % (BST, BST, PS + 6))
    for q in range(4):
        a('v_sub_f32 v%d, v%d, v%d' % (PS + 2 * q, PS + 2 * q, BST))
    for q in range(4):
        a('v_exp_f32 v%d, v%d' % (PS + 2 * q, PS + 2 * q))
    a('s_waitcnt lgkmcnt(0)')
    a('v_mul_f32 v%d, v%d, v%d' % (t[0], PS, PO))
    for q in range(1, 4):
        a('v_fmac_f32 v%d, v%d, v%d' % (t[0], PS + 2 * q, PO + q))
    a('v_cvt_pk_bf16_f32 v%d, v%d, v%d' % (t[2], vTAB, t[0]))
    pub('buffer_store_dword', 'v%d' % t[2], aAPUB, 's%d' % sBD)
    a('v_mul_f32 v%d, v%d, v%d' % (BST + 1, PS, PS + 1))
    for q in range(1, 4):
        a('v_fmac_f32 v%d, v%d, v%d' % (BST + 1, PS + 2 * q, PS + 2 * q + 1))
    pub('buffer_store_dwordx4', vr(BST, 4), aBSPUB, '0')
    dump(3, t[0])
    stamp('B pub')
    if P['ackwait']:
        a('s_waitcnt vmcnt(0)')
    a.label('GB_ISSUE')
    gload(G[4], aBSGET, '0')
    for q in range(4):
        gload(G[q], aAGET, 's%d' % sBD, 1024 * q)
    a('s_waitcnt vmcnt(4)')
    a('v_cmp_ne_u32 s[%d:%d], s%d, v%d' % (sP, sP + 1, sT, G[4] + 3))
    for g in ror_steps('v_max_f32', [vE0], [G[4]]):
        a('\n'.join(g))
    a('v_sub_f32 v%d, v%d, v%d' % (vE0, G[4], vE0))
    a('v_exp_f32 v%d, v%d' % (vE0, vE0))
    a('v_mul_f32 v%d, v%d, v%d' % (vE1, vE0, G[4] + 1))
    lsum = [g[0] for g in ror_steps('v_add_f32', [vE1])]
    for q in range(4):
        for d in range(4):
            a('v_and_b32_dpp v%d, v%d, v%d row_newbcast:%d%s' % (AW[q] + d, vE0, MASK4 + d, q, DPP))
        a(lsum[q])
        a('s_waitcnt vmcnt(%d)' % (3 - q))
        chk_ab(vE2, G[q], q == 0)
        m16(ACC[0], vr(AW[q], 4), vr(G[q], 4), '0' if q == 0 else vr(ACC[0], 4))
    a('v_cmp_ne_u16 vcc, 0, v%d' % vE2)
    a('v_rcp_f32 v%d, v%d' % (vE1, vE1))
    a('s_or_b64 vcc, vcc, s[%d:%d]' % (sP, sP + 1))
    retry('B', 'GB_ISSUE')
    a('v_mul_f32 v%d, v%d, v%d' % (t[0], ACC[0], vE1))
    a('v_cvt_pk_bf16_f32 v%d, v%d, v%d' % (t[1], t[0], t[0]))
    a('ds_write_b16 v%d, v%d offset:%d' % (aQW, t[1], L_O - L_Q))
    dump(4, t[0])
    a('s_waitcnt lgkmcnt(0)')
    a('s_barrier', needs=('WO',))
    stamp('o ready')
    a('s_cmp_eq_u32 s%d, 3' % sW)
    a.br('s_cbranch_scc1', 'W3_C', W3)

    def tall_addr(region):
        a('v_lshrrev_b32 v%d, 2, v%d' % (t[0], vN))
        a('v_lshl_add_u32 v%d, v%d, 3, v%d' % (t[0], vRow, t[0]))
        a('v_mul_u32_u24 v%d, 80, v%d' % (t[0], t[0]))
        a('v_and_b32 v%d, 3, v%d' % (t[1], vL))
        a('v_lshl_add_u32 v%d, v%d, 3, v%d' % (t[0], t[1], t[0]))
        a('s_and_b32 s%d, s%d, 1' % (sT0, sI))
        a('s_lshl_b32 s%d, s%d, 3' % (sT0, sT0))
        a('s_mul_i32 s%d, s%d, 24' % (sT3, sW))
        a('s_add_u32 s%d, s%d, s%d' % (sT0, sT0, sT3))
        a('s_add_u32 s%d, s%d, %d' % (sT0, sT0, region))
        a('v_add_u32 v%d, s%d, v%d' % (aTR, sT0, t[0]))

    def tall_stage(nk, AB, ldsoff):
        for k in range(nk):
            a('s_waitcnt lgkmcnt(%d)' % (nk - 1 - k))
            m16(ACC[0], ar(AB + 4 * k, 4), vr(OP + 4 * k, 4), '0' if k == 0 else vr(ACC[0], 4))
        a('v_cvt_pk_bf16_f32 v%d, v%d, v%d' % (XG, ACC[0], ACC[0] + 1))
        a('v_cvt_pk_bf16_f32 v%d, v%d, v%d' % (XG + 1, ACC[0] + 2, ACC[0] + 3))
        a('buffer_store_dwordx4 %s, v%d, %s, s%d offen sc1' % (vr(XG, 4), aXPUB, srd(S_W), sSLOT))

    lay_test()
    a.br('s_cbranch_scc1', 'O_GO', L2)
    a('s_mul_i32 s%d, s%d, 13824' % (sT2, sW))
    for k in range(P['gu3'], P['gu3'] + P['gu4']):
        gudma(k)
    tall_addr(L_WO)
    for k in range(8):
        for u in range(2):
            a('ds_read_b64_tr_b16 %s, v%d offset:%d' % (ar(A_WO + 4 * k + 2 * u, 2), aTR, 2560 * k + 320 * u))
    a('s_waitcnt lgkmcnt(0)')
    a.label('O_GO')
    for k in range(8):
        a('ds_read_b128 %s, v%d offset:%d' % (vr(OP + 4 * k, 4), aOR, 64 * k))
    tall_stage(8, A_WO, 0)
    dump(5, ACC[0])
    stamp('C pub')
    lay_test()
    a.br('s_cbranch_scc1', 'C_WAIT', L2)
    a('s_mul_i32 s%d, s%d, 13824' % (sT2, sW))
    for k in range(P['gu3'] + P['gu4'], 14):
        gudma(k)
    if P['xbar']:
        a('s_waitcnt vmcnt(%d)' % (14 - P['gu3'] - P['gu4']))
        a('s_barrier')
    a('v_lshrrev_b32 v%d, 2, v%d' % (t[0], vN))
    a('v_mul_u32_u24 v%d, 192, v%d' % (t[0], t[0]))
    a('s_add_u32 s%d, s%d, %d' % (sT2, sT2, L_GU))
    a('v_add_u32 v%d, s%d, v%d' % (t[0], sT2, t[0]))
    a('v_and_b32 v%d, 3, v%d' % (t[1], vL))
    a('v_lshl_add_u32 v%d, v%d, 2, v%d' % (t[2], vRow, t[1]))
    a('v_lshl_add_u32 v%d, v%d, 3, v%d' % (aTR, t[2], t[0]))
    a('v_lshrrev_b32 v%d, 1, v%d' % (t[2], t[2]))
    a('v_lshl_add_u32 v%d, v%d, 3, v%d' % (t[0], t[2], t[0]))
    a('v_and_b32 v%d, 1, v%d' % (t[1], vL))
    a('v_mul_u32_u24 v%d, 6912, v%d' % (t[1], t[1]))
    a('v_add_u32 v%d, v%d, v%d' % (aTR2, t[0], t[1]))
    a('s_waitcnt vmcnt(0)')
    for j in range(9):
        a('ds_read_b64_tr_b16 %s, v%d offset:%d' % (ar(A_GU + 2 * j, 2), aTR, 768 * j), needs=('GU',))
        a('ds_read_b64_tr_b16 %s, v%d offset:%d' % (ar(A_GU + 18 + 2 * j, 2), aTR, 6912 + 768 * j), needs=('GU',))
        a('ds_read_b64_tr_b16 %s, v%d offset:%d' % (ar(A_GU + 36 + 2 * j, 2), aTR2, 128 + 768 * j), needs=('GU',))
    a('s_waitcnt lgkmcnt(0)')
    for j in range(9):
        for b in range(3):
            m4(ACC[b], vr(ONE, 2), ar(A_GU + 18 * b + 2 * j, 2), j == 0, 0)
    a('v_cvt_pk_bf16_f32 v%d, v%d, v%d' % (PK2, ACC[0], ACC[1]))
    a('v_cvt_pk_bf16_f32 v%d, v%d, v%d' % (PK2 + 1, ACC[2], vTD))
    pub('buffer_store_dwordx2', vr(PK2, 2), aDPUB, 's%d' % sCG)
    a.jmp('G_ENTRY')
    a.label('C_WAIT')
    if P['xbar']:
        a('s_waitcnt vmcnt(0)')
        a('s_barrier')
    a.label('G_ENTRY')
    a('s_barrier')
    a('ds_read_b64 %s, v%d' % (vr(XQ, 2), aXQR))
    a('s_add_u32 s%d, s%d, 0x10000' % (sSLOT, sSLOT))
    a('s_waitcnt lgkmcnt(0)')
    for j in range(9):
        for b in range(3):
            m4(ACC[b], vr(XQ, 2), ar(A_GU + 18 * b + 2 * j, 2), j == 0, j)
    a('v_cvt_pk_bf16_f32 v%d, v%d, v%d' % (PK2, ACC[0], ACC[1]))
    a('v_cvt_pk_bf16_f32 v%d, v%d, v%d' % (PK2 + 1, ACC[2], vTD))
    pub('buffer_store_dwordx2', vr(PK2, 2), aDPUB, '0')
    dump(6, ACC[0])
    a.label('GD_PRE')
    stamp('D pub')
    lay_test()
    a.br('s_cbranch_scc1', 'GD_ACK', L2)
    a.label('GCG_ISSUE')
    gload(G2[0], aDG1, 's%d' % sCG)
    gload(G2[1], aDG1, 's%d' % sCG, 1536)
    gload(G2[2], aDG1b, 's%d' % sCG)
    gload(G2[3], aDG1b, 's%d' % sCG, 1536)
    gload(G2[4], aDG2, 's%d' % sCG)
    gload(G2[5], aDG2, 's%d' % sCG, 1536)
    a('s_waitcnt vmcnt(0)')
    for q in range(4):
        m16(ACC[2], vr(SELD, 4), vr(G2[q], 4), '0' if q == 0 else vr(ACC[2], 4))
    for q in range(2):
        m16(ACC[3], vr(SELD, 4), vr(G2[4 + q], 4), '0' if q == 0 else vr(ACC[3], 4))
    for q in range(3):
        chk_d(vE2, G2[2 * q], G2[2 * q + 1], q == 0)
    a('v_cmp_lt_u32 vcc, 0xffff, v%d' % vE2)
    a('s_cmp_lg_u64 vcc, 0')
    retry('CG', 'GCG_ISSUE')
    a('v_mov_b32 v%d, v%d' % (CSG, ACC[2]))
    a('v_mov_b32 v%d, v%d' % (CSG + 1, ACC[2] + 1))
    a('v_add_f32_dpp v%d, v%d, v%d row_ror:8%s' % (CSG + 2, ACC[3], ACC[3], DPP))
    a('v_add_f32_dpp v%d, v%d, v%d row_ror:8%s' % (CSG + 3, ACC[3] + 1, ACC[3] + 1, DPP))
    a.label('GD_ACK')
    if P['ackwait']:
        a('s_waitcnt vmcnt(0)')
    a.label('GD_ISSUE')
    gload(G[6], aASGET, 's%d' % sDS)
    gload(G[4], aDG2, '0')
    gload(G[5], aDG2, '0', 1536)
    gload(G[0], aDG1, '0')
    gload(G[1], aDG1, '0', 1536)
    gload(G[2], aDG1b, '0')
    gload(G[3], aDG1b, '0', 1536)
    a('s_waitcnt vmcnt(6)')
    lo = ln_ops(G[6])
    a('v_cmp_ne_u32 s[%d:%d], s%d, v%d' % (sP, sP + 1, sT, G[6] + 3))
    a('\n'.join(lo[0]))
    a('s_waitcnt vmcnt(5)')
    m16(ACC[1], vr(SELD, 4), vr(G[4], 4), '0')
    a('\n'.join(lo[1]))
    a('s_waitcnt vmcnt(4)')
    m16(ACC[1], vr(SELD, 4), vr(G[5], 4), vr(ACC[1], 4))
    chk_d(vE2, G[4], G[5], True)
    a('\n'.join(lo[2]))
    a('s_waitcnt vmcnt(3)')
    m16(ACC[0], vr(SELD, 4), vr(G[0], 4), '0')
    a('\n'.join(lo[3]))
    a('s_waitcnt vmcnt(2)')
    m16(ACC[0], vr(SELD, 4), vr(G[1], 4), vr(ACC[0], 4))
    chk_d(vE2, G[0], G[1], False)
    a('\n'.join(lo[4] + lo[5] + lo[6]))
    a('s_waitcnt vmcnt(1)')
    m16(ACC[0], vr(SELD, 4), vr(G[2], 4), vr(ACC[0], 4))
    a('v_add_f32_dpp v%d, v%d, v%d row_ror:8%s' % (t[4], ACC[1], ACC[1], DPP))
    a('v_add_f32_dpp v%d, v%d, v%d row_ror:8%s' % (t[5], ACC[1] + 1, ACC[1] + 1, DPP))
    a('v_mul_f32 v%d, v%d, v%d' % (vRS, vRS, vRS))
    a('s_waitcnt vmcnt(0)')
    m16(ACC[0], vr(SELD, 4), vr(G[3], 4), vr(ACC[0], 4))
    chk_d(vE2, G[2], G[3], False)
    a('v_cmp_lt_u32 vcc, 0xffff, v%d' % vE2)
    a('v_fma_f32 v%d, -v%d, v%d, v%d' % (t[4], vDM, CSG + 2, t[4]))
    a('v_fma_f32 v%d, -v%d, v%d, v%d' % (t[5], vDM, CSG + 3, t[5]))
    a('s_or_b64 vcc, vcc, s[%d:%d]' % (sP, sP + 1))
    retry('D', 'GD_ISSUE')
    a('v_mul_f32 v%d, v%d, v%d' % (t[4], t[4], vRS))
    a('v_mul_f32 v%d, v%d, v%d' % (t[4], t[4], t[5]))
    a('v_fma_f32 v%d, -v%d, v%d, v%d' % (t[0], vDM, CSG, ACC[0]))
    a('v_fma_f32 v%d, -v%d, v%d, v%d' % (t[1], vDM, CSG + 1, ACC[0] + 1))
    a('v_mul_f32 v%d, v%d, v%d' % (t[0], t[0], vRS))
    a('v_mul_f32 v%d, v%d, v%d' % (t[0], t[0], t[1]))
    a('v_cvt_pk_bf16_f32 v%d, v%d, v%d' % (t[1], t[0], t[4]))
    a('ds_write_b16 v%d, v%d' % (aHW1, t[1]))
    a('ds_write_b16_d16_hi v%d, v%d' % (aHW2, t[1]))
    dump(7, t[0])
    a('s_waitcnt lgkmcnt(0)')
    a('s_barrier', needs=('WD',))
    stamp('h ready')
    a('s_cmp_eq_u32 s%d, 3' % sW)
    a.br('s_cbranch_scc1', 'W3_E', W3)
    lay_test()
    a.br('s_cbranch_scc1', 'D_GO', L2)
    tall_addr(L_WD)
    for k in range(9):
        for u in range(2):
            a('ds_read_b64_tr_b16 %s, v%d offset:%d' % (ar(A_WD + 4 * k + 2 * u, 2), aTR, 2560 * k + 320 * u))
    a('s_waitcnt lgkmcnt(0)')
    a.label('D_GO')
    for k in range(9):
        a('ds_read_b128 %s, v%d offset:%d' % (vr(OP + 4 * k, 4), aOR, L_H - L_O + 64 * k))
    tall_stage(9, A_WD, 0)
    dump(8, ACC[0])
    stamp('E pub')
    if P['xbar']:
        a('s_waitcnt vmcnt(0)')
        a('s_barrier')
    lay_test()
    a.br('s_cbranch_scc1', 'FINISH', L2)
    a('s_add_u32 s%d, s%d, 0x10000' % (sSLOT, sSLOT))
    a('s_mov_b32 s%d, 1' % sLAY)
    a.act(lambda c: c.__setitem__('layer', 1))
    set_tags()
    a.jmp('Q_ENTRY')

    def xgather(tag):
        a.label('GX_ISSUE_' + tag)
        for q in range(4):
            gload(G[q], aXGET, 's%d' % sSLOT, 256 * q)
        for q in range(4):
            a('s_waitcnt vmcnt(%d)' % (3 - q))
            m16(XC, vr(SELX, 4), vr(G[q], 4), vr(CI, 4) if q == 0 else vr(XC, 4))
            if q & 1:
                a('v_bitop3_b32 v%d, v%d, v%d, s%d bitop3:0x7e' % (t[q >> 1], G[q - 1] + 3, G[q] + 3, sT))
        a('v_or_b32 v%d, v%d, v%d' % (t[0], t[0], t[1]))
        a('v_cmp_ne_u32 vcc, 0, v%d' % t[0])
        a('s_cmp_lg_u64 vcc, 0')
        retry(tag, 'GX_ISSUE_' + tag)

    def xq_write():
        a('v_cvt_pk_bf16_f32 v%d, v%d, v%d' % (PK2, XC, XC + 1))
        a('v_cvt_pk_bf16_f32 v%d, v%d, v%d' % (PK2 + 1, XC + 2, XC + 3))
        a('ds_write_b64 v%d, %s' % (aXQW, vr(PK2, 2)))
        a('s_waitcnt lgkmcnt(0)')

    a.label('W3_C')
    lay_test()
    a.br('s_cbranch_scc1', 'W3_C2', L2)
    a('s_mov_b32 s%d, 0' % sT2)
    for k in range(P['wd4']):
        tall_dma(S_WD, L_WD, sT2, k, 'WD', half=(k == 22))
    a.label('W3_C2')
    if P['xbar']:
        a('s_barrier')
    xgather('C')
    xq_write()
    a('s_barrier')
    stamp('x1 ready(w3)')
    a('\n'.join(stats_ops()))
    pub('buffer_store_dwordx4', vr(ST, 4), aASPUB, 's%d' % sDS)
    a('s_add_u32 s%d, s%d, 0x10000' % (sSLOT, sSLOT))
    dump(9, XC)
    a('\n'.join(resid_ops()))
    lay_test()
    a.br('s_cbranch_scc1', 'W3_EPOCH', L2)
    a('s_mov_b32 s%d, 0' % sT2)
    for k in range(P['wd4'], 23):
        tall_dma(S_WD, L_WD, sT2, k, 'WD', half=(k == 22))
    a.jmp('GD_PRE')
    a.label('W3_EPOCH')
    a('s_cmp_lg_u32 s2, 0')
    a.br('s_cbranch_scc1', 'GD_PRE', lambda c: not c['final'])
    a('v_mov_b32 v%d, 0' % t[0])
    a('s_mov_b64 exec, 1')
    a('buffer_store_dword v%d, v%d, %s, 0 offen' % (XG + 3, t[0], srd(S_W)))
    a('s_mov_b64 exec, -1')
    a.jmp('GD_PRE')

    a.label('W3_E')
    a('\n'.join(newmean_ops()))
    if P['xbar']:
        a('s_barrier')
    lay_test()
    a.br('s_cbranch_scc0', 'W3_E2', L1)
    a('s_cmp_lg_u32 s%d, s%d' % (sG, sI))
    a.br('s_cbranch_scc1', 'FINISH', lambda c: not c['final'])
    a.label('W3_E2')
    xgather('E')
    dump(10, XC)
    lay_test()
    a.br('s_cbranch_scc1', 'W3_OUT', L2)
    a('s_add_u32 s%d, s%d, 0x10000' % (sSLOT, sSLOT))
    a('s_mov_b32 s%d, 1' % sLAY)
    a.act(lambda c: c.__setitem__('layer', 1))
    xq_write()
    a.jmp('W3_TAGS')
    a.label('XQ_WRITE_A')
    xq_write()
    a.jmp('Q_ENTRY')
    a.label('W3_TAGS')
    a('s_barrier')
    a('ds_read_b64 %s, v%d' % (vr(XQ, 2), aXQR))
    set_tags()
    a.jmp('Q_GO')
    a.label('W3_OUT')
    for r in range(4):
        a('v_add_f32 v%d, v%d, v%d' % (XR + r, XC + r, vMP))
    a('v_cvt_pk_bf16_f32 v%d, v%d, v%d' % (PK2, XR, XR + 1))
    a('v_cvt_pk_bf16_f32 v%d, v%d, v%d' % (PK2 + 1, XR + 2, XR + 3))
    a('buffer_store_dwordx2 %s, v%d, %s, 0 offen' % (vr(PK2, 2), aOUT, srd(S_OUT)))
    a.label('FINISH')
    if P['stamps']:
        stamp('end')
        a('s_memrealtime s[%d:%d]' % (sTS, sTS + 1))
        a('s_waitcnt lgkmcnt(0)')
        a('v_writelane_b32 v%d, s%d, 31' % (vTS, sTS))
        a('s_mov_b32 s%d, 0x%x' % (sT3, OFF_DBG))
        a('buffer_store_dword v%d, v%d, %s, s%d offen' % (vTS, aDM, srd(S_W), sT3))
    a.label('END')
    a('s_endpgm')
    for tag, issue in retry_blocks:
        a.label('RETRY_' + tag)
        a('s_sub_u32 s%d, s%d, 1' % (sBUD, sBUD))
        a.br('s_cbranch_scc0', issue, lambda c: True)
        a('s_mov_b32 s%d, 0' % sBUD)
        a.jmp('CONT_' + tag)
    a.label('CODE_END')

    ctxs = []
    for w in (0, 3):
        for fin in (True, False):
            for rt in (False, True):
                ctxs.append(lambda w=w, fin=fin, rt=rt: dict(layer=0, wave=w, final=fin, retry=rt,
                                                              name='w%d fin%d retry%d' % (w, fin, rt)))
    a.fix_hazards(ctxs)
    errs = a.check_waits(ctxs)
    return a, errs, v.n, names


HEADER = '''; Persistent decode kernel: 256 workgroups (one per CU) keep K, V and all weights on chip for both layers.
; @launch grid=(256,1,1) block=(256,1,1) lds=%d
.amdgcn_target "amdgcn-amd-amdhsa--gfx950"
.text
.globl %s
.p2align 8
.type %s,@function
%s:
'''
FOOTER = '''.section .rodata,"a"
.p2align 6
.amdhsa_kernel %s
  .amdhsa_next_free_vgpr 512
  .amdhsa_next_free_sgpr 102
  .amdhsa_accum_offset 256
  .amdhsa_group_segment_fixed_size 0
  .amdhsa_kernarg_size 96
  .amdhsa_user_sgpr_count 2
  .amdhsa_user_sgpr_kernarg_segment_ptr 1
  .amdhsa_system_sgpr_workgroup_id_x 1
.end_amdhsa_kernel
'''


def render(**kw):
    a, errs, nv, names = build(**kw)
    txt = HEADER % (LDS_BYTES, KNAME, KNAME, KNAME) + a.text() + FOOTER % KNAME
    return txt, a, errs, nv, names


if __name__ == '__main__':
    out = sys.argv[1]
    kw = {}
    for s in sys.argv[2:]:
        k, x = s.split('=')
        kw[k] = int(x)
    txt, a, errs, nv, names = render(**kw)
    for e in sorted(set(errs)):
        print('WAIT ERROR', e)
    open(out, 'w').write(txt)
    print('vgprs', nv, 'lds', LDS_BYTES, 'pads', sum(p for p, _ in a.pads()), 'stamps', ','.join(names))
    if errs:
        sys.exit(1)
```

```python
import sys
from asmlib import Asm

KNAME = 'interleave_layers__sliding_block_cached__glu_gated_bilinear__decode_kernel'

DEFAULTS = dict(
    stamps=0,
    dump=0,
    k0=8,
    v0=8,
    gu3=6,
    gu4=8,
    wd4=23,
    pretouch=1, prewrite=1, codepf=1,
    ackwait=1,
    xbar=1,
    forceslow=0,
    hold=0,
    burn=0,
)

OFF_AD, OFF_CQ, OFF_BD = 0x1000, 0x41000, 0x81000
OFF_DD, OFF_CG = 0xC1000, 0x121000
OFF_AS, OFF_DS, OFF_BS = 0x181000, 0x182000, 0x183000
OFF_X = 0x190000
WS_USED = 0x1D0000
OFF_DBG = 0x200000
WS_SRD = 0x1000000
OOB = 0x80000000
L_K, L_V, L_WQ = 0, 65536, 131072
L_WO, L_GU, L_WD = 0, 20480, 65536
L_X = 149504
L_Q = L_X + 128
L_O = L_Q + 512
L_H = L_O + 512
L_PS = L_H + 640
L_DUM = L_PS + 64
L_PO = (L_DUM + 1024 + 255) // 256 * 256
L_END = L_PO + 4096
LDS_BYTES = L_END
assert LDS_BYTES <= 163840 and LDS_BYTES > 81920

S_K, S_V, S_WQ, S_WO, S_WG, S_WU, S_WD, S_X, S_OUT, S_W, S_F, S_S = range(28, 76, 4)
(sW, sG, sI, sROT, sT, sThi, sTsh, sLAY, sBUD, sXCC, sCQ, sBD, sDS, sCG, sSLOT,
 sR0, sR1, sT0, sT1, sT2, sT3, sE) = range(76, 98)
sM9 = 98
sP = 100
sC, sINV = 4, 5
sHIM, sTS = 6, 8


def srd(b):
    return 's[%d:%d]' % (b, b + 3)


class V:
    def __init__(self):
        self.n = 1

    def __call__(self, k=1, al=1):
        if k > 1:
            al = max(al, 2)
        self.n = (self.n + al - 1) // al * al
        r = self.n
        self.n += k
        assert self.n <= 256
        return r


def vr(b, k):
    return 'v[%d:%d]' % (b, b + k - 1)


def ar(b, k):
    return 'a[%d:%d]' % (b, b + k - 1)


A_K, A_V, A_GU, A_WO, A_WD = 0, 64, 128, 184, 216


def build(**kw):
    P = dict(DEFAULTS)
    P.update(kw)
    a = Asm()
    v = V()
    L1 = lambda c: c['layer'] == 0
    L2 = lambda c: c['layer'] == 1
    W3 = lambda c: c['wave'] == 3
    NW3 = lambda c: c['wave'] != 3

    vL, vRow, vN = v(), v(), v()
    t = [v() for _ in range(8)]
    (aXQR, aAPUB, aAGET, aASGET, aASPUB, aBSGET, aBSPUB, aQW, aQR, aPOW, aPOR, aPSW, aPSR, aOR, aXPUB,
     aXGET, aXQW, aDPUB, aDG1, aDG1b, aDG2, aHW1, aHW2, aOUT) = [v() for _ in range(24)]
    SEL4, MASK4, SELX, SELD = v(4, 4), v(4, 4), v(4, 4), v(4, 4)
    vSELH, vTAB, vTD, vEPS, vMP = v(), v(), v(), v(), v()
    XG, ST, BST, PSV = v(4, 4), v(4, 4), v(4, 4), v(4, 4)
    WQ = v(18, 2)
    XQ, QA, PA = v(2), v(4, 2), v(2)
    ONE = v(2)
    ACC = [v(4, 4) for _ in range(4)]
    G = [v(4, 4) for _ in range(7)]
    OP = v(36, 4)
    G2 = [OP + 4 * q for q in range(6)]
    AW = [OP + 4 * q for q in range(4)]
    XC, XR, CI = v(4, 4), v(4, 4), v(4, 4)
    CSQ = v()
    CSG = v(4, 2)
    Y, PK2 = v(2), v(2)
    PO, PS = v(4, 2), v(8, 2)
    vDM, vRS, vE0, vE1, vE2 = v(), v(), v(), v(), v()
    aK = [v() for _ in range(4)]
    aV, aWQ, aTR, aTR2, aDM = v(), v(), v(), v(), v()
    aGU = [v() for _ in range(7)]
    vTS, vDUM = v(), v()
    nstamp = [0]
    names = []

    def stamp(name):
        if not P['stamps']:
            return
        k = nstamp[0]
        nstamp[0] += 1
        names.append(name)
        assert k < 31
        a('s_memtime s[%d:%d]' % (sTS, sTS + 1))
        a('s_lshl_b32 s%d, s%d, 5' % (sT3, sLAY))
        a('s_add_u32 s%d, s%d, %d' % (sT3, sT3, k))
        a('s_mov_b32 m0, s%d' % sT3)
        a('s_waitcnt lgkmcnt(0)')
        a('v_writelane_b32 v%d, s%d, m0' % (vTS, sTS))

    def dump(idx, reg):
        if not P['dump']:
            return
        a('s_lshl_b32 s%d, s%d, 18' % (sT3, sLAY))
        a('s_add_u32 s%d, s%d, 0x%x' % (sT3, sT3, OFF_DBG + 0x100000 + idx * 0x80000))
        a('buffer_store_dword v%d, v%d, %s, s%d offen' % (reg, aDM, srd(S_W), sT3))
        a('s_waitcnt vmcnt(0)')

    def mk_srd(b, ptr, off_sgpr, size):
        if off_sgpr is None:
            a('s_mov_b32 s%d, s%d' % (b, ptr))
            a('s_and_b32 s%d, s%d, 0xffff' % (b + 1, ptr + 1))
        else:
            a('s_add_u32 s%d, s%d, s%d' % (b, ptr, off_sgpr))
            a('s_addc_u32 s%d, s%d, 0' % (b + 1, ptr + 1))
            a('s_and_b32 s%d, s%d, 0xffff' % (b + 1, b + 1))
        a('s_mov_b32 s%d, 0x%x' % (b + 2, size))
        a('s_mov_b32 s%d, 0x20000' % (b + 3))

    def pub(op, data, addr, soff, off=''):
        a('%s %s, v%d, %s, %s offen%s' % (op, data, addr, srd(S_F), soff, off))
        a('%s %s, v%d, %s, %s offen%s sc1' % (op, data, addr, srd(S_S), soff, off))

    def gload(dst, addr, soff, off=0):
        a('buffer_load_dwordx4 %s, v%d, %s, %s offen%s sc1' % (
            vr(dst, 4), addr, srd(S_W), soff, (' offset:%d' % off) if off else ''))

    retry_blocks = []

    def retry(tag, issue_label):
        def taken(c):
            k = (tag, c['layer'])
            if c.get('retry') and k not in c.setdefault('_done', set()):
                c['_done'].add(k)
                return True
            return False
        a.br('s_cbranch_scc1', 'RETRY_' + tag, taken)
        a.label('CONT_' + tag)
        retry_blocks.append((tag, issue_label))

    def lay_test():
        a('s_cmp_lg_u32 s%d, 0' % sLAY)

    def kdma(j):
        a('s_add_u32 s%d, s%d, %d' % (sT0, sROT, j))
        a('s_and_b32 s%d, s%d, 15' % (sT0, sT0))
        a('s_lshl_b32 s%d, s%d, 12' % (sT0, sT0))
        a('s_add_u32 m0, s%d, %d' % (sT1, L_K + 1024 * j))
        a('buffer_load_dwordx4 v%d, %s, s%d offen nt lds' % (aK[j & 3], srd(S_K), sT0), fills='K')

    def vdma(j):
        a('s_add_u32 s%d, s%d, %d' % (sT0, sROT, j))
        a('s_and_b32 s%d, s%d, 15' % (sT0, sT0))
        a('s_lshl_b32 s%d, s%d, 12' % (sT0, sT0))
        a('s_add_u32 m0, s%d, %d' % (sT1, L_V + 1024 * j))
        a('buffer_load_dwordx4 v%d, %s, s%d offen nt lds' % (aV, srd(S_V), sT0), fills='V%d' % (j // 4))

    def wave16k():
        a('s_lshl_b32 s%d, s%d, 14' % (sT1, sW))

    def tall_dma(S, region, instr_sgpr_base, k, fills, half=False):
        a('s_add_u32 s%d, s%d, %d' % (sT0, instr_sgpr_base, k))
        a('s_lshl_b32 s%d, s%d, 6' % (sT3, sT0))
        a('v_add_u32 v%d, s%d, v%d' % (t[0], sT3, vL))
        a('v_mul_u32_u24 v%d, 52429, v%d' % (t[1], t[0]))
        a('v_lshrrev_b32 v%d, 18, v%d' % (t[1], t[1]))
        a('v_mul_u32_u24 v%d, 1072, v%d' % (t[1], t[1]))
        a('v_lshl_add_u32 v%d, v%d, 4, v%d' % (t[1], t[0], t[1]))
        a('s_lshl_b32 s%d, s%d, 10' % (sT0, sT0))
        a('s_add_u32 m0, s%d, %d' % (sT0, region))
        if half:
            a('s_mov_b32 exec_hi, 0')
        a('buffer_load_dwordx4 v%d, %s, 0 offen nt lds' % (t[1], srd(S)), fills=fills)
        if half:
            a('s_mov_b32 exec_hi, -1')

    def gudma(k):
        j, mu = k >> 1, k & 1
        a('s_add_u32 m0, s%d, %d' % (sT2, L_GU + 6912 * mu + 1024 * j))
        if j == 6:
            a('s_mov_b32 exec_hi, 0xffff')
        a('buffer_load_dwordx4 v%d, %s, 0 offen nt lds' % (aGU[j], srd(S_WU if mu else S_WG)), fills='GU')
        if j == 6:
            a('s_mov_b32 exec_hi, -1')

    def set_tags():
        a('s_and_b32 s%d, s%d, 0x1fff1fff' % (sT, sT))
        a('s_add_u32 s%d, s%d, 0x10001' % (sT, sT))
        a('s_and_b32 s%d, s%d, 0x1fff1fff' % (sT, sT))
        a('s_or_b32 s%d, s%d, 0x20002000' % (sT, sT))
        a('s_lshr_b32 s%d, s%d, 16' % (sThi, sT))
        a('s_lshl_b32 s%d, s%d, 16' % (sTsh, sT))
        a('s_and_b32 s%d, s%d, 0xffff0000' % (sT0, sT))
        a('v_mov_b32 v%d, s%d' % (t[0], sTsh))
        a('v_mov_b32 v%d, s%d' % (t[1], sT0))
        a('v_and_b32 v%d, 1, v%d' % (t[2], vL))
        a('v_cmp_eq_u32 vcc, 0, v%d' % t[2])
        a('v_cndmask_b32 v%d, v%d, v%d, vcc' % (vTAB, t[1], t[0]))
        a('v_and_b32 v%d, 4, v%d' % (t[2], vL))
        a('v_cmp_eq_u32 vcc, 0, v%d' % t[2])
        a('v_cndmask_b32 v%d, v%d, v%d, vcc' % (vTD, t[1], t[0]))
        a('v_mov_b32 v%d, s%d' % (XG + 3, sT))
        a('v_mov_b32 v%d, s%d' % (ST + 3, sT))
        a('v_mov_b32 v%d, s%d' % (BST + 3, sT))

    DPP = ' row_mask:0xf bank_mask:0xf'

    def ror_steps(op, regs, first_src=None):
        out = []
        for k, sh in enumerate((8, 4, 2, 1)):
            grp = []
            for q, r in enumerate(regs):
                s = first_src[q] if (k == 0 and first_src) else r
                grp.append('%s_dpp v%d, v%d, v%d row_ror:%d%s' % (op, r, s, s, sh, DPP))
            out.append(grp)
        return out

    def stats_ops():
        o = ['v_add_f32 v%d, v%d, v%d' % (t[4], XC, XC + 1),
             'v_mul_f32 v%d, v%d, v%d' % (t[5], XC, XC),
             'v_add_f32 v%d, v%d, v%d' % (t[6], XC + 2, XC + 3),
             'v_fmac_f32 v%d, v%d, v%d' % (t[5], XC + 1, XC + 1),
             'v_add_f32 v%d, v%d, v%d' % (t[4], t[4], t[6]),
             'v_fmac_f32 v%d, v%d, v%d' % (t[5], XC + 2, XC + 2),
             'v_cndmask_b32 v%d, 0, v%d, s[%d:%d]' % (ST, t[4], sM9, sM9 + 1),
             'v_fmac_f32 v%d, v%d, v%d' % (t[5], XC + 3, XC + 3),
             'v_cndmask_b32 v%d, 0, v%d, s[%d:%d]' % (ST + 1, t[5], sM9, sM9 + 1)]
        for g in ror_steps('v_add_f32', [ST, ST + 1]):
            o += g
        return o

    def resid_ops():
        o = []
        for r in range(4):
            o.append('v_add_f32 v%d, v%d, v%d' % (XR + r, XC + r, vMP))
        o.append('v_cvt_pk_bf16_f32 v%d, v%d, v%d' % (XR + 1, XR, XR + 1))
        o.append('v_cvt_pk_bf16_f32 v%d, v%d, v%d' % (XR + 3, XR + 2, XR + 3))
        o.append('v_lshlrev_b32 v%d, 16, v%d' % (XR, XR + 1))
        o.append('v_lshlrev_b32 v%d, 16, v%d' % (XR + 2, XR + 3))
        o.append('v_and_b32 v%d, s%d, v%d' % (XR + 1, sHIM, XR + 1))
        o.append('v_and_b32 v%d, s%d, v%d' % (XR + 3, sHIM, XR + 3))
        return o

    def ln_ops(S):
        o = []
        for g in ror_steps('v_add_f32', [vE0, vE1], [S, S + 1]):
            o.append(g)
        o.append(['v_mul_f32 v%d, s%d, v%d' % (vDM, sINV, vE0),
                  'v_fma_f32 v%d, v%d, s%d, v%d' % (vRS, vE1, sINV, vEPS)])
        o.append(['v_fma_f32 v%d, -v%d, v%d, v%d' % (vRS, vDM, vDM, vRS)])
        o.append(['v_rsq_f32 v%d, v%d' % (vRS, vRS)])
        return o

    def newmean_ops():
        o = ['v_add_f32 v%d, v%d, v%d' % (vMP, vMP, vDM)]
        for r in range(4):
            o.append('v_sub_f32 v%d, v%d, v%d' % (CI + r, XR + r, vMP))
        return o

    def m16(d, A, B, C):
        a('v_mfma_f32_16x16x32_bf16 %s, %s, %s, %s' % (vr(d, 4), A, B, C))

    def m4(d, A, B, first, abid):
        a('v_mfma_f32_4x4x4_16b_bf16 %s, %s, %s, %s cbsz:4 abid:%d' % (vr(d, 4), A, B, '0' if first else vr(d, 4), abid))

    def chk_ab(acc, g, first):
        a('v_bitop3_b32 v%d, v%d, v%d, s%d bitop3:0x7e' % (t[0], g, g + 2, sT))
        a('v_bitop3_b32 v%d, v%d, v%d, s%d bitop3:0x7e' % (t[1], g + 1, g + 3, sThi))
        if first:
            a('v_or_b32 v%d, v%d, v%d' % (acc, t[0], t[1]))
        else:
            a('v_or3_b32 v%d, v%d, v%d, v%d' % (acc, t[0], t[1], acc))

    def chk_d(acc, g, h, first):
        a('v_bitop3_b32 v%d, v%d, v%d, s%d bitop3:0x7e' % (t[0], g + 1, h + 1, sTsh))
        a('v_bitop3_b32 v%d, v%d, v%d, s%d bitop3:0x7e' % (t[1], g + 3, h + 3, sT))
        if first:
            a('v_or_b32 v%d, v%d, v%d' % (acc, t[0], t[1]))
        else:
            a('v_or3_b32 v%d, v%d, v%d, v%d' % (acc, t[0], t[1], acc))

    a('s_cmp_ge_u32 s2, 256')
    a.br('s_cbranch_scc1', 'END', lambda c: False)
    if P['stamps']:
        a('s_memtime s[86:87]')
        a('s_memrealtime s[90:91]')
        nstamp[0] = 1
        names.append('start')
    if P['hold']:
        a('s_memrealtime s[90:91]')
    a('s_load_dwordx16 s[4:19], s[0:1], 0')
    a('s_load_dwordx8 s[20:27], s[0:1], 64')
    a('v_lshrrev_b32 v%d, 6, v0' % t[0])
    a('v_and_b32 v%d, 63, v0' % vL)
    a('v_readfirstlane_b32 s%d, v%d' % (sW, t[0]))
    a('s_and_b32 s%d, s2, 7' % sT0)
    a('s_lshl_b32 s%d, s%d, 1' % (sT0, sT0))
    a('s_bfe_u32 s%d, s2, 0x10003' % sT1)
    a('s_add_u32 s%d, s%d, s%d' % (sG, sT0, sT1))
    a('s_lshr_b32 s%d, s2, 4' % sI)
    a('s_lshr_b32 s%d, s2, 3' % sROT)
    a('s_mov_b32 s%d, 0' % sLAY)
    a('v_lshrrev_b32 v%d, 4, v%d' % (vRow, vL))
    a('v_and_b32 v%d, 15, v%d' % (vN, vL))
    a('v_lshrrev_b32 v%d, 3, v%d' % (t[0], vL))
    a('v_and_b32 v%d, 7, v%d' % (t[1], vL))
    a('v_lshlrev_b32 v%d, 13, v%d' % (t[0], t[0]))
    a('v_lshl_add_u32 v%d, v%d, 4, v%d' % (t[0], t[1], t[0]))
    a('s_lshl_b32 s%d, s%d, 7' % (sT0, sW))
    a('v_add_u32 v%d, s%d, v%d' % (aWQ, sT0, t[0]))
    a('s_lshl_b32 s%d, s%d, 10' % (sT0, sW))
    a('v_lshl_add_u32 v%d, v%d, 8, s%d' % (t[0], vRow, sT0))
    a('v_xor_b32 v%d, v%d, v%d' % (t[1], vN, vRow))
    a('v_lshl_add_u32 v%d, v%d, 4, v%d' % (aK[0], t[1], t[0]))
    for j in (1, 2, 3):
        a('v_xor_b32 v%d, %d, v%d' % (aK[j], 64 * j, aK[0]))
    a('v_lshlrev_b32 v%d, 2, v%d' % (t[1], vRow))
    a('v_xor_b32 v%d, v%d, v%d' % (t[1], vN, t[1]))
    a('v_lshl_add_u32 v%d, v%d, 4, v%d' % (aV, t[1], t[0]))
    a('s_mul_i32 s%d, s%d, %d' % (sT0, sI, 36 * 8192))
    a('s_lshl_b32 s%d, s%d, 9' % (sT1, sG))
    a('s_add_u32 s%d, s%d, s%d' % (sT0, sT0, sT1))
    a('s_lshl_b32 s%d, s%d, 23' % (sT2, sG))
    a('s_lshl_b32 s%d, s%d, 16' % (sT3, sI))
    a('s_add_u32 s%d, s%d, s%d' % (sT2, sT2, sT3))
    a('s_add_u32 s%d, s%d, %d' % (sT2, sT2, 28672 * 256))
    a('s_mul_i32 s%d, s%d, 4608' % (sT1, sW))
    a('s_waitcnt lgkmcnt(0)')
    if P['stamps']:
        a('s_mov_b32 s%d, s90' % sR1)
        a('s_mov_b32 s%d, s86' % sR0)
    if P['hold']:
        a('s_mov_b32 s3, s90')
    a('s_load_dword s%d, s[26:27], 0' % sE)
    mk_srd(S_WQ, 10, sT0, 35 * 8192 + 512)
    for k in range(5):
        a('s_add_u32 m0, s%d, %d' % (sT1, L_WQ + 1024 * k))
        a('s_mov_b32 s%d, %d' % (sT0, 65536 * k))
        if k == 4:
            a('s_mov_b32 exec_hi, 0')
        a('buffer_load_dwordx4 v%d, %s, s%d offen nt lds' % (aWQ, srd(S_WQ), sT0), fills='WQ')
        if k == 4:
            a('s_mov_b32 exec_hi, -1')
    mk_srd(S_K, 6, sT2, 65536)
    mk_srd(S_V, 8, sT2, 65536)
    mk_srd(S_X, 4, None, 1152)
    a('s_cmp_lg_u32 s%d, 3' % sW)
    a.br('s_cbranch_scc1', 'NOX', NW3)
    a('v_lshlrev_b32 v%d, 4, v%d' % (t[0], vL))
    a('s_mul_i32 s%d, s%d, 72' % (sT0, sI))
    a('v_lshl_add_u32 v%d, v%d, 3, s%d' % (t[1], vN, sT0))
    a('buffer_load_dwordx4 %s, v%d, %s, 0 offen' % (vr(G[0], 4), t[0], srd(S_X)))
    a('buffer_load_dwordx4 %s, v%d, %s, 0 offen offset:1024' % (vr(G[1], 4), t[0], srd(S_X)))
    a('buffer_load_dwordx2 %s, v%d, %s, 0 offen' % (vr(G[2], 2), t[1], srd(S_X)))
    a.label('NOX')
    if P['codepf']:
        a('s_getpc_b64 s[%d:%d]' % (sP, sP + 1))
        a.label('PCREF')
        a('s_lshl_b32 s%d, s%d, 12' % (sT0, sW))
        a('v_lshl_add_u32 v%d, v%d, 6, s%d' % (t[2], vL, sT0))
        a('v_min_u32 v%d, CODE_END-PCREF-4, v%d' % (t[2], t[2]))
        a('global_load_dword v%d, v%d, s[%d:%d]' % (vDUM, t[2], sP, sP + 1), dummy=1)
    wave16k()
    for j in range(P['k0']):
        kdma(j)
    a('s_mul_i32 s%d, s%d, %d' % (sT0, sG, 256 * 1152))
    a('s_mul_i32 s%d, s%d, 72' % (sT2, sI))
    a('s_and_b32 s%d, s%d, 0xfffffff0' % (sT2, sT2))
    a('s_add_u32 s%d, s%d, s%d' % (sT0, sT0, sT2))
    mk_srd(S_WO, 12, sT0, 255 * 1152 + 80)
    a('s_mul_i32 s%d, s%d, %d' % (sT0, sG, 288 * 1152))
    a('s_add_u32 s%d, s%d, s%d' % (sT0, sT0, sT2))
    mk_srd(S_WD, 20, sT0, 287 * 1152 + 80)
    a('s_mul_i32 s%d, s%d, %d' % (sT0, sI, 36 * 9216))
    a('s_mul_i32 s%d, s%d, 576' % (sT2, sG))
    a('s_add_u32 s%d, s%d, s%d' % (sT0, sT0, sT2))
    mk_srd(S_WG, 16, sT0, 35 * 9216 + 576)
    mk_srd(S_WU, 18, sT0, 35 * 9216 + 576)
    mk_srd(S_OUT, 22, None, 1152)
    WSZ = WS_SRD if (P['dump'] or P['stamps']) else WS_USED
    mk_srd(S_W, 26, None, WSZ)
    mk_srd(S_F, 26, None, 0)
    mk_srd(S_S, 26, None, WS_USED)
    a('s_mov_b32 s%d, 0x%x' % (sCQ, OFF_CQ - OFF_AD))
    a('s_mov_b32 s%d, 0x%x' % (sBD, OFF_BD - OFF_AD))
    a('s_mov_b32 s%d, 0x%x' % (sDS, OFF_DS - OFF_AS))
    a('s_mov_b32 s%d, 0x%x' % (sCG, OFF_CG - OFF_DD))
    a('s_mov_b32 s%d, 0' % sSLOT)
    a('s_mov_b32 s%d, 0x3e0293ee' % sC)
    a('s_mov_b32 s%d, 0x3ae38e39' % sINV)
    a('s_mov_b32 s%d, 0xffff0000' % sHIM)
    a('s_mov_b32 s%d, 200000' % sBUD)
    a('s_getreg_b32 s%d, hwreg(HW_REG_XCC_ID)' % sXCC)
    a('s_and_b32 s%d, s%d, 15' % (sXCC, sXCC))
    a('s_mov_b32 s%d, 0x01ff01ff' % sM9)
    a('s_mov_b32 s%d, 0x01ff01ff' % (sM9 + 1))
    a('v_mov_b32 v%d, 0x3727c5ac' % vEPS)
    a('v_mov_b32 v%d, 0x3f803f80' % ONE)
    a('v_mov_b32 v%d, 0x3f803f80' % (ONE + 1))
    a('v_mov_b32 v%d, 0' % (XG + 2))
    a('v_mov_b32 v%d, 0' % (BST + 2))
    a('v_mov_b32 v%d, s%d' % (ST + 2, sXCC))
    if P['stamps']:
        a('v_mov_b32 v%d, 0' % vTS)
        a('v_writelane_b32 v%d, s%d, 0' % (vTS, sR0))
        a('v_writelane_b32 v%d, s%d, 63' % (vTS, sR1))
    if P['dump'] or P['stamps']:
        a('s_lshl_b32 s%d, s2, 10' % sT0)
        a('v_lshl_add_u32 v%d, v0, 2, s%d' % (aDM, sT0))
    for q in range(4):
        a('v_cmp_eq_u32 vcc, %d, v%d' % (4 * q, vN))
        a('v_cndmask_b32 v%d, 0, -1, vcc' % t[0])
        a('v_and_b32 v%d, 0xffff0000, v%d' % (MASK4 + q, t[0]))
        a('v_and_b32 v%d, 0x3f800000, v%d' % (SEL4 + q, t[0]))

    def sel(dst, lo_n, hi_n):
        a('v_mov_b32 v%d, 0' % dst)
        for nn, val in ((lo_n, 0x3f80), (hi_n, 0x3f800000)):
            if nn is None:
                continue
            a('v_mov_b32 v%d, 0x%x' % (t[1], val))
            a('v_cmp_eq_u32 vcc, %d, v%d' % (nn, vN))
            a('v_cndmask_b32 v%d, v%d, v%d, vcc' % (dst, dst, t[1]))
    sel(SELX, 0, 1)
    sel(SELX + 1, 2, 3)
    sel(SELX + 2, None, None)
    sel(SELX + 3, None, None)
    sel(SELD, 0, 1)
    sel(SELD + 1, 8, None)
    sel(SELD + 2, 4, 5)
    sel(SELD + 3, 9, None)
    a('v_and_b32 v%d, 1, v%d' % (t[0], vL))
    a('v_cmp_eq_u32 vcc, 0, v%d' % t[0])
    a('v_mov_b32 v%d, 0x03020706' % t[1])
    a('v_mov_b32 v%d, 0x05040100' % t[2])
    a('v_cndmask_b32 v%d, v%d, v%d, vcc' % (vSELH, t[1], t[2]))
    a('v_mov_b32 v%d, 0x%x' % (t[7], OOB))
    a('v_lshrrev_b32 v%d, 2, v%d' % (t[0], vL))
    a('v_lshlrev_b32 v%d, 3, v%d' % (t[0], t[0]))
    a('v_add_u32 v%d, %d, v%d' % (aXQR, L_X, t[0]))
    a('v_and_b32 v%d, 1, v%d' % (t[1], vL))
    a('v_lshl_add_u32 v%d, v%d, 8, v%d' % (t[0], t[1], t[0]))
    a('v_add_u32 v%d, %d, v%d' % (aQR, L_Q, t[0]))
    a('s_lshl_b32 s%d, s%d, 14' % (sT0, sG))
    a('s_lshl_b32 s%d, s%d, 8' % (sT2, sW))
    a('s_add_u32 s%d, s%d, s%d' % (sT0, sT0, sT2))
    a('s_add_u32 s%d, s%d, 0x%x' % (sT0, sT0, OFF_AD))
    a('v_lshl_add_u32 v%d, v%d, 12, s%d' % (t[0], vRow, sT0))
    a('v_lshl_add_u32 v%d, v%d, 4, v%d' % (aAGET, vN, t[0]))
    a('s_lshl_b32 s%d, s%d, 10' % (sT3, sI))
    a('s_add_u32 s%d, s%d, s%d' % (sT0, sT0, sT3))
    a('v_lshl_add_u32 v%d, v%d, 2, s%d' % (aAPUB, vL, sT0))
    a('s_lshl_b32 s%d, s%d, 8' % (sT0, sG))
    a('s_add_u32 s%d, s%d, 0x%x' % (sT0, sT0, OFF_AS))
    a('v_lshl_add_u32 v%d, v%d, 4, s%d' % (aASGET, vN, sT0))
    a('s_lshl_b32 s%d, s%d, 4' % (sT3, sI))
    a('s_add_u32 s%d, s%d, s%d' % (sT0, sT0, sT3))
    a('v_mov_b32 v%d, s%d' % (t[0], sT0))
    a('v_cmp_eq_u32 vcc, 192, v0')
    a('v_cndmask_b32 v%d, v%d, v%d, vcc' % (aASPUB, t[7], t[0]))
    a('s_lshl_b32 s%d, s%d, 9' % (sT0, sG))
    a('s_lshr_b32 s%d, s%d, 1' % (sT2, sW))
    a('s_lshl_b32 s%d, s%d, 8' % (sT2, sT2))
    a('s_add_u32 s%d, s%d, s%d' % (sT0, sT0, sT2))
    a('s_add_u32 s%d, s%d, 0x%x' % (sT0, sT0, OFF_BS))
    a('v_lshl_add_u32 v%d, v%d, 2, v%d' % (t[0], vRow, vN))
    a('v_and_b32 v%d, 15, v%d' % (t[0], t[0]))
    a('v_lshl_add_u32 v%d, v%d, 4, s%d' % (aBSGET, t[0], sT0))
    a('s_add_u32 s%d, s%d, s%d' % (sT0, sT0, sT3))
    a('v_mov_b32 v%d, s%d' % (t[0], sT0))
    a('v_and_b32 v%d, 127, v0' % t[1])
    a('v_cmp_eq_u32 vcc, 0, v%d' % t[1])
    a('v_cndmask_b32 v%d, v%d, v%d, vcc' % (aBSPUB, t[7], t[0]))
    a('s_lshl_b32 s%d, s%d, 7' % (sT0, sW))
    a('s_add_u32 s%d, s%d, %d' % (sT0, sT0, L_Q))
    a('v_lshl_add_u32 v%d, v%d, 2, v%d' % (t[0], vN, vRow))
    a('v_lshl_add_u32 v%d, v%d, 1, s%d' % (aQW, t[0], sT0))
    a('s_lshl_b32 s%d, s%d, 8' % (sT0, sW))
    a('s_add_u32 s%d, s%d, %d' % (sT0, sT0, L_PO))
    a('v_lshl_add_u32 v%d, v%d, 2, s%d' % (aPOW, vL, sT0))
    a('s_lshl_b32 s%d, s%d, 10' % (sT0, sW))
    a('s_add_u32 s%d, s%d, %d' % (sT0, sT0, L_PO))
    a('v_lshl_add_u32 v%d, v%d, 2, s%d' % (aPOR, vL, sT0))
    a('s_mov_b32 s%d, %d' % (sT2, L_DUM))
    a('v_lshl_add_u32 v%d, v%d, 4, s%d' % (t[6], vL, sT2))
    a('s_lshl_b32 s%d, s%d, 4' % (sT0, sW))
    a('s_add_u32 s%d, s%d, %d' % (sT0, sT0, L_PS))
    a('v_mov_b32 v%d, s%d' % (t[0], sT0))
    a('v_cmp_eq_u32 vcc, 63, v%d' % vL)
    a('v_cndmask_b32 v%d, v%d, v%d, vcc' % (aPSW, t[6], t[0]))
    a('s_lshr_b32 s%d, s%d, 1' % (sT0, sW))
    a('s_lshl_b32 s%d, s%d, 3' % (sT0, sT0))
    a('s_add_u32 s%d, s%d, %d' % (sT0, sT0, L_PS))
    a('v_mov_b32 v%d, s%d' % (aPSR, sT0))
    a('s_mov_b32 s%d, %d' % (sT0, L_O))
    a('v_lshl_add_u32 v%d, v%d, 4, s%d' % (aOR, vRow, sT0))
    a('s_lshl_b32 s%d, s%d, 12' % (sT0, sI))
    a('s_add_u32 s%d, s%d, 0x%x' % (sT0, sT0, OFF_X))
    a('v_min_u32 v%d, 8, v%d' % (t[0], vN))
    a('v_mul_u32_u24 v%d, 43, v%d' % (t[1], t[0]))
    a('v_lshrrev_b32 v%d, 7, v%d' % (t[1], t[1]))
    a('v_add_u32 v%d, v%d, v%d' % (t[0], t[0], t[1]))
    a('v_lshl_add_u32 v%d, v%d, 10, s%d' % (t[1], vRow, sT0))
    a('v_lshl_add_u32 v%d, v%d, 4, v%d' % (aXGET, t[0], t[1]))
    a('s_lshl_b32 s%d, s%d, 8' % (sT2, sG))
    a('s_add_u32 s%d, s%d, s%d' % (sT0, sT0, sT2))
    a('s_lshl_b32 s%d, s%d, 6' % (sT2, sW))
    a('s_add_u32 s%d, s%d, s%d' % (sT2, sT0, sT2))
    a('v_lshl_add_u32 v%d, v%d, 4, s%d' % (t[0], vRow, sT2))
    a('s_mov_b32 s%d, 0x00010001' % sP)
    a('s_mov_b32 s%d, 0x00000001' % (sP + 1))
    a('v_cndmask_b32 v%d, v%d, v%d, s[%d:%d]' % (aXPUB, t[7], t[0], sP, sP + 1))
    if P['prewrite']:
        a('v_lshl_add_u32 v%d, v%d, 16, s%d' % (t[0], vRow, sT0))
        a('v_lshl_add_u32 v%d, v%d, 4, v%d' % (aTR2, vN, t[0]))
    a('s_mov_b32 s%d, %d' % (sT0, L_X))
    a('v_lshl_add_u32 v%d, v%d, 3, s%d' % (t[0], vN, sT0))
    a('v_cmp_gt_u32 vcc, 16, v%d' % vL)
    a('v_cndmask_b32 v%d, v%d, v%d, vcc' % (aXQW, t[6], t[0]))
    a('s_mul_i32 s%d, s%d, 72' % (sT0, sI))
    a('v_lshl_add_u32 v%d, v%d, 3, s%d' % (t[0], vN, sT0))
    a('v_cmp_gt_u32 vcc, 9, v%d' % vL)
    a('v_cndmask_b32 v%d, v%d, v%d, vcc' % (aOUT, t[7], t[0]))
    a('s_mul_i32 s%d, s%d, %d' % (sT0, sG, 16 * 1536))
    a('s_add_u32 s%d, s%d, 0x%x' % (sT0, sT0, OFF_DD))
    a('s_mul_i32 s%d, s%d, 1536' % (sT2, sI))
    a('s_lshl_b32 s%d, s%d, 9' % (sT3, sW))
    a('s_add_u32 s%d, s%d, s%d' % (sT2, sT2, sT3))
    a('s_add_u32 s%d, s%d, s%d' % (sT2, sT2, sT0))
    a('v_lshrrev_b32 v%d, 3, v%d' % (t[0], vL))
    a('v_lshl_add_u32 v%d, v%d, 6, s%d' % (t[0], t[0], sT2))
    a('v_and_b32 v%d, 3, v%d' % (t[1], vL))
    a('v_lshl_add_u32 v%d, v%d, 4, v%d' % (t[0], t[1], t[0]))
    a('v_and_b32 v%d, 4, v%d' % (t[1], vL))
    a('v_lshl_add_u32 v%d, v%d, 1, v%d' % (aDPUB, t[1], t[0]))
    a('s_mul_i32 s%d, s%d, 384' % (sT2, sW))
    a('s_add_u32 s%d, s%d, s%d' % (sT0, sT0, sT2))
    a('v_mul_u32_u24 v%d, 6144, v%d' % (t[0], vRow))
    a('v_add_u32 v%d, s%d, v%d' % (t[0], sT0, t[0]))
    a('v_lshl_add_u32 v%d, v%d, 4, v%d' % (aDG1, vN, t[0]))
    a('v_add_u32 v%d, 3072, v%d' % (aDG1b, aDG1))
    a('v_lshrrev_b32 v%d, 3, v%d' % (t[1], vN))
    a('v_mul_u32_u24 v%d, 3072, v%d' % (t[1], t[1]))
    a('v_and_b32 v%d, 7, v%d' % (t[2], vN))
    a('v_lshl_add_u32 v%d, v%d, 4, v%d' % (t[1], t[2], t[1]))
    a('v_add_u32 v%d, v%d, v%d' % (t[0], t[0], t[1]))
    a('v_add_u32 v%d, 256, v%d' % (aDG2, t[0]))
    a('s_mul_i32 s%d, s%d, 24' % (sT0, sW))
    for dst, base, src in ((aHW1, 0, vN), (aHW2, 16, t[2])):
        a('v_add_u32 v%d, s%d, v%d' % (t[0], sT0, src))
        if base:
            a('v_add_u32 v%d, %d, v%d' % (t[0], base, t[0]))
        a('v_lshrrev_b32 v%d, 5, v%d' % (t[1], t[0]))
        a('v_mul_u32_u24 v%d, 96, v%d' % (t[1], t[1]))
        a('v_and_b32 v%d, 31, v%d' % (t[0], t[0]))
        a('v_and_b32 v%d, 28, v%d' % (t[3], t[0]))
        a('v_add_u32 v%d, v%d, v%d' % (t[3], t[3], t[0]))
        a('v_lshl_add_u32 v%d, v%d, 2, v%d' % (t[3], vRow, t[3]))
        a('v_add_u32 v%d, 64, v%d' % (t[0], t[0]))
        a('v_cmp_eq_u32 vcc, 2, v%d' % vRow)
        a('v_cndmask_b32 v%d, v%d, v%d, vcc' % (t[0], t[3], t[0]))
        a('v_add_u32 v%d, v%d, v%d' % (t[0], t[0], t[1]))
        a('v_lshlrev_b32 v%d, 1, v%d' % (t[0], t[0]))
        a('v_add_u32 v%d, %d, v%d' % (t[0], L_H, t[0]))
        a('v_cmp_eq_u32 vcc, 3, v%d' % vRow)
        a('v_cndmask_b32 v%d, v%d, v%d, vcc' % (dst, t[0], t[6]))
    a('s_mul_i32 s%d, s%d, 192' % (sT0, sW))
    for j in range(7):
        a('v_add_u32 v%d, %d, v%d' % (t[0], 64 * j, vL))
        a('v_mul_u32_u24 v%d, 43691, v%d' % (t[1], t[0]))
        a('v_lshrrev_b32 v%d, 19, v%d' % (t[1], t[1]))
        a('v_mul_u32_u24 v%d, 9024, v%d' % (t[1], t[1]))
        a('v_lshl_add_u32 v%d, v%d, 4, v%d' % (t[1], t[0], t[1]))
        a('v_add_u32 v%d, s%d, v%d' % (aGU[j], sT0, t[1]))
    a('s_waitcnt lgkmcnt(0)')
    a('s_mov_b32 s%d, s%d' % (sT, sE))
    set_tags()
    stamp('prologue')
    a('s_cmp_lg_u32 s%d, 3' % sW)
    a.br('s_cbranch_scc1', 'Q_ENTRY', NW3)
    nyoung = P['k0'] + (1 if P['codepf'] else 0)
    a('s_waitcnt vmcnt(%d)' % nyoung)
    a('v_mov_b32 v%d, 0' % t[0])
    for q in range(4):
        a('v_dot2c_f32_bf16 v%d, v%d, v%d' % (t[0], G[0] + q, ONE))
    for q in range(4):
        a('v_dot2c_f32_bf16 v%d, v%d, v%d' % (t[0], G[1] + q, ONE))
    for g in ror_steps('v_add_f32', [t[0]]):
        a('\n'.join(g))
    a('v_add_f32_dpp v%d, v%d, v%d row_bcast:15 row_mask:0xa bank_mask:0xf' % (t[0], t[0], t[0]))
    a('v_add_f32_dpp v%d, v%d, v%d row_bcast:31 row_mask:0xc bank_mask:0xf' % (t[0], t[0], t[0]))
    a('v_readlane_b32 s%d, v%d, 63' % (sT0, t[0]))
    a('v_mov_b32 v%d, s%d' % (t[0], sT0))
    a('v_mul_f32 v%d, s%d, v%d' % (vMP, sINV, t[0]))
    a('v_lshlrev_b32 v%d, 16, v%d' % (XC, G[2]))
    a('v_and_b32 v%d, s%d, v%d' % (XC + 1, sHIM, G[2]))
    a('v_lshlrev_b32 v%d, 16, v%d' % (XC + 2, G[2] + 1))
    a('v_and_b32 v%d, s%d, v%d' % (XC + 3, sHIM, G[2] + 1))
    for r in range(4):
        a('v_sub_f32 v%d, v%d, v%d' % (XC + r, XC + r, vMP))
    if P['prewrite']:
        for r in range(4):
            a('v_mov_b32 v%d, 0' % (G[3] + r))
        a('buffer_store_dwordx4 %s, v%d, %s, 0 offen sc1' % (vr(G[3], 4), aTR2, srd(S_W)))
    a.jmp('XQ_WRITE_A')

    a.label('Q_ENTRY')
    a('s_barrier')
    a('ds_read_b64 %s, v%d' % (vr(XQ, 2), aXQR))
    lay_test()
    a.br('s_cbranch_scc1', 'Q_GO', L2)
    a('s_waitcnt vmcnt(%d)' % nyoung)
    a('v_lshrrev_b32 v%d, 2, v%d' % (t[0], vN))
    a('v_lshlrev_b32 v%d, 7, v%d' % (t[0], t[0]))
    a('v_lshl_add_u32 v%d, v%d, 5, v%d' % (t[0], vRow, t[0]))
    a('v_and_b32 v%d, 3, v%d' % (t[1], vL))
    a('v_lshl_add_u32 v%d, v%d, 3, v%d' % (t[0], t[1], t[0]))
    a('s_mul_i32 s%d, s%d, 4608' % (sT0, sW))
    a('s_add_u32 s%d, s%d, %d' % (sT0, sT0, L_WQ))
    a('v_add_u32 v%d, s%d, v%d' % (aTR, sT0, t[0]))
    for j in range(9):
        a('ds_read_b64_tr_b16 %s, v%d offset:%d' % (vr(WQ + 2 * j, 2), aTR, 512 * j), needs=('WQ',))
    a('s_waitcnt lgkmcnt(0)')
    for j in range(9):
        m4(ACC[j % 3], vr(ONE, 2), vr(WQ + 2 * j, 2), j < 3, 0)
    a('v_add_f32 v%d, v%d, v%d' % (t[0], ACC[0], ACC[1]))
    a('v_add_f32 v%d, v%d, v%d' % (t[0], t[0], ACC[2]))
    a('v_cvt_pk_bf16_f32 v%d, v%d, v%d' % (t[3], vTAB, t[0]))
    pub('buffer_store_dword', 'v%d' % t[3], aAPUB, 's%d' % sCQ)
    a.label('Q_GO')
    so = stats_ops()
    a('\n'.join(so[:9]))
    a('s_waitcnt lgkmcnt(0)')
    rest = so[9:]
    for j in range(9):
        m4(ACC[j % 3], vr(XQ, 2), vr(WQ + 2 * j, 2), j < 3, j)
        if j < 8:
            a(rest[j])
    pub('buffer_store_dwordx4', vr(ST, 4), aASPUB, '0')
    a('v_add_f32 v%d, v%d, v%d' % (t[0], ACC[0], ACC[1]))
    a('v_add_f32 v%d, v%d, v%d' % (t[0], t[0], ACC[2]))
    a('v_cvt_pk_bf16_f32 v%d, v%d, v%d' % (t[2], vTAB, t[0]))
    pub('buffer_store_dword', 'v%d' % t[2], aAPUB, '0')
    dump(0, t[0])
    stamp('A pub')
    a('\n'.join(resid_ops()))
    lay_test()
    a.br('s_cbranch_scc1', 'GA_PRE', L2)
    if P['pretouch']:
        a('v_subrev_u32 v%d, 8, v%d' % (t[0], vL))
        a('v_cmp_gt_u32 vcc, 20, v%d' % vL)
        a('v_mov_b32 v%d, %d' % (t[1], OFF_CG - OFF_DD - 12 * 128))
        a('v_cndmask_b32 v%d, v%d, 0, vcc' % (t[1], t[1]))
        a('v_lshl_add_u32 v%d, v%d, 7, v%d' % (t[0], t[0], t[1]))
        a('s_lshl_b32 s%d, s%d, 4' % (sT0, sG))
        a('s_add_u32 s%d, s%d, s%d' % (sT0, sT0, sI))
        a('s_mul_i32 s%d, s%d, 1536' % (sT2, sT0))
        a('s_add_u32 s%d, s%d, 0x%x' % (sT2, sT2, OFF_DD))
        a('v_add_u32 v%d, s%d, v%d' % (t[0], sT2, t[0]))
        a('s_lshl_b32 s%d, s%d, 10' % (sT2, sT0))
        a('s_add_u32 s%d, s%d, 0x%x' % (sT2, sT2, OFF_BD))
        a('v_lshl_add_u32 v%d, v%d, 7, s%d' % (t[1], vL, sT2))
        a('v_cmp_gt_u32 vcc, 8, v%d' % vL)
        a('v_cndmask_b32 v%d, v%d, v%d, vcc' % (t[0], t[0], t[1]))
        a('v_add_u32 v%d, s%d, v%d' % (t[1], sDS, aASGET))
        a('v_cmp_gt_u32 vcc, 32, v%d' % vL)
        a('v_cndmask_b32 v%d, v%d, v%d, vcc' % (t[0], t[1], t[0]))
        a('v_cmp_gt_u32 vcc, 48, v%d' % vL)
        a('v_cndmask_b32 v%d, v%d, v%d, vcc' % (t[0], aBSGET, t[0]))
        a('buffer_load_dword v%d, v%d, %s, 0 offen sc1' % (vDUM, t[0], srd(S_W)), dummy=1)
    wave16k()
    for j in range(P['k0'], 16):
        kdma(j)
    a.label('GCQ_ISSUE')
    for q in range(4):
        gload(G2[q], aAGET, 's%d' % sCQ, 1024 * q)
    gload(G[4], aASGET, '0')
    for q in range(4):
        gload(G[q], aAGET, '0', 1024 * q)
    a('s_cmp_eq_u32 s%d, 1' % sSLOT)
    a.br('s_cbranch_scc1', 'GCQ_AGAIN', lambda c: c.get('_vhead', False))
    a.act(lambda c: c.__setitem__('_vhead', True))
    a('s_mov_b32 s%d, 1' % sSLOT)
    for j in range(P['v0']):
        vdma(j)
    a('s_waitcnt vmcnt(%d)' % (P['v0'] + 9))
    a('v_lshlrev_b32 v%d, 8, v%d' % (t[0], vL))
    a('v_lshl_add_u32 v%d, v%d, 4, v%d' % (t[0], vN, t[0]))
    a('v_add_u32 v%d, s%d, v%d' % (aTR, sT1, t[0]))
    for p in range(16):
        a('v_xor_b32 v%d, %d, v%d' % (t[p & 1], 16 * p, aTR))
        a('ds_read_b128 %s, v%d' % (ar(A_K + 4 * p, 4), t[p & 1]), needs=('K',))
    a('s_waitcnt vmcnt(%d)' % P['v0'])
    a.jmp('GCQ_CHECK')
    a.label('GCQ_AGAIN')
    a('s_waitcnt vmcnt(0)')
    a.label('GCQ_CHECK')
    for q in range(4):
        m16(ACC[1], vr(SEL4, 4), vr(G2[q], 4), '0' if q == 0 else vr(ACC[1], 4))
        chk_ab(vE2, G2[q], q == 0)
    a('v_cmp_ne_u16 vcc, 0, v%d' % vE2)
    a('s_cmp_lg_u64 vcc, 0')
    retry('CQ', 'GCQ_ISSUE')
    a('v_mov_b32 v%d, v%d' % (CSQ, ACC[1]))
    a('s_mov_b32 s%d, 0' % sSLOT)

    def a_reduce(waits):
        lo = ln_ops(G[4])
        a('v_cmp_ne_u32 s[%d:%d], s%d, v%d' % (sP, sP + 1, sT, G[4] + 3))
        a('\n'.join(lo[0]))
        for q in range(4):
            if waits:
                a('s_waitcnt vmcnt(%d)' % (3 - q))
            m16(ACC[0], vr(SEL4, 4), vr(G[q], 4), '0' if q == 0 else vr(ACC[0], 4))
            chk_ab(vE2, G[q], q == 0)
            a('\n'.join(lo[1 + q]))
        a('v_cmp_ne_u16 vcc, 0, v%d' % vE2)
        a('\n'.join(lo[5]))
        a('s_or_b64 vcc, vcc, s[%d:%d]' % (sP, sP + 1))
        return lo
    a_reduce(False)
    a.jmp('GA_CHECK')
    a.label('GA_PRE')
    if P['ackwait']:
        a('s_waitcnt vmcnt(0)')
    a.label('GA_ISSUE')
    gload(G[4], aASGET, '0')
    for q in range(4):
        gload(G[q], aAGET, '0', 1024 * q)
    a('s_waitcnt vmcnt(4)')
    lo = a_reduce(True)
    a.label('GA_CHECK')
    retry('A', 'GA_ISSUE')
    a('\n'.join(lo[6]))
    a('v_fma_f32 v%d, -v%d, v%d, v%d' % (t[0], vDM, CSQ, ACC[0]))
    a('v_mul_f32 v%d, v%d, v%d' % (t[0], t[0], vRS))
    a('v_cvt_pk_bf16_f32 v%d, v%d, v%d' % (t[1], t[0], t[0]))
    a('ds_write_b16 v%d, v%d' % (aQW, t[1]))
    dump(1, t[0])
    a('s_waitcnt lgkmcnt(0)')
    a('s_barrier')
    a('ds_read_b64 %s, v%d' % (vr(QA, 2), aQR))
    a('ds_read_b64 %s, v%d offset:128' % (vr(QA + 2, 2), aQR))
    stamp('q ready')
    a('\n'.join(newmean_ops()))
    lay_test()
    a.br('s_cbranch_scc1', 'S_GO', L2)
    a('v_cmp_ne_u32 vcc, s%d, v%d' % (sXCC, G[4] + 2))
    a('s_cmp_eq_u64 vcc, 0')
    if P['forceslow']:
        a('s_cmp_eq_u32 s%d, 77' % sW)
    a('s_cselect_b32 s%d, 0x%x, 0' % (S_F + 2, WS_USED))
    a('s_cselect_b32 s%d, 0, 0x%x' % (S_S + 2, WS_USED))
    wave16k()
    for j in range(P['v0'], 16):
        vdma(j)
    a.label('S_GO')
    a('s_waitcnt lgkmcnt(0)')
    for j in range(32):
        m4(ACC[j % 3], vr(QA + 2 * (j >> 4), 2), ar(A_K + 2 * j, 2), j < 3, j & 15)
    a('v_pk_add_f32 %s, %s, %s' % (vr(Y, 2), vr(ACC[2], 2), vr(ACC[0], 2)))
    a('v_pk_add_f32 %s, %s, %s' % (vr(Y, 2), vr(Y, 2), vr(ACC[1], 2)))
    a('v_mul_f32 v%d, s%d, v%d' % (Y, sC, Y))
    a('v_mul_f32 v%d, s%d, v%d' % (Y + 1, sC, Y + 1))
    dump(2, Y)
    for g in ror_steps('v_max_f32', [PSV, PSV + 2], [Y, Y + 1]):
        a('\n'.join(g))
    for bc, rm in ((15, '0xa'), (31, '0xc')):
        for r in (PSV, PSV + 2):
            a('v_max_f32_dpp v%d, v%d, v%d row_bcast:%d row_mask:%s bank_mask:0xf' % (r, r, r, bc, rm))
    a('v_ceil_f32 v%d, v%d' % (PSV, PSV))
    a('v_ceil_f32 v%d, v%d' % (PSV + 2, PSV + 2))
    a('v_readlane_b32 s%d, v%d, 63' % (sR0, PSV))
    a('v_readlane_b32 s%d, v%d, 63' % (sR1, PSV + 2))
    a('v_subrev_f32 v%d, s%d, v%d' % (Y, sR0, Y))
    a('v_subrev_f32 v%d, s%d, v%d' % (Y + 1, sR1, Y + 1))
    a('v_exp_f32 v%d, v%d' % (Y, Y))
    a('v_exp_f32 v%d, v%d' % (Y + 1, Y + 1))
    a('v_cvt_pk_bf16_f32 v%d, v%d, v%d' % (t[0], Y, Y + 1))
    a('v_mov_b32_dpp v%d, v%d quad_perm:[1,0,3,2]%s' % (t[1], t[0], DPP))
    a('v_perm_b32 v%d, v%d, v%d, v%d' % (PA, t[1], t[0], vSELH))
    a('v_mov_b32_dpp v%d, v%d quad_perm:[2,3,2,3]%s' % (PA + 1, PA, DPP))
    stamp('p ready')
    lay_test()
    a.br('s_cbranch_scc1', 'PV_GO', L2)
    a('s_mov_b32 s%d, s%d' % (sT2, sW))
    for k in range(5):
        tall_dma(S_WO, L_WO, sT2, 4 * k, 'WO')
    n3 = 5
    if P['gu3']:
        a('s_cmp_eq_u32 s%d, 3' % sW)
        a.br('s_cbranch_scc1', 'NOGU3', W3)
        a('s_mul_i32 s%d, s%d, 13824' % (sT2, sW))
        for k in range(P['gu3']):
            gudma(k)
        a.label('NOGU3')
    a('v_lshrrev_b32 v%d, 2, v%d' % (t[0], vN))
    a('v_lshlrev_b32 v%d, 2, v%d' % (t[1], t[0]))
    a('v_bfe_u32 v%d, v%d, 1, 1' % (t[2], vL))
    a('v_lshl_add_u32 v%d, v%d, 1, v%d' % (t[2], vRow, t[2]))
    a('v_xor_b32 v%d, v%d, v%d' % (t[2], t[2], t[1]))
    a('v_lshlrev_b32 v%d, 8, v%d' % (t[0], t[0]))
    a('v_lshl_add_u32 v%d, v%d, 4, v%d' % (t[0], t[2], t[0]))
    a('v_and_b32 v%d, 1, v%d' % (t[1], vL))
    a('v_lshl_add_u32 v%d, v%d, 3, v%d' % (t[0], t[1], t[0]))
    wave16k()
    a('s_add_u32 s%d, s%d, %d' % (sT1, sT1, L_V))
    a('v_add_u32 v%d, s%d, v%d' % (aTR, sT1, t[0]))
    a('v_xor_b32 v%d, 128, v%d' % (aTR2, aTR))
    for grp in range(4):
        if P['gu3']:
            a('s_cmp_eq_u32 s%d, 3' % sW)
            a.br('s_cbranch_scc1', 'VW3_%d' % grp, W3)
            a('s_waitcnt vmcnt(%d)' % (n3 + P['gu3'] + 12 - 4 * grp))
            a.jmp('VW_%d' % grp)
            a.label('VW3_%d' % grp)
        a('s_waitcnt vmcnt(%d)' % (n3 + 12 - 4 * grp))
        a.label('VW_%d' % grp)
        for b in range(4 * grp, 4 * grp + 4):
            for eta in range(2):
                a('ds_read_b64_tr_b16 %s, v%d offset:%d' % (ar(A_V + 4 * b + 2 * eta, 2), aTR2 if eta else aTR, 1024 * b),
                  needs=('V%d' % grp,))
    a('s_waitcnt lgkmcnt(0)')
    a.label('PV_GO')
    ls = []
    for g in ror_steps('v_add_f32', [PSV + 1, PSV + 3], [Y, Y + 1]):
        ls += g
    for bc, rm in ((15, '0xa'), (31, '0xc')):
        for r in (PSV + 1, PSV + 3):
            ls.append('v_add_f32_dpp v%d, v%d, v%d row_bcast:%d row_mask:%s bank_mask:0xf' % (r, r, r, bc, rm))
    k = 0
    for b in range(16):
        for eta in range(2):
            m4(ACC[2 * (b & 1) + eta], vr(PA, 2), ar(A_V + 4 * b + 2 * eta, 2), b < 2, b)
            if k < len(ls):
                a(ls[k])
                k += 1
    a('ds_write_b128 v%d, %s' % (aPSW, vr(PSV, 4)))
    a('v_pk_add_f32 %s, %s, %s' % (vr(PO, 2), vr(ACC[0], 2), vr(ACC[2], 2)))
    a('v_pk_add_f32 %s, %s, %s' % (vr(PO + 2, 2), vr(ACC[1], 2), vr(ACC[3], 2)))
    a('ds_write2st64_b32 v%d, v%d, v%d offset0:0 offset1:8' % (aPOW, PO, PO + 1))
    a('ds_write2st64_b32 v%d, v%d, v%d offset0:4 offset1:12' % (aPOW, PO + 2, PO + 3))
    a('s_waitcnt lgkmcnt(0)')
    a('s_barrier')
    a('ds_read2_b64 %s, v%d offset0:0 offset1:2' % (vr(PS, 4), aPSR))
    a('ds_read2_b64 %s, v%d offset0:4 offset1:6' % (vr(PS + 4, 4), aPSR))
    a('ds_read2st64_b32 %s, v%d offset0:0 offset1:1' % (vr(PO, 2), aPOR))
    a('ds_read2st64_b32 %s, v%d offset0:2 offset1:3' % (vr(PO + 2, 2), aPOR))
    a('s_waitcnt lgkmcnt(2)')
    a('v_max3_f32 v%d, v%d, v%d, v%d' % (BST, PS, PS + 2, PS + 4))
    a('v_max_f32 v%d, v%d, v%d' % (BST, BST, PS + 6))
    for q in range(4):
        a('v_sub_f32 v%d, v%d, v%d' % (PS + 2 * q, PS + 2 * q, BST))
    for q in range(4):
        a('v_exp_f32 v%d, v%d' % (PS + 2 * q, PS + 2 * q))
    a('s_waitcnt lgkmcnt(0)')
    a('v_mul_f32 v%d, v%d, v%d' % (t[0], PS, PO))
    for q in range(1, 4):
        a('v_fmac_f32 v%d, v%d, v%d' % (t[0], PS + 2 * q, PO + q))
    a('v_cvt_pk_bf16_f32 v%d, v%d, v%d' % (t[2], vTAB, t[0]))
    pub('buffer_store_dword', 'v%d' % t[2], aAPUB, 's%d' % sBD)
    a('v_mul_f32 v%d, v%d, v%d' % (BST + 1, PS, PS + 1))
    for q in range(1, 4):
        a('v_fmac_f32 v%d, v%d, v%d' % (BST + 1, PS + 2 * q, PS + 2 * q + 1))
    pub('buffer_store_dwordx4', vr(BST, 4), aBSPUB, '0')
    dump(3, t[0])
    stamp('B pub')
    if P['ackwait']:
        a('s_waitcnt vmcnt(0)')
    a.label('GB_ISSUE')
    gload(G[4], aBSGET, '0')
    for q in range(4):
        gload(G[q], aAGET, 's%d' % sBD, 1024 * q)
    a('s_waitcnt vmcnt(4)')
    a('v_cmp_ne_u32 s[%d:%d], s%d, v%d' % (sP, sP + 1, sT, G[4] + 3))
    for g in ror_steps('v_max_f32', [vE0], [G[4]]):
        a('\n'.join(g))
    a('v_sub_f32 v%d, v%d, v%d' % (vE0, G[4], vE0))
    a('v_exp_f32 v%d, v%d' % (vE0, vE0))
    a('v_mul_f32 v%d, v%d, v%d' % (vE1, vE0, G[4] + 1))
    lsum = [g[0] for g in ror_steps('v_add_f32', [vE1])]
    for q in range(4):
        for d in range(4):
            a('v_and_b32_dpp v%d, v%d, v%d row_newbcast:%d%s' % (AW[q] + d, vE0, MASK4 + d, q, DPP))
        a(lsum[q])
        a('s_waitcnt vmcnt(%d)' % (3 - q))
        chk_ab(vE2, G[q], q == 0)
        m16(ACC[0], vr(AW[q], 4), vr(G[q], 4), '0' if q == 0 else vr(ACC[0], 4))
    a('v_cmp_ne_u16 vcc, 0, v%d' % vE2)
    a('v_rcp_f32 v%d, v%d' % (vE1, vE1))
    a('s_or_b64 vcc, vcc, s[%d:%d]' % (sP, sP + 1))
    retry('B', 'GB_ISSUE')
    a('v_mul_f32 v%d, v%d, v%d' % (t[0], ACC[0], vE1))
    a('v_cvt_pk_bf16_f32 v%d, v%d, v%d' % (t[1], t[0], t[0]))
    a('ds_write_b16 v%d, v%d offset:%d' % (aQW, t[1], L_O - L_Q))
    dump(4, t[0])
    a('s_waitcnt lgkmcnt(0)')
    a('s_barrier', needs=('WO',))
    stamp('o ready')
    a('s_cmp_eq_u32 s%d, 3' % sW)
    a.br('s_cbranch_scc1', 'W3_C', W3)

    def tall_addr(region):
        a('v_lshrrev_b32 v%d, 2, v%d' % (t[0], vN))
        a('v_lshl_add_u32 v%d, v%d, 3, v%d' % (t[0], vRow, t[0]))
        a('v_mul_u32_u24 v%d, 80, v%d' % (t[0], t[0]))
        a('v_and_b32 v%d, 3, v%d' % (t[1], vL))
        a('v_lshl_add_u32 v%d, v%d, 3, v%d' % (t[0], t[1], t[0]))
        a('s_and_b32 s%d, s%d, 1' % (sT0, sI))
        a('s_lshl_b32 s%d, s%d, 3' % (sT0, sT0))
        a('s_mul_i32 s%d, s%d, 24' % (sT3, sW))
        a('s_add_u32 s%d, s%d, s%d' % (sT0, sT0, sT3))
        a('s_add_u32 s%d, s%d, %d' % (sT0, sT0, region))
        a('v_add_u32 v%d, s%d, v%d' % (aTR, sT0, t[0]))

    def tall_stage(nk, AB, ldsoff):
        for k in range(nk):
            a('s_waitcnt lgkmcnt(%d)' % (nk - 1 - k))
            m16(ACC[0], ar(AB + 4 * k, 4), vr(OP + 4 * k, 4), '0' if k == 0 else vr(ACC[0], 4))
        a('v_cvt_pk_bf16_f32 v%d, v%d, v%d' % (XG, ACC[0], ACC[0] + 1))
        a('v_cvt_pk_bf16_f32 v%d, v%d, v%d' % (XG + 1, ACC[0] + 2, ACC[0] + 3))
        a('buffer_store_dwordx4 %s, v%d, %s, s%d offen sc1' % (vr(XG, 4), aXPUB, srd(S_W), sSLOT))

    lay_test()
    a.br('s_cbranch_scc1', 'O_GO', L2)
    a('s_mul_i32 s%d, s%d, 13824' % (sT2, sW))
    for k in range(P['gu3'], P['gu3'] + P['gu4']):
        gudma(k)
    tall_addr(L_WO)
    for k in range(8):
        for u in range(2):
            a('ds_read_b64_tr_b16 %s, v%d offset:%d' % (ar(A_WO + 4 * k + 2 * u, 2), aTR, 2560 * k + 320 * u))
    a('s_waitcnt lgkmcnt(0)')
    a.label('O_GO')
    for k in range(8):
        a('ds_read_b128 %s, v%d offset:%d' % (vr(OP + 4 * k, 4), aOR, 64 * k))
    tall_stage(8, A_WO, 0)
    dump(5, ACC[0])
    stamp('C pub')
    lay_test()
    a.br('s_cbranch_scc1', 'C_WAIT', L2)
    a('s_mul_i32 s%d, s%d, 13824' % (sT2, sW))
    for k in range(P['gu3'] + P['gu4'], 14):
        gudma(k)
    if P['xbar']:
        a('s_waitcnt vmcnt(%d)' % (14 - P['gu3'] - P['gu4']))
        a('s_barrier')
    a('v_lshrrev_b32 v%d, 2, v%d' % (t[0], vN))
    a('v_mul_u32_u24 v%d, 192, v%d' % (t[0], t[0]))
    a('s_add_u32 s%d, s%d, %d' % (sT2, sT2, L_GU))
    a('v_add_u32 v%d, s%d, v%d' % (t[0], sT2, t[0]))
    a('v_and_b32 v%d, 3, v%d' % (t[1], vL))
    a('v_lshl_add_u32 v%d, v%d, 2, v%d' % (t[2], vRow, t[1]))
    a('v_lshl_add_u32 v%d, v%d, 3, v%d' % (aTR, t[2], t[0]))
    a('v_lshrrev_b32 v%d, 1, v%d' % (t[2], t[2]))
    a('v_lshl_add_u32 v%d, v%d, 3, v%d' % (t[0], t[2], t[0]))
    a('v_and_b32 v%d, 1, v%d' % (t[1], vL))
    a('v_mul_u32_u24 v%d, 6912, v%d' % (t[1], t[1]))
    a('v_add_u32 v%d, v%d, v%d' % (aTR2, t[0], t[1]))
    a('s_waitcnt vmcnt(0)')
    for j in range(9):
        a('ds_read_b64_tr_b16 %s, v%d offset:%d' % (ar(A_GU + 2 * j, 2), aTR, 768 * j), needs=('GU',))
        a('ds_read_b64_tr_b16 %s, v%d offset:%d' % (ar(A_GU + 18 + 2 * j, 2), aTR, 6912 + 768 * j), needs=('GU',))
        a('ds_read_b64_tr_b16 %s, v%d offset:%d' % (ar(A_GU + 36 + 2 * j, 2), aTR2, 128 + 768 * j), needs=('GU',))
    a('s_waitcnt lgkmcnt(0)')
    for j in range(9):
        for b in range(3):
            m4(ACC[b], vr(ONE, 2), ar(A_GU + 18 * b + 2 * j, 2), j == 0, 0)
    a('v_cvt_pk_bf16_f32 v%d, v%d, v%d' % (PK2, ACC[0], ACC[1]))
    a('v_cvt_pk_bf16_f32 v%d, v%d, v%d' % (PK2 + 1, ACC[2], vTD))
    pub('buffer_store_dwordx2', vr(PK2, 2), aDPUB, 's%d' % sCG)
    a.jmp('G_ENTRY')
    a.label('C_WAIT')
    if P['xbar']:
        a('s_waitcnt vmcnt(0)')
        a('s_barrier')
    a.label('G_ENTRY')
    a('s_barrier')
    a('ds_read_b64 %s, v%d' % (vr(XQ, 2), aXQR))
    a('s_add_u32 s%d, s%d, 0x10000' % (sSLOT, sSLOT))
    a('s_waitcnt lgkmcnt(0)')
    for j in range(9):
        for b in range(3):
            m4(ACC[b], vr(XQ, 2), ar(A_GU + 18 * b + 2 * j, 2), j == 0, j)
    a('v_cvt_pk_bf16_f32 v%d, v%d, v%d' % (PK2, ACC[0], ACC[1]))
    a('v_cvt_pk_bf16_f32 v%d, v%d, v%d' % (PK2 + 1, ACC[2], vTD))
    pub('buffer_store_dwordx2', vr(PK2, 2), aDPUB, '0')
    dump(6, ACC[0])
    a.label('GD_PRE')
    stamp('D pub')
    lay_test()
    a.br('s_cbranch_scc1', 'GD_ACK', L2)
    a.label('GCG_ISSUE')
    gload(G2[0], aDG1, 's%d' % sCG)
    gload(G2[1], aDG1, 's%d' % sCG, 1536)
    gload(G2[2], aDG1b, 's%d' % sCG)
    gload(G2[3], aDG1b, 's%d' % sCG, 1536)
    gload(G2[4], aDG2, 's%d' % sCG)
    gload(G2[5], aDG2, 's%d' % sCG, 1536)
    a('s_waitcnt vmcnt(0)')
    for q in range(4):
        m16(ACC[2], vr(SELD, 4), vr(G2[q], 4), '0' if q == 0 else vr(ACC[2], 4))
    for q in range(2):
        m16(ACC[3], vr(SELD, 4), vr(G2[4 + q], 4), '0' if q == 0 else vr(ACC[3], 4))
    for q in range(3):
        chk_d(vE2, G2[2 * q], G2[2 * q + 1], q == 0)
    a('v_cmp_lt_u32 vcc, 0xffff, v%d' % vE2)
    a('s_cmp_lg_u64 vcc, 0')
    retry('CG', 'GCG_ISSUE')
    a('v_mov_b32 v%d, v%d' % (CSG, ACC[2]))
    a('v_mov_b32 v%d, v%d' % (CSG + 1, ACC[2] + 1))
    a('v_add_f32_dpp v%d, v%d, v%d row_ror:8%s' % (CSG + 2, ACC[3], ACC[3], DPP))
    a('v_add_f32_dpp v%d, v%d, v%d row_ror:8%s' % (CSG + 3, ACC[3] + 1, ACC[3] + 1, DPP))
    a.label('GD_ACK')
    if P['ackwait']:
        a('s_waitcnt vmcnt(0)')
    a.label('GD_ISSUE')
    gload(G[6], aASGET, 's%d' % sDS)
    gload(G[4], aDG2, '0')
    gload(G[5], aDG2, '0', 1536)
    gload(G[0], aDG1, '0')
    gload(G[1], aDG1, '0', 1536)
    gload(G[2], aDG1b, '0')
    gload(G[3], aDG1b, '0', 1536)
    a('s_waitcnt vmcnt(6)')
    lo = ln_ops(G[6])
    a('v_cmp_ne_u32 s[%d:%d], s%d, v%d' % (sP, sP + 1, sT, G[6] + 3))
    a('\n'.join(lo[0]))
    a('s_waitcnt vmcnt(5)')
    m16(ACC[1], vr(SELD, 4), vr(G[4], 4), '0')
    a('\n'.join(lo[1]))
    a('s_waitcnt vmcnt(4)')
    m16(ACC[1], vr(SELD, 4), vr(G[5], 4), vr(ACC[1], 4))
    chk_d(vE2, G[4], G[5], True)
    a('\n'.join(lo[2]))
    a('s_waitcnt vmcnt(3)')
    m16(ACC[0], vr(SELD, 4), vr(G[0], 4), '0')
    a('\n'.join(lo[3]))
    a('s_waitcnt vmcnt(2)')
    m16(ACC[0], vr(SELD, 4), vr(G[1], 4), vr(ACC[0], 4))
    chk_d(vE2, G[0], G[1], False)
    a('\n'.join(lo[4] + lo[5] + lo[6]))
    a('s_waitcnt vmcnt(1)')
    m16(ACC[0], vr(SELD, 4), vr(G[2], 4), vr(ACC[0], 4))
    a('v_add_f32_dpp v%d, v%d, v%d row_ror:8%s' % (t[4], ACC[1], ACC[1], DPP))
    a('v_add_f32_dpp v%d, v%d, v%d row_ror:8%s' % (t[5], ACC[1] + 1, ACC[1] + 1, DPP))
    a('v_mul_f32 v%d, v%d, v%d' % (vRS, vRS, vRS))
    a('s_waitcnt vmcnt(0)')
    m16(ACC[0], vr(SELD, 4), vr(G[3], 4), vr(ACC[0], 4))
    chk_d(vE2, G[2], G[3], False)
    a('v_cmp_lt_u32 vcc, 0xffff, v%d' % vE2)
    a('v_fma_f32 v%d, -v%d, v%d, v%d' % (t[4], vDM, CSG + 2, t[4]))
    a('v_fma_f32 v%d, -v%d, v%d, v%d' % (t[5], vDM, CSG + 3, t[5]))
    a('s_or_b64 vcc, vcc, s[%d:%d]' % (sP, sP + 1))
    retry('D', 'GD_ISSUE')
    a('v_mul_f32 v%d, v%d, v%d' % (t[4], t[4], vRS))
    a('v_mul_f32 v%d, v%d, v%d' % (t[4], t[4], t[5]))
    a('v_fma_f32 v%d, -v%d, v%d, v%d' % (t[0], vDM, CSG, ACC[0]))
    a('v_fma_f32 v%d, -v%d, v%d, v%d' % (t[1], vDM, CSG + 1, ACC[0] + 1))
    a('v_mul_f32 v%d, v%d, v%d' % (t[0], t[0], vRS))
    a('v_mul_f32 v%d, v%d, v%d' % (t[0], t[0], t[1]))
    a('v_cvt_pk_bf16_f32 v%d, v%d, v%d' % (t[1], t[0], t[4]))
    a('ds_write_b16 v%d, v%d' % (aHW1, t[1]))
    a('ds_write_b16_d16_hi v%d, v%d' % (aHW2, t[1]))
    dump(7, t[0])
    a('s_waitcnt lgkmcnt(0)')
    a('s_barrier', needs=('WD',))
    stamp('h ready')
    a('s_cmp_eq_u32 s%d, 3' % sW)
    a.br('s_cbranch_scc1', 'W3_E', W3)
    lay_test()
    a.br('s_cbranch_scc1', 'D_GO', L2)
    tall_addr(L_WD)
    for k in range(9):
        for u in range(2):
            a('ds_read_b64_tr_b16 %s, v%d offset:%d' % (ar(A_WD + 4 * k + 2 * u, 2), aTR, 2560 * k + 320 * u))
    a('s_waitcnt lgkmcnt(0)')
    a.label('D_GO')
    for k in range(9):
        a('ds_read_b128 %s, v%d offset:%d' % (vr(OP + 4 * k, 4), aOR, L_H - L_O + 64 * k))
    tall_stage(9, A_WD, 0)
    dump(8, ACC[0])
    stamp('E pub')
    if P['xbar']:
        a('s_waitcnt vmcnt(0)')
        a('s_barrier')
    lay_test()
    a.br('s_cbranch_scc1', 'FINISH', L2)
    a('s_add_u32 s%d, s%d, 0x10000' % (sSLOT, sSLOT))
    a('s_mov_b32 s%d, 1' % sLAY)
    a.act(lambda c: c.__setitem__('layer', 1))
    set_tags()
    a.jmp('Q_ENTRY')

    def xgather(tag):
        a.label('GX_ISSUE_' + tag)
        for q in range(4):
            gload(G[q], aXGET, 's%d' % sSLOT, 256 * q)
        for q in range(4):
            a('s_waitcnt vmcnt(%d)' % (3 - q))
            m16(XC, vr(SELX, 4), vr(G[q], 4), vr(CI, 4) if q == 0 else vr(XC, 4))
            if q & 1:
                a('v_bitop3_b32 v%d, v%d, v%d, s%d bitop3:0x7e' % (t[q >> 1], G[q - 1] + 3, G[q] + 3, sT))
        a('v_or_b32 v%d, v%d, v%d' % (t[0], t[0], t[1]))
        a('v_cmp_ne_u32 vcc, 0, v%d' % t[0])
        a('s_cmp_lg_u64 vcc, 0')
        retry(tag, 'GX_ISSUE_' + tag)

    def xq_write():
        a('v_cvt_pk_bf16_f32 v%d, v%d, v%d' % (PK2, XC, XC + 1))
        a('v_cvt_pk_bf16_f32 v%d, v%d, v%d' % (PK2 + 1, XC + 2, XC + 3))
        a('ds_write_b64 v%d, %s' % (aXQW, vr(PK2, 2)))
        a('s_waitcnt lgkmcnt(0)')

    a.label('W3_C')
    lay_test()
    a.br('s_cbranch_scc1', 'W3_C2', L2)
    a('s_mov_b32 s%d, 0' % sT2)
    for k in range(P['wd4']):
        tall_dma(S_WD, L_WD, sT2, k, 'WD', half=(k == 22))
    a.label('W3_C2')
    if P['xbar']:
        a('s_barrier')
    xgather('C')
    xq_write()
    a('s_barrier')
    stamp('x1 ready(w3)')
    a('\n'.join(stats_ops()))
    pub('buffer_store_dwordx4', vr(ST, 4), aASPUB, 's%d' % sDS)
    a('s_add_u32 s%d, s%d, 0x10000' % (sSLOT, sSLOT))
    dump(9, XC)
    a('\n'.join(resid_ops()))
    lay_test()
    a.br('s_cbranch_scc1', 'W3_EPOCH', L2)
    a('s_mov_b32 s%d, 0' % sT2)
    for k in range(P['wd4'], 23):
        tall_dma(S_WD, L_WD, sT2, k, 'WD', half=(k == 22))
    a.jmp('GD_PRE')
    a.label('W3_EPOCH')
    a('s_cmp_lg_u32 s2, 0')
    a.br('s_cbranch_scc1', 'GD_PRE', lambda c: not c['final'])
    a('v_mov_b32 v%d, 0' % t[0])
    a('s_mov_b64 exec, 1')
    a('buffer_store_dword v%d, v%d, %s, 0 offen' % (XG + 3, t[0], srd(S_W)))
    a('s_mov_b64 exec, -1')
    a.jmp('GD_PRE')

    a.label('W3_E')
    a('\n'.join(newmean_ops()))
    if P['xbar']:
        a('s_barrier')
    lay_test()
    a.br('s_cbranch_scc0', 'W3_E2', L1)
    a('s_cmp_lg_u32 s%d, s%d' % (sG, sI))
    a.br('s_cbranch_scc1', 'FINISH', lambda c: not c['final'])
    a.label('W3_E2')
    xgather('E')
    dump(10, XC)
    lay_test()
    a.br('s_cbranch_scc1', 'W3_OUT', L2)
    a('s_add_u32 s%d, s%d, 0x10000' % (sSLOT, sSLOT))
    a('s_mov_b32 s%d, 1' % sLAY)
    a.act(lambda c: c.__setitem__('layer', 1))
    xq_write()
    a.jmp('W3_TAGS')
    a.label('XQ_WRITE_A')
    xq_write()
    a.jmp('Q_ENTRY')
    a.label('W3_TAGS')
    a('s_barrier')
    a('ds_read_b64 %s, v%d' % (vr(XQ, 2), aXQR))
    set_tags()
    a.jmp('Q_GO')
    a.label('W3_OUT')
    for r in range(4):
        a('v_add_f32 v%d, v%d, v%d' % (XR + r, XC + r, vMP))
    a('v_cvt_pk_bf16_f32 v%d, v%d, v%d' % (PK2, XR, XR + 1))
    a('v_cvt_pk_bf16_f32 v%d, v%d, v%d' % (PK2 + 1, XR + 2, XR + 3))
    a('buffer_store_dwordx2 %s, v%d, %s, 0 offen' % (vr(PK2, 2), aOUT, srd(S_OUT)))
    a.label('FINISH')
    if P['burn']:
        a('s_mov_b32 s%d, %d' % (sT0, P['burn']))
        a.label('BURN')
        for _ in range(8):
            a('s_nop 15')
        a('s_sub_u32 s%d, s%d, 1' % (sT0, sT0))
        a('s_cmp_lg_u32 s%d, 0' % sT0)
        a.br('s_cbranch_scc1', 'BURN', lambda c: False)
    if P['hold']:
        a.label('HOLD')
        a('s_memrealtime s[%d:%d]' % (sTS, sTS + 1))
        a('s_waitcnt lgkmcnt(0)')
        a('s_sub_u32 s%d, s%d, s3' % (sT0, sTS))
        a('s_cmp_lt_u32 s%d, %d' % (sT0, P['hold']))
        a.br('s_cbranch_scc1', 'HOLD', lambda c: False)
    if P['stamps']:
        stamp('end')
        a('s_memrealtime s[%d:%d]' % (sTS, sTS + 1))
        a('s_waitcnt lgkmcnt(0)')
        a('v_writelane_b32 v%d, s%d, 31' % (vTS, sTS))
        a('s_mov_b32 s%d, 0x%x' % (sT3, OFF_DBG))
        a('buffer_store_dword v%d, v%d, %s, s%d offen' % (vTS, aDM, srd(S_W), sT3))
    a.label('END')
    a('s_endpgm')
    for tag, issue in retry_blocks:
        a.label('RETRY_' + tag)
        a('s_sub_u32 s%d, s%d, 1' % (sBUD, sBUD))
        a.br('s_cbranch_scc0', issue, lambda c: True)
        a('s_mov_b32 s%d, 0' % sBUD)
        a.jmp('CONT_' + tag)
    a.label('CODE_END')

    ctxs = []
    for w in (0, 3):
        for fin in (True, False):
            for rt in (False, True):
                ctxs.append(lambda w=w, fin=fin, rt=rt: dict(layer=0, wave=w, final=fin, retry=rt,
                                                              name='w%d fin%d retry%d' % (w, fin, rt)))
    a.fix_hazards(ctxs)
    errs = a.check_waits(ctxs)
    return a, errs, v.n, names


HEADER = '''; Persistent decode kernel: 256 workgroups (one per CU) keep K, V and all weights on chip for both layers.
; @launch grid=(256,1,1) block=(256,1,1) lds=%d
.amdgcn_target "amdgcn-amd-amdhsa--gfx950"
.text
.globl %s
.p2align 8
.type %s,@function
%s:
'''
FOOTER = '''.section .rodata,"a"
.p2align 6
.amdhsa_kernel %s
  .amdhsa_next_free_vgpr 512
  .amdhsa_next_free_sgpr 102
  .amdhsa_accum_offset 256
  .amdhsa_group_segment_fixed_size 0
  .amdhsa_kernarg_size 96
  .amdhsa_user_sgpr_count 2
  .amdhsa_user_sgpr_kernarg_segment_ptr 1
  .amdhsa_system_sgpr_workgroup_id_x 1
.end_amdhsa_kernel
'''


def render(**kw):
    a, errs, nv, names = build(**kw)
    txt = HEADER % (LDS_BYTES, KNAME, KNAME, KNAME) + a.text() + FOOTER % KNAME
    return txt, a, errs, nv, names


if __name__ == '__main__':
    out = sys.argv[1]
    kw = {}
    for s in sys.argv[2:]:
        k, x = s.split('=')
        kw[k] = int(x)
    txt, a, errs, nv, names = render(**kw)
    for e in sorted(set(errs)):
        print('WAIT ERROR', e)
    open(out, 'w').write(txt)
    print('vgprs', nv, 'lds', LDS_BYTES, 'pads', sum(p for p, _ in a.pads()), 'stamps', ','.join(names))
    if errs:
        sys.exit(1)
```

```python
import re

REG_RE = re.compile(r'\b([vas])(?:(\d+)|\[(\d+):(\d+)\])')
NO_DST_SALU = ('s_cmp', 's_cbranch', 's_waitcnt', 's_barrier', 's_nop', 's_branch', 's_setprio',
               's_sleep', 's_endpgm', 's_bitcmp')
TRANS = ('v_exp_f32', 'v_rcp_f32', 'v_rsq_f32', 'v_sqrt_f32', 'v_log_f32')


def regs_of(tok):
    tok = tok.strip()
    out = set()
    if tok in ('vcc', 'exec', 'm0'):
        return {(tok, 0)}
    if tok in ('vcc_lo', 'vcc_hi'):
        return {('vcc', 0)}
    if tok in ('exec_lo', 'exec_hi'):
        return {('exec', 0)}
    for m in REG_RE.finditer(tok):
        k = m.group(1)
        if m.group(2) is not None:
            out.add((k, int(m.group(2))))
        else:
            for n in range(int(m.group(3)), int(m.group(4)) + 1):
                out.add((k, n))
    return out


class Ins:
    def __init__(self, text, **meta):
        self.text = text
        self.meta = meta
        self.pad = 0
        t = text.split(';')[0].strip()
        parts = t.split(None, 1)
        self.op = parts[0]
        rest = parts[1] if len(parts) > 1 else ''
        ops = [o.strip() for o in rest.split(',')] if rest else []
        mods = ''
        if ops:
            last = ops[-1].split(None, 1)
            ops[-1] = last[0]
            mods = last[1] if len(last) > 1 else ''
        self.ops, self.mods = ops, mods
        op = self.op
        self.defs, self.uses = set(), set()
        self.cls = None
        self.srcA = self.srcB = self.srcC = set()
        self.passes = 0
        R = [regs_of(o) for o in ops]
        allr = lambda rs: set().union(*rs) if rs else set()
        if op.startswith('v_mfma') or op.startswith('v_smfmac'):
            self.cls = 'mfma'
            self.passes = 2 if '4x4x4' in op else 4
            self.defs = R[0]
            self.srcA, self.srcB = R[1], R[2]
            self.srcC = R[3] if op.startswith('v_mfma') else set(R[0])
            self.uses = self.srcA | self.srcB | self.srcC | (R[3] if op.startswith('v_smfmac') else set())
        elif op.startswith('v_'):
            self.cls = 'valu'
            self.defs = set(R[0])
            self.uses = allr(R[1:])
            self.dpp = ('row_' in mods) or ('quad_perm' in mods)
            if op.startswith(('v_fmac', 'v_dot2c')) or self.dpp:
                self.uses |= R[0]
            if op.startswith('v_permlane'):
                self.defs |= R[1]
                self.uses |= R[0]
            if op.startswith(('v_add_co', 'v_addc_co')):
                self.defs |= R[1]
                self.uses = allr(R[2:])
        elif op.startswith(('buffer_', 'global_')):
            self.cls = 'vmem'
            self.lds = 'lds' in mods.split() or '_lds_' in op
            self.store = 'store' in op or ('atomic' in op)
            if self.store or self.lds or op.startswith(('buffer_wbl2', 'buffer_inv')):
                self.uses = allr(R)
            else:
                self.defs = set(R[0])
                self.uses = allr(R[1:])
            if self.lds:
                self.uses |= {('m0', 0)}
        elif op.startswith('ds_'):
            self.cls = 'ds'
            if op.startswith('ds_read') or 'permute' in op or 'swizzle' in op:
                self.defs = set(R[0])
                self.uses = allr(R[1:])
            else:
                self.uses = allr(R)
        elif op.startswith(('s_load', 's_memtime', 's_memrealtime')):
            self.cls = 'smem'
            self.defs = set(R[0])
            self.uses = allr(R[1:])
        elif op.startswith('s_'):
            self.cls = 'salu'
            if op.startswith(NO_DST_SALU):
                self.uses = allr(R)
            else:
                self.defs = set(R[0])
                self.uses = allr(R[1:])
                if 'saveexec' in op:
                    self.defs |= {('exec', 0)}
        else:
            raise ValueError('unknown op ' + text)

    def states(self):
        if self.op == 's_nop':
            return int(self.ops[0], 0) + 1
        return 1


class Label:
    def __init__(self, name):
        self.name = name


class Raw:
    def __init__(self, text):
        self.text = text


def need(prod, cons):
    n = 0
    pv = {r for r in prod.defs if r[0] in 'va' and len(r[0]) == 1}
    ps = {r for r in prod.defs if r[0] in ('s', 'vcc')}
    if prod.cls == 'valu':
        if cons.cls == 'mfma' and pv & cons.uses:
            n = max(n, 2)
        if cons.cls == 'valu':
            if cons.dpp and pv & regs_of(cons.ops[1]):
                n = max(n, 2)
            if cons.dpp and pv & cons.defs:
                n = max(n, 2)
            if cons.op.startswith(('v_readlane', 'v_readfirstlane')) and pv & cons.uses:
                n = max(n, 1)
            if cons.op.startswith('v_permlane') and pv & cons.uses:
                n = max(n, 2)
            if prod.op.startswith(TRANS) and not cons.op.startswith(TRANS) and pv & cons.uses:
                n = max(n, 1)
            if prod.op.startswith('v_dot2') and cons.op != prod.op and pv & (cons.uses | cons.defs):
                n = max(n, 3)
            if ps & cons.uses:
                n = max(n, 4 if cons.op.startswith(('v_readlane', 'v_writelane')) else 2)
            if ('exec', 0) in prod.defs:
                n = max(n, 5)
        if prod.op.startswith('v_dot2') and cons.cls in ('vmem', 'ds', 'mfma') and pv & cons.uses:
            n = max(n, 3)
        if cons.cls == 'vmem' and ps & cons.uses:
            n = max(n, 5)
        if cons.cls == 'salu' and ps & cons.uses and not cons.op.startswith('s_cbranch'):
            n = max(n, 1)
    if prod.cls == 'mfma':
        p = prod.passes
        if cons.cls == 'mfma':
            if pv & (cons.srcA | cons.srcB):
                n = max(n, 5 if p == 2 else 8)
            if pv & cons.srcC:
                if cons.srcC == pv and cons.passes == p:
                    n = max(n, 2 if p == 2 else 0)
                else:
                    n = max(n, 4 if p == 2 else 6)
            elif pv & cons.defs:
                n = max(n, 5 if p == 2 else 8)
        elif cons.cls in ('valu', 'vmem', 'ds'):
            if pv & (cons.uses | cons.defs):
                n = max(n, 5 if p == 2 else 8)
        if cons.cls == 'valu' and prod.srcC & cons.defs:
            n = max(n, 1 if p == 2 else 3)
    if prod.cls == 'salu' and ('m0', 0) in prod.defs and cons.cls == 'vmem' and cons.lds:
        n = max(n, 1)
    if prod.cls == 'vmem' and prod.store and ('x3' in prod.op or 'x4' in prod.op):
        data = regs_of(prod.ops[0])
        if cons.cls == 'valu' and data & cons.defs:
            n = max(n, 2)
        elif data & cons.defs:
            n = max(n, 1)
    return n


class Asm:
    def __init__(self):
        self.items = []

    def __call__(self, text, **meta):
        for line in text.strip().split('\n'):
            line = line.strip()
            if line and not line.startswith(';'):
                self.items.append(Ins(line, **meta))

    def label(self, name):
        self.items.append(Label(name))

    def raw(self, text):
        self.items.append(Raw(text))

    def br(self, op, target, taken):
        self.items.append(Ins('%s %s' % (op, target), taken=taken, target=target))

    def jmp(self, target):
        self.items.append(Ins('s_branch %s' % target, taken=lambda c: True, target=target))

    def wait(self, *tags):
        self.items.append(Ins('s_waitcnt vmcnt(63)', waitfor=set(tags)))

    def resolve_waits(self, ctxs):
        for _ in range(8):
            want = {}
            for mk in ctxs:
                vm = []
                for ins in self.trace(mk()):
                    if 'waitfor' in ins.meta:
                        idx = [k for k, e in enumerate(vm) if e.meta.get('fills') in ins.meta['waitfor'] or e.meta.get('tag') in ins.meta['waitfor']]
                        n = len(vm) - 1 - idx[-1] if idx else 63
                        want[id(ins)] = min(want.get(id(ins), 63), n)
                        del vm[:max(0, len(vm) - min(n, ins.meta.get('n', 63)))]
                    elif ins.op == 's_waitcnt':
                        m = re.search(r'vmcnt\((\d+)\)', ins.text)
                        if m:
                            del vm[:max(0, len(vm) - int(m.group(1)))]
                    elif ins.cls == 'vmem':
                        vm.append(ins)
            changed = False
            for it in self.items:
                if isinstance(it, Ins) and 'waitfor' in it.meta:
                    n = min(want.get(id(it), 63), it.meta.get('n', 63))
                    if n != it.meta.get('n'):
                        it.meta['n'] = n
                        it.text = 's_waitcnt vmcnt(%d)' % n
                        changed = True
            if not changed:
                return

    def act(self, fn):
        self.items.append(Raw(''))
        self.items[-1].act = fn

    def trace(self, ctx, limit=200000):
        pos = {it.name: k for k, it in enumerate(self.items) if isinstance(it, Label)}
        k, out = 0, []
        while k < len(self.items):
            it = self.items[k]
            k += 1
            if isinstance(it, Raw):
                if hasattr(it, 'act'):
                    it.act(ctx)
                continue
            if isinstance(it, Label):
                continue
            out.append(it)
            if len(out) > limit:
                raise RuntimeError('trace too long')
            if it.op == 's_endpgm':
                return out
            if 'taken' in it.meta and it.meta['taken'](ctx):
                k = pos[it.meta['target']]
        raise RuntimeError('trace ran off the end')

    def fix_hazards(self, ctxs):
        changed = True
        while changed:
            changed = False
            for mk in ctxs:
                tr = self.trace(mk())
                for k, cons in enumerate(tr):
                    dist = cons.pad
                    j = k - 1
                    while j >= 0 and dist < 12:
                        n = need(tr[j], cons)
                        if n > dist:
                            cons.pad += n - dist
                            dist = n
                            changed = True
                        dist += tr[j].states() + tr[j].pad
                        j -= 1

    def check_waits(self, ctxs):
        errs = []
        for mk in ctxs:
            ctx = mk()
            name = ctx.get('name', '?')
            tr = self.trace(ctx)
            vm, lg = [], []
            maxvm = 0
            for ins in tr:
                touched = ins.uses | ins.defs
                for q, qn in ((vm, 'vm'), (lg, 'lgkm')):
                    for e in q:
                        hit = e.defs & touched
                        if hit and not (ins.cls == e.cls and ins.meta.get('dummy') and e.meta.get('dummy')):
                            errs.append('%s: %s touches %s pending (%s) from: %s' % (name, ins.text, sorted(hit)[:2], qn, e.text))
                for reg in ins.meta.get('needs', ()):
                    for e in vm + lg:
                        if e.meta.get('fills') == reg:
                            errs.append('%s: %s needs LDS region %s still pending from: %s' % (name, ins.text, reg, e.text))
                if ins.op == 's_waitcnt':
                    m = re.search(r'vmcnt\((\d+)\)', ins.text)
                    if m:
                        n = int(m.group(1))
                        del vm[:max(0, len(vm) - n)]
                    m = re.search(r'lgkmcnt\((\d+)\)', ins.text)
                    if m:
                        n = int(m.group(1))
                        if any(e.cls == 'smem' for e in lg) and n:
                            pass
                        else:
                            del lg[:max(0, len(lg) - n)]
                elif ins.cls == 'vmem':
                    vm.append(ins)
                    maxvm = max(maxvm, len(vm))
                elif ins.cls in ('ds', 'smem'):
                    lg.append(ins)
                    if len([e for e in lg]) > 15 and ins.meta.get('strict'):
                        errs.append('%s: more than 15 lgkm outstanding' % name)
            if maxvm > 63:
                errs.append('%s: %d vmem ops outstanding' % (name, maxvm))
        return errs

    def text(self):
        out = []
        for it in self.items:
            if isinstance(it, Label):
                out.append(it.name + ':')
            elif isinstance(it, Raw):
                if it.text:
                    out.append(it.text)
            else:
                p = it.pad
                while p > 0:
                    q = min(p, 16)
                    out.append('    s_nop %d' % (q - 1))
                    p -= q
                out.append('    ' + it.text)
        return '\n'.join(out) + '\n'

    def pads(self):
        return [(it.pad, it.text) for it in self.items if isinstance(it, Ins) and it.pad]
```

```python
import sys
from asmlib import Asm

KNAME = 'interleave_layers__sliding_block_cached__glu_gated_bilinear__decode_kernel'

DEFAULTS = dict(
    stamps=0,
    dump=0,
    ka=5,
    kb=5,
    v0=4,
    v2=16, wo_at=0,
    po=0,
    pd=3,
    wd_at=2,
    pnt=0,
    near=1,
    pretouch=1, prewrite=1, codepf=2, tlbpf=0,
    ackwait=1,
    xbar=1,
    forceslow=0, xdelay=0,
    hold=0,
)

OFF_AD, OFF_CQ, OFF_BD = 0x1000, 0x41000, 0x81000
OFF_DD, OFF_CG = 0xC1000, 0x121000
OFF_AS, OFF_DS, OFF_BS = 0x181000, 0x182000, 0x183000
OFF_X = 0x200000
WS_USED = 0x280000
OFF_DBG = 0x300000
WS_SRD = 0x1000000
OOB = 0x80000000
L_K, L_V = 0, 65536
L_GU, L_WD = 0, 65536
L_X = 131072
L_ONE = L_X + 128
L_Q = L_X + 192
L_O = L_Q + 512
L_H = L_O + 512
L_PS = L_H + 640
L_DUM = L_PS + 64
L_PO = (L_DUM + 1024 + 255) // 256 * 256
L_WQ = L_PO + 4096
L_WO = L_WQ
LDS_BYTES = L_WO + 20480 + 256
assert 81920 < LDS_BYTES <= 163840

S_K, S_V, S_WQ, S_WO, S_WG, S_WU, S_WD, S_X, S_OUT, S_W, S_F, S_S = range(28, 76, 4)
(sW, sG, sI, sROT, sT, sThi, sTsh, sLAY, sBUD, sXCC, sCQ, sBD, sDS, sCG, sSLOT,
 sR0, sR1, sT0, sT1, sT2, sT3, sE) = ['s%d' % n for n in range(76, 98)]
sM9, sP = 's[98:99]', 's[100:101]'
sC, sINV, sHIM, sRC, sTS, sTSlo, sTX = 's4', 's5', 's6', 's7', 's[8:9]', 's8', 's10'
A_K, A_V, A_GU, A_WO, A_WD = 0, 64, 128, 184, 216
DPP = ' row_mask:0xf bank_mask:0xf'


def srd(b):
    return 's[%d:%d]' % (b, b + 3)


class R(int):
    def __str__(self):
        return 'v%d' % int(self)
    __format__ = lambda self, spec: str(self)

    def __add__(self, o):
        return R(int(self) + o)

    def t(self, k):
        return 'v[%d:%d]' % (int(self), int(self) + k - 1)


def ar(b, k):
    return 'a[%d:%d]' % (b, b + k - 1)


class V:
    def __init__(self):
        self.n = 1

    def __call__(self, k=1, al=1):
        if k > 1:
            al = max(al, 2)
        self.n = (self.n + al - 1) // al * al
        r = self.n
        self.n += k
        assert self.n <= 256
        return R(r)


def build(**kw):
    P = dict(DEFAULTS)
    for k in kw:
        assert k in P, k
    P.update(kw)
    a = Asm()
    v = V()
    L1 = lambda c: c['layer'] == 0
    L2 = lambda c: c['layer'] == 1
    W3 = lambda c: c['wave'] == 3
    NW3 = lambda c: c['wave'] != 3

    vL, vRow, vN = v(), v(), v()
    t0, t1, t2, t3, t4, t5, vSINK, vOOB = [v() for _ in range(8)]
    (aXQR, aAPUB, aAGET, aASGET, aASPUB, aBSGET, aBSPUB, aQW, aQR, aPOW, aPOR, aPSW, aPSR, aOR, aXPUB,
     aXGET, aXQW, aDPUB, aDG1, aDG1b, aDG2, aHW1, aHW2, aOUT) = [v() for _ in range(24)]
    SEL4, MASK4, SELX, SELD = v(4, 4), v(4, 4), v(4, 4), v(4, 4)
    vSELH, vTAB, vTD, vEPS, vMP, t6 = v(), v(), v(), v(), v(), v()
    XG, ST, BST, PSV = v(4, 4), v(4, 4), v(4, 4), v(4, 4)
    WQ = v(18, 2)
    XQ, QA, PA, ONE = v(2), v(4, 2), v(2), v(2)
    ACC = [v(4, 4) for _ in range(4)]
    G = [v(4, 4) for _ in range(7)]
    OP = v(36, 4)
    G2 = [OP + 4 * q for q in range(6)]
    AW = [OP + 4 * q for q in range(4)]
    XC, XR, CI = v(4, 4), v(4, 4), v(4, 4)
    CSQ, CSG = v(), v(4, 2)
    Y, PK2 = v(2), v(2)
    PO, PS = v(4, 2), v(8, 2)
    vDM, vRS, vE0, vE1, vE2 = v(), v(), v(), v(), v()
    aK = [v() for _ in range(4)]
    aV, aWQ, aTR, aTR2, aDM = v(), v(), v(), v(), v()
    aGU = [v() for _ in range(2)]
    aTL = [v() for _ in range(6)]
    vCQ = v()
    vTS, vDUM = v(), v()
    names = []

    def lines(xs):
        for x in xs:
            a(x)

    def stamp(name, level=2):
        if P['stamps'] < level:
            return
        k = len(names)
        names.append(name)
        assert k < 30
        a(f'''s_memtime {sTS}
            s_lshl_b32 {sT3}, {sLAY}, 5
            s_add_u32 m0, {sT3}, {k}
            s_waitcnt lgkmcnt(0)
            v_writelane_b32 {vTS}, {sTSlo}, m0''')

    def rstamp(k):
        if P['stamps'] != 1:
            return
        a(f'''s_memrealtime {sTS}
            s_lshl_b32 {sT3}, {sLAY}, 3
            s_add_u32 m0, {sT3}, {40 + k}
            s_waitcnt lgkmcnt(0)
            v_writelane_b32 {vTS}, {sTSlo}, m0''')

    def estamp(name):
        if P['stamps'] < 3:
            return
        k = len(names)
        names.append(name)
        a(f's_memtime s[86:87]\ns_waitcnt lgkmcnt(0)\nv_writelane_b32 {vTS}, s86, {k}')

    def dump(idx, reg):
        if not P['dump']:
            return
        a(f'''s_lshl_b32 {sT3}, {sLAY}, 18
            s_add_u32 {sT3}, {sT3}, {OFF_DBG + 0x100000 + idx * 0x80000:#x}
            buffer_store_dword {reg}, {aDM}, {srd(S_W)}, {sT3} offen
            s_waitcnt vmcnt(0)''')

    def mk_srd(b, ptr, off, size):
        if off is None:
            a(f's_mov_b32 s{b}, s{ptr}\ns_and_b32 s{b + 1}, s{ptr + 1}, 0xffff')
        else:
            a(f's_add_u32 s{b}, s{ptr}, {off}\ns_addc_u32 s{b + 1}, s{ptr + 1}, 0\ns_and_b32 s{b + 1}, s{b + 1}, 0xffff')
        a(f's_mov_b32 s{b + 2}, {size:#x}\ns_mov_b32 s{b + 3}, 0x20000')

    def pub(op, data, addr, soff):
        a(f'{op} {data}, {addr}, {srd(S_F)}, {soff} offen')
        a(f'{op} {data}, {addr}, {srd(S_S)}, {soff} offen sc1')

    def gload(dst, addr, soff, off=0, tag=None):
        a(f'buffer_load_dwordx4 {dst.t(4)}, {addr}, {srd(S_W)}, {soff} offen' + (f' offset:{off}' if off else '') + ' sc1', tag=tag)

    retry_blocks = []

    def retry(tag, issue_label, reissue=None):
        def taken(c):
            k = (tag, c['layer'])
            if c.get('retry') and k not in c.setdefault('_done', set()):
                c['_done'].add(k)
                return True
            return False
        a.br('s_cbranch_scc1', 'RETRY_' + tag, taken)
        a.label('CONT_' + tag)
        retry_blocks.append((tag, issue_label, reissue))

    def skip_l2(label):
        a(f's_cmp_lg_u32 {sLAY}, 0')
        a.br('s_cbranch_scc1', label, L2)

    def w3_to(label):
        a(f's_cmp_eq_u32 {sW}, 3')
        a.br('s_cbranch_scc1', label, W3)

    def wave16k():
        a(f's_lshl_b32 {sT1}, {sW}, 14')

    def kvdma(j, isv):
        a(f'''s_add_u32 m0, {sT1}, {(L_V if isv else L_K) + 1024 * j}
            s_add_u32 {sT0}, {sROT}, {j << 12}
            s_and_b32 {sT0}, {sT0}, 0xf000''')
        if isv:
            a(f'buffer_load_dwordx4 {aV}, {srd(S_V)}, {sT0} offen nt lds', fills='V%d' % (j // 4))
        else:
            a(f'buffer_load_dwordx4 {aK[j & 3]}, {srd(S_K)}, {sT0} offen nt lds', fills='K')

    def tall_base():
        a(f's_mul_i32 {sT2}, {sW}, 5120\ns_mul_i32 {sT3}, {sW}, {64 * 1152}')

    def tall_dma(S, region, k, fills):
        if k < 5:
            a(f's_add_u32 m0, {sT2}, {region + 1024 * k}')
            a(f'buffer_load_dwordx4 {aTL[k]}, {srd(S)}, {sT3} offen nt lds', fills=fills)
        else:
            a(f's_lshl_b32 {sT0}, {sW}, 10\ns_add_u32 m0, {sT0}, {region + 20480}')
            a(f'buffer_load_dwordx4 {aTL[5]}, {srd(S)}, 0 offen nt lds', fills=fills)

    def prefetch(ptr, size):
        a(f's_lshl_b32 {sT0}, {sG}, 4\ns_add_u32 {sT0}, {sT0}, {sI}\ns_mul_i32 {sT0}, {sT0}, {size}')
        mk_srd(S_X, ptr, sT0, size)
        a(f'v_lshlrev_b32 {t0}, 6, v0\ns_mov_b32 {sT0}, 16384')
        nt = ' nt' if P['pnt'] else ''
        a(f'buffer_load_dword {vDUM}, {t0}, {srd(S_X)}, 0 offen{nt}', dummy=1)
        a(f'buffer_load_dword {vDUM}, {t0}, {srd(S_X)}, {sT0} offen{nt}', dummy=1)

    def wd_pieces():
        tall_base()
        for k in range(6):
            tall_dma(S_WD, L_WD, k, 'WD')

    def gu_batch(lo, hi):
        if hi > lo:
            a(f's_mul_i32 {sT2}, {sW}, 5184\ns_mov_b32 exec_hi, 0x3fffff')
            for k in range(lo, hi):
                gudma(k)
            a('s_mov_b32 exec_hi, -1')

    def gudma(k):
        j, mu = k >> 1, k & 1
        a(f's_add_u32 m0, {sT2}, {L_GU + 20736 * mu + 864 * j}\ns_mov_b32 {sT0}, {(j >> 1) * 3 * 9216}')
        a(f'buffer_load_dwordx4 {aGU[j & 1]}, {srd(S_WU if mu else S_WG)}, {sT0} offen nt lds', fills='GU')

    def set_tags():
        a(f'''s_and_b32 {sT}, {sT}, 0x1fff1fff
            s_add_u32 {sT}, {sT}, 0x10001
            s_and_b32 {sT}, {sT}, 0x1fff1fff
            s_or_b32 {sT}, {sT}, 0x20002000
            s_lshr_b32 {sThi}, {sT}, 16
            s_lshl_b32 {sTsh}, {sT}, 16
            s_and_b32 {sT0}, {sT}, 0xffff0000
            v_mov_b32 {t0}, {sTsh}
            v_mov_b32 {t1}, {sT0}
            s_mov_b32 vcc_lo, 0x55555555
            s_mov_b32 vcc_hi, 0x55555555
            v_cndmask_b32 {vTAB}, {t1}, {t0}, vcc
            s_mov_b32 vcc_lo, 0x0f0f0f0f
            s_mov_b32 vcc_hi, 0x0f0f0f0f
            v_cndmask_b32 {vTD}, {t1}, {t0}, vcc
            v_mov_b32 {ST + 3}, {sT}
            v_mov_b32 {BST + 3}, {sT}''')

    def ror_steps(op, regs, first_src=None):
        out = []
        for k, sh in enumerate((8, 4, 2, 1)):
            grp = []
            for q, r in enumerate(regs):
                s = first_src[q] if (k == 0 and first_src) else r
                grp.append(f'{op}_dpp {r}, {s}, {s} row_ror:{sh}{DPP}')
            out.append(grp)
        return out

    def bcast_steps(op, regs):
        return [[f'{op}_dpp {r}, {r}, {r} row_bcast:{bc} row_mask:{rm} bank_mask:0xf' for r in regs]
                for bc, rm in ((15, '0xa'), (31, '0xc'))]

    def flat(groups):
        return [x for g in groups for x in g]

    def stats_ops():
        return [f'v_add_f32 {t4}, {XC}, {XC + 1}',
                f'v_mul_f32 {t5}, {XC}, {XC}',
                f'v_add_f32 {t6}, {XC + 2}, {XC + 3}',
                f'v_fmac_f32 {t5}, {XC + 1}, {XC + 1}',
                f'v_add_f32 {t4}, {t4}, {t6}',
                f'v_fmac_f32 {t5}, {XC + 2}, {XC + 2}',
                f'v_cndmask_b32 {ST}, 0, {t4}, {sM9}',
                f'v_fmac_f32 {t5}, {XC + 3}, {XC + 3}',
                f'v_cndmask_b32 {ST + 1}, 0, {t5}, {sM9}'] + flat(ror_steps('v_add_f32', [ST, ST + 1]))

    def resid_ops():
        return [f'v_add_f32 {XR + r}, {XC + r}, {vMP}' for r in range(4)] + [
            f'v_cvt_pk_bf16_f32 {XR + 1}, {XR}, {XR + 1}',
            f'v_cvt_pk_bf16_f32 {XR + 3}, {XR + 2}, {XR + 3}',
            f'v_lshlrev_b32 {XR}, 16, {XR + 1}',
            f'v_lshlrev_b32 {XR + 2}, 16, {XR + 3}',
            f'v_and_b32 {XR + 1}, {sHIM}, {XR + 1}',
            f'v_and_b32 {XR + 3}, {sHIM}, {XR + 3}']

    def ln_ops(S):
        return ror_steps('v_add_f32', [vE0, vE1], [S, S + 1]) + [
            [f'v_mul_f32 {vDM}, {sINV}, {vE0}', f'v_fma_f32 {vRS}, {vE1}, {sINV}, {vEPS}'],
            [f'v_fma_f32 {vRS}, -{vDM}, {vDM}, {vRS}'],
            [f'v_rsq_f32 {vRS}, {vRS}']]

    def newmean_ops():
        return [f'v_add_f32 {vMP}, {vMP}, {vDM}'] + [f'v_sub_f32 {CI + r}, {XR + r}, {vMP}' for r in range(4)]

    def m16(d, A, B, C):
        a(f'v_mfma_f32_16x16x32_bf16 {d.t(4)}, {A}, {B}, {C}')

    def m4(d, A, B, first, abid):
        a(f'v_mfma_f32_4x4x4_16b_bf16 {d.t(4)}, {A}, {B}, {"0" if first else d.t(4)} cbsz:4 abid:{abid}')

    def chk_ab(g, first):
        a(f'v_bitop3_b32 {t0}, {g}, {g + 2}, {sT} bitop3:0x7e\nv_bitop3_b32 {t1}, {g + 1}, {g + 3}, {sThi} bitop3:0x7e')
        a(f'v_or_b32 {vE2}, {t0}, {t1}' if first else f'v_or3_b32 {vE2}, {t0}, {t1}, {vE2}')

    def chk_d(g, h, first):
        a(f'v_bitop3_b32 {t0}, {g + 1}, {h + 1}, {sTsh} bitop3:0x7e\nv_bitop3_b32 {t1}, {g + 3}, {h + 3}, {sT} bitop3:0x7e')
        a(f'v_or_b32 {vE2}, {t0}, {t1}' if first else f'v_or3_b32 {vE2}, {t0}, {t1}, {vE2}')

    def tall_addr(region):
        a(f'''v_lshrrev_b32 {t0}, 2, {vN}
            v_lshl_add_u32 {t0}, {vRow}, 3, {t0}
            v_mul_u32_u24 {t0}, 80, {t0}
            v_and_b32 {t1}, 3, {vL}
            v_lshl_add_u32 {t0}, {t1}, 3, {t0}
            s_and_b32 {sT0}, {sI}, 1
            s_lshl_b32 {sT0}, {sT0}, 3
            s_mul_i32 {sT3}, {sW}, 24
            s_add_u32 {sT0}, {sT0}, {sT3}
            s_add_u32 {sT0}, {sT0}, {region}
            v_add_u32 {aTR}, {sT0}, {t0}''')

    def tall_tr(nk, AB):
        for k in range(nk):
            for u in range(2):
                a(f'ds_read_b64_tr_b16 {ar(AB + 4 * k + 2 * u, 2)}, {aTR} offset:{2560 * k + 320 * u}')

    def tall_stage(nk, AB, ldsoff):
        for k in range(nk):
            a(f'ds_read_b128 {(OP + 4 * k).t(4)}, {aOR} offset:{ldsoff + 64 * k}')
        for k in range(nk):
            a(f's_waitcnt lgkmcnt({nk - 1 - k})')
            m16(ACC[0], ar(AB + 4 * k, 4), (OP + 4 * k).t(4), '0' if k == 0 else ACC[0].t(4))
        a(f'''v_cvt_pk_bf16_f32 {XG}, {ACC[0]}, {ACC[0] + 1}
            v_cvt_pk_bf16_f32 {XG + 1}, {ACC[0] + 2}, {ACC[0] + 3}
            buffer_store_dwordx4 {XG.t(4)}, {aXPUB}, {srd(S_W)}, {sSLOT} offen sc1''', tag='XP')

    def cg_loads():
        for q, (ad, off) in enumerate(((aDG1, 0), (aDG1, 1536), (aDG1b, 0), (aDG1b, 1536), (aDG2, 0), (aDG2, 1536))):
            gload(G2[q], ad, sCG, off, 'CG')

    def cg_reduce(tag):
        a.label('CHECK_' + tag)
        for q in range(4):
            m16(ACC[2], SELD.t(4), G2[q].t(4), '0' if q == 0 else ACC[2].t(4))
        for q in range(2):
            m16(ACC[3], SELD.t(4), G2[4 + q].t(4), '0' if q == 0 else ACC[3].t(4))
        for q in range(3):
            chk_d(G2[2 * q], G2[2 * q + 1], q == 0)
        a(f'v_cmp_lt_u32 vcc, 0xffff, {vE2}\ns_cmp_lg_u64 vcc, 0')
        retry(tag, 'CHECK_' + tag, lambda: (cg_loads(), a('s_waitcnt vmcnt(0)')))
        a(f'''v_mov_b32 {CSG}, {ACC[2]}
            v_mov_b32 {CSG + 1}, {ACC[2] + 1}
            v_add_f32_dpp {CSG + 2}, {ACC[3]}, {ACC[3]} row_ror:8{DPP}
            v_add_f32_dpp {CSG + 3}, {ACC[3] + 1}, {ACC[3] + 1} row_ror:8{DPP}''')

    def cq_loads():
        for q in range(4):
            gload(G2[q], aAGET, sCQ, 1024 * q, 'CQ')

    def cq_reduce(tag):
        a.label('CHECK_' + tag)
        for q in range(4):
            m16(ACC[2], SEL4.t(4), G2[q].t(4), '0' if q == 0 else ACC[2].t(4))
            chk_ab(G2[q], q == 0)
        a(f'v_cmp_ne_u16 vcc, 0, {vE2}\ns_cmp_lg_u64 vcc, 0')
        retry(tag, 'CHECK_' + tag, lambda: (cq_loads(), a('s_waitcnt vmcnt(0)')))
        a(f'v_mov_b32 {CSQ}, {ACC[2]}')

    def a_loads():
        gload(G[4], aASGET, '0', tag='A')
        for q in range(4):
            gload(G[q], aAGET, '0', 1024 * q, 'A')

    def b_loads():
        gload(G[4], aBSGET, '0', tag='B')
        for q in range(4):
            gload(G[q], aAGET, sBD, 1024 * q, 'B')

    def b_reduce(waits):
        a(f'v_cmp_ne_u32 {sP}, {sT}, {G[4] + 3}')
        lines(flat(ror_steps('v_max_f32', [vE0], [G[4]])))
        a(f'v_sub_f32 {vE0}, {G[4]}, {vE0}\nv_exp_f32 {vE0}, {vE0}\nv_mul_f32 {vE1}, {vE0}, {G[4] + 1}')
        lsum = flat(ror_steps('v_add_f32', [vE1]))
        for q in range(4):
            for d in range(4):
                a(f'v_and_b32_dpp {AW[q] + d}, {vE0}, {MASK4 + d} row_newbcast:{q}{DPP}')
            a(lsum[q])
            if waits:
                a(f's_waitcnt vmcnt({3 - q})')
            chk_ab(G[q], q == 0)
            m16(ACC[0], AW[q].t(4), G[q].t(4), '0' if q == 0 else ACC[0].t(4))
        a(f'v_cmp_ne_u16 vcc, 0, {vE2}\nv_rcp_f32 {vE1}, {vE1}\ns_or_b64 vcc, vcc, {sP}')

    def d_loads():
        gload(G[6], aASGET, sDS)
        gload(G[4], aDG2, '0')
        gload(G[5], aDG2, '0', 1536)
        gload(G[0], aDG1, '0')
        gload(G[1], aDG1, '0', 1536)
        gload(G[2], aDG1b, '0')
        gload(G[3], aDG1b, '0', 1536)

    def a_reduce(waits):
        lo = ln_ops(G[4])
        a(f'v_cmp_ne_u32 {sP}, {sT}, {G[4] + 3}')
        lines(lo[0])
        for q in range(4):
            if waits:
                a(f's_waitcnt vmcnt({3 - q})')
            m16(ACC[0], SEL4.t(4), G[q].t(4), '0' if q == 0 else ACC[0].t(4))
            chk_ab(G[q], q == 0)
            lines(lo[1 + q])
        a(f'v_cmp_ne_u16 vcc, 0, {vE2}')
        lines(lo[5])
        a(f's_or_b64 vcc, vcc, {sP}')
        return lo

    def xgather(tag):
        if P['xdelay']:
            a('s_sleep %d' % P['xdelay'])
        a.label('GX_ISSUE_' + tag)
        for q in range(4):
            gload(G[q], aXGET, sSLOT, 256 * q)
        for q in range(4):
            a(f's_waitcnt vmcnt({3 - q})')
            m16(XC, SELX.t(4), G[q].t(4), CI.t(4) if q == 0 else XC.t(4))
            if q & 1:
                a(f'v_bitop3_b32 {(t0, t1)[q >> 1]}, {G[q - 1] + 3}, {G[q] + 3}, {sTX} bitop3:0x7e')
        a(f'v_or_b32 {t0}, {t0}, {t1}\nv_cmp_ne_u32 vcc, 0, {t0}\ns_cmp_lg_u64 vcc, 0')
        retry(tag, 'GX_ISSUE_' + tag)

    def xq_write():
        a(f'''v_cvt_pk_bf16_f32 {PK2}, {XC}, {XC + 1}
            v_cvt_pk_bf16_f32 {PK2 + 1}, {XC + 2}, {XC + 3}
            ds_write_b64 {aXQW}, {PK2.t(2)}''')

    def setlayer2():
        a(f's_mov_b32 {sLAY}, 1')
        a.act(lambda c: c.__setitem__('layer', 1))
        if P['stamps'] >= 2:
            a(f'v_writelane_b32 {vTS}, {sRC}, 30\ns_mov_b32 {sRC}, 0')

    a('s_cmp_ge_u32 s2, 256')
    a.br('s_cbranch_scc1', 'END', lambda c: False)
    if P['stamps']:
        a('s_memtime s[86:87]')
        names.append('start')
    if P['stamps'] or P['hold']:
        a('s_memrealtime s[90:91]')
    a(f'''s_load_dwordx16 s[4:19], s[0:1], 0
        s_load_dwordx8 s[20:27], s[0:1], 64
        v_lshrrev_b32 {t0}, 6, v0
        v_and_b32 {vL}, 63, v0
        v_readfirstlane_b32 {sW}, {t0}
        s_and_b32 {sT0}, s2, 7
        s_lshl_b32 {sT0}, {sT0}, 1
        s_bfe_u32 {sT1}, s2, 0x10003
        s_add_u32 {sG}, {sT0}, {sT1}
        s_lshr_b32 {sI}, s2, 4
        s_lshl_b32 {sROT}, s2, 9
        s_and_b32 {sROT}, {sROT}, 0xf000
        s_mov_b32 {sLAY}, 0
        v_lshrrev_b32 {vRow}, 4, {vL}
        v_and_b32 {vN}, 15, {vL}
        v_lshrrev_b32 {t0}, 3, {vL}
        v_and_b32 {t1}, 7, {vL}
        v_lshlrev_b32 {t0}, 13, {t0}
        v_lshl_add_u32 {t0}, {t1}, 4, {t0}
        s_lshl_b32 {sT0}, {sW}, 7
        v_add_u32 {aWQ}, {sT0}, {t0}
        s_lshl_b32 {sT0}, {sW}, 10
        v_lshl_add_u32 {t0}, {vRow}, 8, {sT0}
        v_xor_b32 {t1}, {vN}, {vRow}
        v_lshl_add_u32 {aK[0]}, {t1}, 4, {t0}
        v_xor_b32 {aK[1]}, 64, {aK[0]}
        v_xor_b32 {aK[2]}, 128, {aK[0]}
        v_xor_b32 {aK[3]}, 192, {aK[0]}
        v_lshlrev_b32 {t1}, 2, {vRow}
        v_xor_b32 {t1}, {vN}, {t1}
        v_lshl_add_u32 {aV}, {t1}, 4, {t0}
        v_lshlrev_b32 {t2}, 4, {vL}
        s_mul_i32 {sT3}, {sI}, 72
        v_lshl_add_u32 {t3}, {vN}, 3, {sT3}
        s_mul_i32 {sT0}, {sI}, {36 * 8192}
        s_lshl_b32 {sT1}, {sG}, 9
        s_add_u32 {sT0}, {sT0}, {sT1}
        s_lshl_b32 {sT2}, {sG}, 23
        s_lshl_b32 {sT3}, {sI}, 16
        s_add_u32 {sT2}, {sT2}, {sT3}
        s_add_u32 {sT2}, {sT2}, {28672 * 256}
        s_mul_i32 {sT1}, {sW}, 4608
        s_cmp_lg_u32 {sW}, 3
        s_waitcnt lgkmcnt(0)''')
    a.br('s_cbranch_scc1', 'NOX', NW3)
    mk_srd(S_X, 4, None, 1152)
    a(f'''buffer_load_dwordx4 {G[0].t(4)}, {t2}, {srd(S_X)}, 0 offen
        buffer_load_dwordx4 {G[1].t(4)}, {t2}, {srd(S_X)}, 0 offen offset:1024
        buffer_load_dwordx2 {G[2].t(2)}, {t3}, {srd(S_X)}, 0 offen''', tag='X')
    a.label('NOX')
    if P['hold']:
        a('s_mov_b32 s3, s90')
    if P['stamps']:
        a(f'v_mov_b32 {vTS}, 0\nv_writelane_b32 {vTS}, s86, 0\nv_writelane_b32 {vTS}, s90, 63')
    estamp('kernarg')
    a(f's_load_dword {sE}, s[26:27], 0')
    mk_srd(S_WQ, 10, sT0, 35 * 8192 + 512)
    for k in range(5):
        a(f's_add_u32 m0, {sT1}, {L_WQ + 1024 * k}\ns_mov_b32 {sT0}, {65536 * k}')
        if k == 4:
            a('s_mov_b32 exec_hi, 0')
        a(f'buffer_load_dwordx4 {aWQ}, {srd(S_WQ)}, {sT0} offen nt lds', fills='WQ')
        if k == 4:
            a('s_mov_b32 exec_hi, -1')
    mk_srd(S_K, 6, sT2, 65536)
    if P['codepf']:
        a(f's_getpc_b64 {sP}')
        a.label('PCREF')
        a(f'''s_lshl_b32 {sT0}, {sW}, 12
            v_lshl_add_u32 {t2}, {vL}, 6, {sT0}
            s_cmp_lt_u32 s2, {P['codepf'] * 8}
            s_cselect_b32 {sT0}, CODE_END-PCREF-4, 0
            v_min_u32 {t2}, {sT0}, {t2}''')
        a(f'global_load_dword {vDUM}, {t2}, {sP}', dummy=1)
    wave16k()
    for j in range(P['ka']):
        kvdma(j, False)
    mk_srd(S_V, 8, sT2, 65536)
    WSZ = WS_SRD if (P['dump'] or P['stamps']) else WS_USED
    mk_srd(S_W, 26, None, WSZ)
    mk_srd(S_F, 26, None, 0)
    mk_srd(S_S, 26, None, WS_USED)
    a(f'''s_mov_b32 {sINV}, 0x3ae38e39
        s_mov_b32 {sHIM}, 0xffff0000
        s_getreg_b32 {sXCC}, hwreg(HW_REG_XCC_ID)
        s_and_b32 {sXCC}, {sXCC}, 15
        s_mov_b32 s98, 0x01ff01ff
        s_mov_b32 s99, 0x01ff01ff
        v_mov_b32 {ONE}, 0x3f803f80
        v_mov_b32 {ONE + 1}, 0x3f803f80
        v_mov_b32 {ST + 2}, {sXCC}
        v_mov_b32 {vOOB}, {OOB:#x}
        s_mov_b32 {sT2}, {L_DUM}
        v_lshl_add_u32 {vSINK}, {vL}, 4, {sT2}
        v_lshrrev_b32 {t0}, 2, {vL}
        s_mov_b32 {sT0}, {L_X}
        v_lshl_add_u32 {t1}, {t0}, 3, {sT0}
        v_mov_b32 {t2}, {L_ONE}
        s_mov_b32 vcc_lo, 0x22222222
        s_mov_b32 vcc_hi, 0x22222222
        v_cndmask_b32 {aXQR}, {t1}, {t2}, vcc
        ds_write_b64 {t2}, {ONE.t(2)}
        v_lshl_add_u32 {t0}, {vN}, 3, {sT0}
        s_mov_b64 vcc, 0xffff
        v_cndmask_b32 {aXQW}, {vSINK}, {t0}, vcc
        s_lshl_b32 {sT0}, {sG}, 14
        s_lshl_b32 {sT2}, {sW}, 8
        s_add_u32 {sT0}, {sT0}, {sT2}
        s_add_u32 {sT0}, {sT0}, {OFF_AD:#x}
        v_lshl_add_u32 {t0}, {vRow}, 12, {sT0}
        v_lshl_add_u32 {aAGET}, {vN}, 4, {t0}
        s_lshl_b32 {sT3}, {sI}, 10
        s_add_u32 {sT0}, {sT0}, {sT3}
        v_lshl_add_u32 {aAPUB}, {vL}, 2, {sT0}
        s_lshl_b32 {sT0}, {sG}, 8
        s_add_u32 {sT0}, {sT0}, {OFF_AS:#x}
        v_lshl_add_u32 {aASGET}, {vN}, 4, {sT0}
        s_lshl_b32 {sT3}, {sI}, 4
        s_add_u32 {sT0}, {sT0}, {sT3}
        v_mov_b32 {t0}, {sT0}
        v_cmp_eq_u32 vcc, 192, v0
        v_lshrrev_b32 {t1}, 2, {vN}
        v_lshlrev_b32 {t1}, 7, {t1}
        v_cndmask_b32 {aASPUB}, {vOOB}, {t0}, vcc
        v_lshl_add_u32 {t1}, {vRow}, 5, {t1}
        v_and_b32 {t2}, 3, {vL}
        v_lshl_add_u32 {t1}, {t2}, 3, {t1}
        s_mul_i32 {sT0}, {sW}, 4608
        s_add_u32 {sT0}, {sT0}, {L_WQ}
        v_add_u32 {aTR}, {sT0}, {t1}''')
    if P['stamps']:
        a(f's_mov_b32 {sRC}, 0')
    if P['dump'] or P['stamps']:
        a(f's_lshl_b32 {sT0}, s2, 10\nv_lshl_add_u32 {aDM}, v0, 2, {sT0}')
    k0 = P['ka'] + P['kb']
    for j in range(P['ka'], k0):
        kvdma(j, False)
    a(f's_waitcnt lgkmcnt(0)\ns_mov_b32 {sT}, {sE}')
    set_tags()
    a(f's_mov_b32 {sTX}, {sT}')
    stamp('set-up A', 3)
    a(f's_cmp_lg_u32 {sW}, 3')
    a.br('s_cbranch_scc1', 'Q_ENTRY', NW3)
    a.wait('X')
    a(f'v_mov_b32 {t0}, 0')
    for q in range(8):
        a(f'v_dot2c_f32_bf16 {t0}, {G[q >> 2] + (q & 3)}, {ONE}')
    a(f'''v_lshlrev_b32 {XC}, 16, {G[2]}
        v_and_b32 {XC + 1}, {sHIM}, {G[2]}
        v_lshlrev_b32 {XC + 2}, 16, {G[2] + 1}
        v_and_b32 {XC + 3}, {sHIM}, {G[2] + 1}''')
    lines(flat(ror_steps('v_add_f32', [t0]) + bcast_steps('v_add_f32', [t0])))
    a(f'v_readlane_b32 {sT0}, {t0}, 63\nv_mov_b32 {t0}, {sT0}\nv_mul_f32 {vMP}, {sINV}, {t0}')
    for r in range(4):
        a(f'v_sub_f32 {XC + r}, {XC + r}, {vMP}')
    xq_write()
    a.jmp('Q_WAIT')

    a.label('W3_E')
    lines(newmean_ops())
    skip_l2('W3_E1')
    cq_loads()
    a('s_waitcnt vmcnt(0)')
    cq_reduce('CR')
    set_tags()
    if P['xbar']:
        a('s_barrier')
    a.jmp('W3_E2')
    a.label('W3_E1')
    if P['xbar']:
        a('s_barrier')
    a(f's_cmp_lg_u32 {sG}, {sI}')
    a.br('s_cbranch_scc1', 'FINISH', lambda c: not c['final'])
    a.label('W3_E2')
    stamp('E poll', 3)
    xgather('E')
    dump(10, XC)
    skip_l2('W3_OUT')
    xq_write()
    a(f's_add_u32 {sSLOT}, {sSLOT}, 0x20000')
    setlayer2()
    a.label('Q_WAIT')
    so = stats_ops()
    lines(so[:9])
    a(f's_waitcnt lgkmcnt(0)\ns_barrier\nds_read_b64 {XQ.t(2)}, {aXQR}')
    lines(so[9:])
    pub('buffer_store_dwordx4', ST.t(4), aASPUB, '0')
    a.label('Q_JOIN')
    stamp('x ready', 3)
    skip_l2('Q_GO')
    a.wait('WQ')
    for j in range(9):
        a(f'ds_read_b64_tr_b16 {(WQ + 2 * j).t(2)}, {aTR} offset:{512 * j}', needs=('WQ',))
    a.label('Q_GO')
    a('s_waitcnt lgkmcnt(0)')
    for j in range(9):
        m4(ACC[j % 3], XQ.t(2), (WQ + 2 * j).t(2), j < 3, j)
    a(f'''v_pk_add_f32 {Y.t(2)}, {ACC[0].t(2)}, {ACC[1].t(2)}
        v_pk_add_f32 {Y.t(2)}, {Y.t(2)}, {ACC[2].t(2)}
        v_cvt_pk_bf16_f32 {t2}, {vTAB}, {Y}''')
    pub('buffer_store_dword', t2, aAPUB, '0')
    dump(0, Y)
    stamp('A pub')
    lines(resid_ops())
    skip_l2('GA_PRE')
    a(f'v_cvt_pk_bf16_f32 {vCQ}, {vTAB}, {Y + 1}')
    wave16k()
    for j in range(k0, 16):
        kvdma(j, False)
    for j in range(P['v0']):
        kvdma(j, True)
    a(f'''s_mul_i32 {sT0}, {sG}, {256 * 1152}
        s_mul_i32 {sT2}, {sI}, 72
        s_and_b32 {sT2}, {sT2}, 0xfffffff0
        s_add_u32 {sT0}, {sT0}, {sT2}''')
    mk_srd(S_WO, 12, sT0, 255 * 1152 + 80)
    a(f's_mul_i32 {sT0}, {sG}, {288 * 1152}\ns_add_u32 {sT0}, {sT0}, {sT2}')
    mk_srd(S_WD, 20, sT0, 287 * 1152 + 80)
    a(f's_mul_i32 {sT0}, {sI}, {36 * 9216}\ns_mul_i32 {sT2}, {sG}, 576\ns_add_u32 {sT0}, {sT0}, {sT2}')
    mk_srd(S_WG, 16, sT0, 35 * 9216 + 576)
    mk_srd(S_WU, 18, sT0, 35 * 9216 + 576)
    mk_srd(S_OUT, 22, None, 1152)
    a(f'''s_mov_b32 {sCQ}, {OFF_CQ - OFF_AD:#x}
        s_mov_b32 {sBD}, {OFF_BD - OFF_AD:#x}
        s_mov_b32 {sDS}, {OFF_DS - OFF_AS:#x}
        s_mov_b32 {sCG}, {OFF_CG - OFF_DD:#x}
        s_mov_b32 {sSLOT}, 0
        s_mov_b32 {sC}, 0x3e0293ee
        s_mov_b32 {sBUD}, 200000
        v_mov_b32 {vEPS}, 0x3727c5ac
        v_mov_b32 {XG + 2}, 0
        v_mov_b32 {XG + 3}, {sTX}
        v_mov_b32 {BST + 2}, 0
        v_mov_b32 {CSQ}, 0
        v_mov_b32 {t0}, 0xffff0000
        v_mov_b32 {t1}, 0x3f800000
        v_mov_b32 {t2}, 0x3f80''')

    def lanemask(ns):
        m = sum(1 << n for n in ns) * 0x10001
        a(f's_mov_b32 vcc_lo, {m:#x}\ns_mov_b32 vcc_hi, {m:#x}')
    for q in range(4):
        lanemask([4 * q])
        a(f'v_cndmask_b32 {MASK4 + q}, 0, {t0}, vcc\nv_cndmask_b32 {SEL4 + q}, 0, {t1}, vcc')
    for dst, lo_n, hi_n in ((SELX, 0, 1), (SELX + 1, 2, 3), (SELD, 0, 1), (SELD + 1, 8, None), (SELD + 2, 4, 5), (SELD + 3, 9, None)):
        lanemask([lo_n])
        a(f'v_cndmask_b32 {dst}, 0, {t2}, vcc')
        if hi_n is not None:
            lanemask([hi_n])
            a(f'v_cndmask_b32 {dst}, {dst}, {t1}, vcc')
    a(f'''v_mov_b32 {SELX + 2}, 0
        v_mov_b32 {SELX + 3}, 0
        v_mov_b32 {t1}, 0x03020706
        v_mov_b32 {t2}, 0x05040100
        s_mov_b32 vcc_lo, 0x55555555
        s_mov_b32 vcc_hi, 0x55555555
        v_cndmask_b32 {vSELH}, {t1}, {t2}, vcc
        v_and_b32 {t1}, 1, {vL}
        v_lshrrev_b32 {t0}, 2, {vL}
        v_lshlrev_b32 {t0}, 3, {t0}
        v_lshl_add_u32 {t0}, {t1}, 8, {t0}
        v_add_u32 {aQR}, {L_Q}, {t0}
        s_lshl_b32 {sT3}, {sI}, 4
        s_lshl_b32 {sT0}, {sG}, 9
        s_lshr_b32 {sT2}, {sW}, 1
        s_lshl_b32 {sT2}, {sT2}, 8
        s_add_u32 {sT0}, {sT0}, {sT2}
        s_add_u32 {sT0}, {sT0}, {OFF_BS:#x}
        v_lshl_add_u32 {t0}, {vRow}, 2, {vN}
        v_and_b32 {t0}, 15, {t0}
        v_lshl_add_u32 {aBSGET}, {t0}, 4, {sT0}
        s_add_u32 {sT0}, {sT0}, {sT3}
        v_mov_b32 {t0}, {sT0}
        v_and_b32 {t1}, 127, v0
        v_cmp_eq_u32 vcc, 0, {t1}
        s_lshl_b32 {sT0}, {sW}, 7
        s_add_u32 {sT0}, {sT0}, {L_Q}
        v_cndmask_b32 {aBSPUB}, {vOOB}, {t0}, vcc
        v_lshl_add_u32 {t0}, {vN}, 2, {vRow}
        v_lshl_add_u32 {aQW}, {t0}, 1, {sT0}
        s_lshl_b32 {sT0}, {sW}, 8
        s_add_u32 {sT0}, {sT0}, {L_PO}
        v_lshl_add_u32 {aPOW}, {vL}, 2, {sT0}
        s_lshl_b32 {sT0}, {sW}, 10
        s_add_u32 {sT0}, {sT0}, {L_PO}
        v_lshl_add_u32 {aPOR}, {vL}, 2, {sT0}
        s_lshl_b32 {sT0}, {sW}, 4
        s_add_u32 {sT0}, {sT0}, {L_PS}
        v_mov_b32 {t0}, {sT0}
        s_mov_b32 vcc_lo, 0
        s_mov_b32 vcc_hi, 0x80000000
        v_cndmask_b32 {aPSW}, {vSINK}, {t0}, vcc
        s_lshr_b32 {sT0}, {sW}, 1
        s_lshl_b32 {sT0}, {sT0}, 3
        s_add_u32 {sT0}, {sT0}, {L_PS}
        v_mov_b32 {aPSR}, {sT0}
        s_mov_b32 {sT0}, {L_O}
        v_lshl_add_u32 {aOR}, {vRow}, 4, {sT0}
        s_lshr_b32 {sT0}, {sI}, 1
        s_lshl_b32 {sT0}, {sT0}, 14
        s_and_b32 {sT2}, {sI}, 1
        s_lshl_b32 {sT2}, {sT2}, 12
        s_add_u32 {sT0}, {sT0}, {sT2}
        s_add_u32 {sT0}, {sT0}, {OFF_X:#x}
        s_lshr_b32 {sT2}, {sXCC}, 2
        s_and_b32 {sT2}, {sT2}, 1
        s_xor_b32 {sT2}, {sT2}, {1 if P['near'] == 1 else 0}
        s_lshl_b32 {sT2}, {sT2}, 13
        s_and_b32 {sT2}, {sT2}, {0x2000 if P['near'] else 0}
        s_add_u32 {sT2}, {sT2}, {sT0}
        v_min_u32 {t0}, 8, {vN}
        v_mul_u32_u24 {t1}, 43, {t0}
        v_lshrrev_b32 {t1}, 7, {t1}
        v_add_u32 {t0}, {t0}, {t1}
        v_lshl_add_u32 {t1}, {vRow}, 10, {sT2}
        v_lshl_add_u32 {aXGET}, {t0}, 4, {t1}
        s_lshl_b32 {sT2}, {sG}, 8
        s_add_u32 {sT0}, {sT0}, {sT2}
        s_lshl_b32 {sT2}, {sW}, 6
        s_add_u32 {sT2}, {sT0}, {sT2}
        v_lshl_add_u32 {t0}, {vRow}, 4, {sT2}
        v_lshl_add_u32 {t0}, {vN}, 13, {t0}
        s_mov_b32 vcc_lo, {0x00030003 if P['near'] else 0x00010001}
        s_mov_b32 vcc_hi, {3 if P['near'] else 1}
        v_cndmask_b32 {aXPUB}, {vOOB}, {t0}, vcc''')
    nmisc = 0
    if P['prewrite']:
        a(f'''s_and_b32 {sT2}, {sW}, 1
            s_xor_b32 {sT2}, {sT2}, 1
            s_lshl_b32 {sT2}, {sT2}, 13
            s_add_u32 {sT2}, {sT2}, {sT0}
            v_lshl_add_u32 {t0}, {vRow}, 17, {sT2}
            v_lshl_add_u32 {t0}, {vN}, 4, {t0}
            v_cmp_le_u32 vcc, {128 if P['near'] else 192}, v0
            v_mov_b32 {G[5]}, 0
            v_mov_b32 {G[5] + 1}, 0
            v_mov_b32 {G[5] + 2}, 0
            v_mov_b32 {G[5] + 3}, 0
            v_cndmask_b32 {t0}, {vOOB}, {t0}, vcc
            buffer_store_dwordx4 {G[5].t(4)}, {t0}, {srd(S_W)}, 0 offen sc1''')
        nmisc += 1
    a(f'''s_mul_i32 {sT0}, {sI}, 72
        v_lshl_add_u32 {t0}, {vN}, 3, {sT0}
        s_mov_b64 vcc, 0x1ff
        v_cndmask_b32 {aOUT}, {vOOB}, {t0}, vcc
        s_mul_i32 {sT0}, {sG}, {16 * 1536}
        s_add_u32 {sT0}, {sT0}, {OFF_DD:#x}
        s_mul_i32 {sT2}, {sI}, 1536
        s_lshl_b32 {sT3}, {sW}, 9
        s_add_u32 {sT2}, {sT2}, {sT3}
        s_add_u32 {sT2}, {sT2}, {sT0}
        v_lshrrev_b32 {t0}, 3, {vL}
        v_lshl_add_u32 {t0}, {t0}, 6, {sT2}
        v_and_b32 {t1}, 3, {vL}
        v_lshl_add_u32 {t0}, {t1}, 4, {t0}
        v_and_b32 {t1}, 4, {vL}
        v_cmp_gt_u32 vcc, 192, v0
        v_lshl_add_u32 {t0}, {t1}, 1, {t0}
        s_mul_i32 {sT2}, {sW}, 384
        v_cndmask_b32 {aDPUB}, {vOOB}, {t0}, vcc
        s_add_u32 {sT0}, {sT0}, {sT2}
        v_mul_u32_u24 {t0}, 6144, {vRow}
        v_add_u32 {t0}, {sT0}, {t0}
        v_lshl_add_u32 {aDG1}, {vN}, 4, {t0}
        v_add_u32 {aDG1b}, 3072, {aDG1}
        v_lshrrev_b32 {t1}, 3, {vN}
        v_mul_u32_u24 {t1}, 3072, {t1}
        v_and_b32 {t2}, 7, {vN}
        v_lshl_add_u32 {t1}, {t2}, 4, {t1}
        v_add_u32 {t0}, {t0}, {t1}
        v_add_u32 {aDG2}, 256, {t0}
        s_mul_i32 {sT0}, {sW}, 24''')
    for dst, base, src in ((aHW1, 0, vN), (aHW2, 16, t2)):
        a(f'''s_add_u32 {sT2}, {sT0}, {base}
            v_add_u32 {t0}, {sT2}, {src}
            v_lshrrev_b32 {t1}, 5, {t0}
            v_mul_u32_u24 {t1}, 96, {t1}
            v_and_b32 {t0}, 31, {t0}
            v_and_b32 {t3}, 28, {t0}
            v_add_u32 {t3}, {t3}, {t0}
            v_lshl_add_u32 {t3}, {vRow}, 2, {t3}
            v_add_u32 {t0}, 64, {t0}
            s_mov_b32 vcc_lo, 0
            s_mov_b32 vcc_hi, 0xffff
            v_cndmask_b32 {t0}, {t3}, {t0}, vcc
            v_add_u32 {t0}, {t0}, {t1}
            v_lshlrev_b32 {t0}, 1, {t0}
            v_add_u32 {t0}, {L_H}, {t0}
            s_mov_b32 vcc_hi, 0xffff0000
            v_cndmask_b32 {dst}, {t0}, {vSINK}, vcc''')
    if P['pretouch']:
        a(f'''s_lshl_b32 {sT0}, {sG}, 4
            s_add_u32 {sT0}, {sT0}, {sI}
            s_mul_i32 {sT2}, {sT0}, 1536
            s_add_u32 {sT2}, {sT2}, {OFF_DD - 16 * 128}
            v_lshl_add_u32 {t0}, {vL}, 7, {sT2}
            v_add_u32 {t1}, {OFF_CG - OFF_DD - 12 * 128}, {t0}
            v_cmp_gt_u32 vcc, 28, {vL}
            s_lshl_b32 {sT2}, {sT0}, 10
            s_add_u32 {sT2}, {sT2}, {OFF_BD}
            v_cndmask_b32 {t0}, {t1}, {t0}, vcc
            v_lshl_add_u32 {t1}, {vL}, 7, {sT2}
            s_mov_b64 vcc, 0xff
            v_cndmask_b32 {t0}, {t0}, {t1}, vcc
            v_add_u32 {t1}, {(OFF_CQ - OFF_BD - 1024) & 0xffffffff:#x}, {t1}
            s_mov_b64 vcc, 0xff00
            v_cndmask_b32 {t0}, {t0}, {t1}, vcc
            s_lshl_b32 {sT2}, {sG}, 8
            s_add_u32 {sT2}, {sT2}, {OFF_DS - 40 * 32}
            v_lshl_add_u32 {t1}, {vL}, 5, {sT2}
            s_mov_b32 vcc_lo, 0
            s_mov_b32 vcc_hi, 0xff00
            v_cndmask_b32 {t0}, {t0}, {t1}, vcc
            s_mov_b32 vcc_hi, 0xffff0000
            v_cndmask_b32 {t0}, {t0}, {aBSGET}, vcc
            v_cmp_eq_u32 vcc, {sW}, {vRow}
            s_or_b32 vcc_hi, vcc_hi, 0x01010000
            v_cndmask_b32 {t0}, {vOOB}, {t0}, vcc''')
        a(f'buffer_load_dword {vDUM}, {t0}, {srd(S_W)}, 0 offen sc1', dummy=1)
        nmisc += 1
    a(f's_mul_i32 {sT0}, {sW}, {9 * 9216}')
    for j in range(2):
        a(f'''v_add_u32 {t0}, {54 * j}, {vL}
            v_mul_u32_u24 {t1}, 58255, {t0}
            v_lshrrev_b32 {t1}, 21, {t1}
            v_mul_u32_u24 {t1}, {9216 - 576}, {t1}
            v_lshl_add_u32 {t1}, {t0}, 4, {t1}
            v_add_u32 {aGU[j]}, {sT0}, {t1}''')
    for j in range(5):
        a(f'''v_add_u32 {t0}, {64 * j}, {vL}
            v_mul_u32_u24 {t1}, 52429, {t0}
            v_lshrrev_b32 {t1}, 18, {t1}
            v_mul_u32_u24 {t1}, 1072, {t1}
            v_lshl_add_u32 {aTL[j]}, {t0}, 4, {t1}''')
    a(f'''v_add_u32 {t0}, 1280, v0
        v_mul_u32_u24 {t1}, 52429, {t0}
        v_lshrrev_b32 {t1}, 18, {t1}
        v_mul_u32_u24 {t1}, 1072, {t1}
        v_lshl_add_u32 {aTL[5]}, {t0}, 4, {t1}''')
    stamp('set-up B', 3)
    a(f'''v_lshlrev_b32 {t0}, 8, {vL}
        v_lshl_add_u32 {t0}, {vN}, 4, {t0}
        v_add_u32 {aTR}, {sT1}, {t0}''')
    a.wait('K')
    for p in range(16):
        a(f'v_xor_b32 {(t0, t1)[p & 1]}, {16 * p}, {aTR}')
        a(f'ds_read_b128 {ar(A_K + 4 * p, 4)}, {(t0, t1)[p & 1]}', needs=('K',))
    a('s_waitcnt lgkmcnt(0)\ns_barrier')
    rstamp(4)
    a_loads()
    gu_batch(0, 12)
    a.wait('A')
    a_reduce(False)
    a.jmp('GA_CHECK')
    a.label('GA_PRE')
    if P['ackwait']:
        a('s_waitcnt vmcnt(0)')
    a.label('GA_ISSUE')
    a_loads()
    a('s_waitcnt vmcnt(4)')
    lo = a_reduce(True)
    a.label('GA_CHECK')
    retry('A', 'GA_ISSUE')
    lines(lo[6])
    a(f'''v_fma_f32 {t0}, -{vDM}, {CSQ}, {ACC[0]}
        v_mul_f32 {t0}, {t0}, {vRS}
        v_cvt_pk_bf16_f32 {t1}, {t0}, {t0}
        ds_write_b16 {aQW}, {t1}''')
    dump(1, t0)
    stamp('q sum', 3)
    a(f'''s_waitcnt lgkmcnt(0)
        s_barrier
        ds_read_b64 {QA.t(2)}, {aQR}
        ds_read_b64 {(QA + 2).t(2)}, {aQR} offset:128''')
    stamp('q ready')
    lines(newmean_ops())
    skip_l2('S_GO')
    a(f'v_cmp_ne_u32 vcc, {sXCC}, {G[4] + 2}\ns_cmp_eq_u64 vcc, 0')
    if P['forceslow']:
        a(f's_cmp_eq_u32 {sW}, 77')
    a(f's_cselect_b32 s{S_F + 2}, {WS_USED:#x}, 0\ns_cselect_b32 s{S_S + 2}, 0, {WS_USED:#x}')
    pub('buffer_store_dword', vCQ, aAPUB, sCQ)
    if P['po']:
        prefetch(12, 18432)
    if P['pd'] == 1:
        prefetch(20, 20736)
    for j in range(P['v0'], P['v2']):
        kvdma(j, True)
    a.label('S_GO')
    a('s_waitcnt lgkmcnt(0)')
    for j in range(32):
        m4(ACC[j % 3], (QA + 2 * (j >> 4)).t(2), ar(A_K + 2 * j, 2), j < 3, j & 15)
    a(f'''v_pk_add_f32 {Y.t(2)}, {ACC[2].t(2)}, {ACC[0].t(2)}
        v_pk_add_f32 {Y.t(2)}, {Y.t(2)}, {ACC[1].t(2)}
        v_mul_f32 {Y}, {sC}, {Y}
        v_mul_f32 {Y + 1}, {sC}, {Y + 1}''')
    dump(2, Y)
    stamp('scores', 3)
    lines(flat(ror_steps('v_max_f32', [PSV, PSV + 2], [Y, Y + 1]) + bcast_steps('v_max_f32', [PSV, PSV + 2])))
    a(f'''v_ceil_f32 {PSV}, {PSV}
        v_ceil_f32 {PSV + 2}, {PSV + 2}
        v_readlane_b32 {sR0}, {PSV}, 63
        v_readlane_b32 {sR1}, {PSV + 2}, 63
        v_subrev_f32 {Y}, {sR0}, {Y}
        v_subrev_f32 {Y + 1}, {sR1}, {Y + 1}
        v_exp_f32 {Y}, {Y}
        v_exp_f32 {Y + 1}, {Y + 1}
        v_cvt_pk_bf16_f32 {t0}, {Y}, {Y + 1}
        v_mov_b32_dpp {t1}, {t0} quad_perm:[1,0,3,2]{DPP}
        v_perm_b32 {PA}, {t1}, {t0}, {vSELH}
        v_mov_b32_dpp {PA + 1}, {PA} quad_perm:[2,3,2,3]{DPP}''')
    stamp('p ready')
    skip_l2('PV_GO')
    a.wait('GU')
    a('s_barrier', needs=('GU',))
    w3_to('NOGU')
    a(f'''v_lshrrev_b32 {t0}, 2, {vN}
        v_mul_u32_u24 {t0}, 576, {t0}
        s_mul_i32 {sT0}, {sW}, 192
        v_add_u32 {t0}, {sT0}, {t0}
        v_and_b32 {t1}, 3, {vL}
        v_lshl_add_u32 {t2}, {vRow}, 2, {t1}
        v_lshl_add_u32 {aTR}, {t2}, 3, {t0}
        v_lshrrev_b32 {t2}, 1, {t2}
        v_lshl_add_u32 {t0}, {t2}, 3, {t0}
        v_and_b32 {t1}, 1, {vL}
        v_mul_u32_u24 {t1}, 20736, {t1}
        v_add_u32 {aTR2}, {t0}, {t1}''')
    for j in range(9):
        a(f'ds_read_b64_tr_b16 {ar(A_GU + 2 * j, 2)}, {aTR} offset:{2304 * j}')
        a(f'ds_read_b64_tr_b16 {ar(A_GU + 18 + 2 * j, 2)}, {aTR} offset:{20736 + 2304 * j}')
        a(f'ds_read_b64_tr_b16 {ar(A_GU + 36 + 2 * j, 2)}, {aTR2} offset:{128 + 2304 * j}')
    a('s_waitcnt lgkmcnt(0)')
    for j in range(9):
        for b in range(3):
            m4(ACC[b], ONE.t(2), ar(A_GU + 18 * b + 2 * j, 2), j == 0, 0)
    a(f'v_cvt_pk_bf16_f32 {PK2}, {ACC[0]}, {ACC[1]}\nv_cvt_pk_bf16_f32 {PK2 + 1}, {ACC[2]}, {vTD}')
    a.label('NOGU')
    pub('buffer_store_dwordx2', PK2.t(2), aDPUB, sCG)
    a(f'''v_lshrrev_b32 {t0}, 2, {vN}
        v_lshlrev_b32 {t1}, 2, {t0}
        v_bfe_u32 {t2}, {vL}, 1, 1
        v_lshl_add_u32 {t2}, {vRow}, 1, {t2}
        v_xor_b32 {t2}, {t2}, {t1}
        v_lshlrev_b32 {t0}, 8, {t0}
        v_lshl_add_u32 {t0}, {t2}, 4, {t0}
        v_and_b32 {t1}, 1, {vL}
        v_lshl_add_u32 {t0}, {t1}, 3, {t0}
        s_add_u32 {sT0}, {sT1}, {L_V}
        v_add_u32 {aTR}, {sT0}, {t0}
        v_xor_b32 {aTR2}, 128, {aTR}''')
    for grp in range(4):
        if grp == P['wo_at']:
            wave16k()
            for j in range(P['v2'], 16):
                kvdma(j, True)
            tall_base()
            for k in range(5):
                tall_dma(S_WO, L_WO, k, 'WO')
            if P['pd'] == 2:
                prefetch(20, 20736)
        a.wait('V%d' % grp)
        for b in range(4 * grp, 4 * grp + 4):
            for eta in range(2):
                a(f'ds_read_b64_tr_b16 {ar(A_V + 4 * b + 2 * eta, 2)}, {aTR2 if eta else aTR} offset:{1024 * b}',
                  needs=('V%d' % grp,))
    a('s_waitcnt lgkmcnt(0)')
    stamp('V ready', 3)
    rstamp(3)
    a.label('PV_GO')
    ls = flat(ror_steps('v_add_f32', [PSV + 1, PSV + 3], [Y, Y + 1]) + bcast_steps('v_add_f32', [PSV + 1, PSV + 3]))
    for b in range(16):
        for eta in range(2):
            m4(ACC[2 * (b & 1) + eta], PA.t(2), ar(A_V + 4 * b + 2 * eta, 2), b < 2, b)
            if ls:
                a(ls.pop(0))
    a(f'''ds_write_b128 {aPSW}, {PSV.t(4)}
        v_pk_add_f32 {PO.t(2)}, {ACC[0].t(2)}, {ACC[2].t(2)}
        v_pk_add_f32 {(PO + 2).t(2)}, {ACC[1].t(2)}, {ACC[3].t(2)}
        ds_write2st64_b32 {aPOW}, {PO}, {PO + 1} offset0:0 offset1:8
        ds_write2st64_b32 {aPOW}, {PO + 2}, {PO + 3} offset0:4 offset1:12''')
    stamp('PV done', 3)
    a(f'''s_waitcnt lgkmcnt(0)
        s_barrier
        ds_read2_b64 {PS.t(4)}, {aPSR} offset0:0 offset1:2
        ds_read2_b64 {(PS + 4).t(4)}, {aPSR} offset0:4 offset1:6
        ds_read2st64_b32 {PO.t(2)}, {aPOR} offset0:0 offset1:1
        ds_read2st64_b32 {(PO + 2).t(2)}, {aPOR} offset0:2 offset1:3
        s_waitcnt lgkmcnt(2)
        v_max3_f32 {BST}, {PS}, {PS + 2}, {PS + 4}
        v_max_f32 {BST}, {BST}, {PS + 6}''')
    lines([f'v_sub_f32 {PS + 2 * q}, {PS + 2 * q}, {BST}' for q in range(4)])
    lines([f'v_exp_f32 {PS + 2 * q}, {PS + 2 * q}' for q in range(4)])
    a(f's_waitcnt lgkmcnt(0)\nv_mul_f32 {t0}, {PS}, {PO}')
    lines([f'v_fmac_f32 {t0}, {PS + 2 * q}, {PO + q}' for q in range(1, 4)])
    a(f'v_cvt_pk_bf16_f32 {t2}, {vTAB}, {t0}')
    pub('buffer_store_dword', t2, aAPUB, sBD)
    a(f'v_mul_f32 {BST + 1}, {PS}, {PS + 1}')
    lines([f'v_fmac_f32 {BST + 1}, {PS + 2 * q}, {PS + 2 * q + 1}' for q in range(1, 4)])
    pub('buffer_store_dwordx4', BST.t(4), aBSPUB, '0')
    dump(3, t0)
    stamp('B pub')
    rstamp(0)
    skip_l2('GB_PRE')
    tall_addr(L_WO)
    a.wait('WO')
    a('s_barrier', needs=('WO',))
    tall_tr(8, A_WO)
    a.label('GB_PRE')
    if P['ackwait']:
        a('s_waitcnt vmcnt(0)')
    a.label('GB_ISSUE')
    b_loads()
    a('s_waitcnt vmcnt(4)')
    b_reduce(True)
    a.label('GB_CHECK')
    retry('B', 'GB_ISSUE')
    a(f'''v_mul_f32 {t0}, {ACC[0]}, {vE1}
        v_cvt_pk_bf16_f32 {t1}, {t0}, {t0}
        ds_write_b16 {aQW}, {t1} offset:{L_O - L_Q}''')
    dump(4, t0)
    stamp('o sum', 3)
    a('s_waitcnt lgkmcnt(0)\ns_barrier')
    stamp('o ready')
    w3_to('W3_C')
    tall_stage(8, A_WO, 0)
    dump(5, ACC[0])
    stamp('C pub')
    rstamp(2)
    skip_l2('C_WAIT')
    cg_loads()
    if P['wd_at'] == 1:
        wd_pieces()
    if P['xbar']:
        a.wait('XP')
        a('s_barrier')
    a.wait('CG')
    cg_reduce('CG')
    a.jmp('C_BAR')
    a.label('C_WAIT')
    if P['xbar']:
        a.wait('XP')
        a('s_barrier')
    a.label('C_BAR')
    a(f's_barrier\nds_read_b64 {XQ.t(2)}, {aXQR}')
    if P['wd_at'] == 2:
        skip_l2('G_GO')
        wd_pieces()
        a.label('G_GO')
    a(f's_add_u32 {sSLOT}, {sSLOT}, 0x20000\ns_waitcnt lgkmcnt(0)')
    for j in range(9):
        for b in range(3):
            m4(ACC[b], XQ.t(2), ar(A_GU + 18 * b + 2 * j, 2), j == 0, j)
    a(f'v_cvt_pk_bf16_f32 {PK2}, {ACC[0]}, {ACC[1]}\nv_cvt_pk_bf16_f32 {PK2 + 1}, {ACC[2]}, {vTD}')
    pub('buffer_store_dwordx2', PK2.t(2), aDPUB, '0')
    dump(6, ACC[0])
    stamp('D pub')
    skip_l2('GD_ACK')
    a.label('GD_L1')
    tall_addr(L_WD)
    a('s_waitcnt vmcnt(0)')
    a('s_barrier', needs=('WD',))
    tall_tr(9, A_WD)
    a.label('GD_ACK')
    if P['ackwait']:
        a('s_waitcnt vmcnt(0)')
    a.label('GD_ISSUE')
    d_loads()
    a.label('GD_WAIT')
    lo = ln_ops(G[6])
    a(f's_waitcnt vmcnt(6)\nv_cmp_ne_u32 {sP}, {sT}, {G[6] + 3}')
    lines(lo[0])
    a('s_waitcnt vmcnt(5)')
    m16(ACC[1], SELD.t(4), G[4].t(4), '0')
    lines(lo[1])
    a('s_waitcnt vmcnt(4)')
    m16(ACC[1], SELD.t(4), G[5].t(4), ACC[1].t(4))
    chk_d(G[4], G[5], True)
    lines(lo[2])
    a('s_waitcnt vmcnt(3)')
    m16(ACC[0], SELD.t(4), G[0].t(4), '0')
    lines(lo[3])
    a('s_waitcnt vmcnt(2)')
    m16(ACC[0], SELD.t(4), G[1].t(4), ACC[0].t(4))
    chk_d(G[0], G[1], False)
    lines(lo[4] + lo[5] + lo[6])
    a('s_waitcnt vmcnt(1)')
    m16(ACC[0], SELD.t(4), G[2].t(4), ACC[0].t(4))
    a(f'''v_add_f32_dpp {t4}, {ACC[1]}, {ACC[1]} row_ror:8{DPP}
        v_add_f32_dpp {t5}, {ACC[1] + 1}, {ACC[1] + 1} row_ror:8{DPP}
        v_mul_f32 {vRS}, {vRS}, {vRS}
        s_waitcnt vmcnt(0)''')
    m16(ACC[0], SELD.t(4), G[3].t(4), ACC[0].t(4))
    chk_d(G[2], G[3], False)
    a(f'''v_cmp_lt_u32 vcc, 0xffff, {vE2}
        v_fma_f32 {t4}, -{vDM}, {CSG + 2}, {t4}
        v_fma_f32 {t5}, -{vDM}, {CSG + 3}, {t5}
        s_or_b64 vcc, vcc, {sP}''')
    retry('D', 'GD_ISSUE')
    a(f'''v_mul_f32 {t4}, {t4}, {vRS}
        v_mul_f32 {t4}, {t4}, {t5}
        v_fma_f32 {t0}, -{vDM}, {CSG}, {ACC[0]}
        v_fma_f32 {t1}, -{vDM}, {CSG + 1}, {ACC[0] + 1}
        v_mul_f32 {t0}, {t0}, {vRS}
        v_mul_f32 {t0}, {t0}, {t1}
        v_cvt_pk_bf16_f32 {t1}, {t0}, {t4}
        ds_write_b16 {aHW1}, {t1}
        ds_write_b16_d16_hi {aHW2}, {t1}''')
    dump(7, t0)
    stamp('h sum', 3)
    a('s_waitcnt lgkmcnt(0)\ns_barrier')
    stamp('h ready')
    w3_to('W3_E')
    tall_stage(9, A_WD, L_H - L_O)
    dump(8, ACC[0])
    stamp('E pub')
    rstamp(1)
    skip_l2('E_LAST')
    cq_loads()
    if P['xbar']:
        a('s_waitcnt vmcnt(4)\ns_barrier')
    a('s_waitcnt vmcnt(0)')
    cq_reduce('CQ')
    a(f's_add_u32 {sSLOT}, {sSLOT}, 0x20000')
    set_tags()
    setlayer2()
    a.label('Q_ENTRY')
    a(f's_barrier\nds_read_b64 {XQ.t(2)}, {aXQR}')
    a.jmp('Q_JOIN')
    a.label('E_LAST')
    if P['xbar']:
        a('s_waitcnt vmcnt(0)\ns_barrier')
    a.jmp('FINISH')

    a.label('W3_C')
    skip_l2('W3_C2')
    cg_loads()
    if P['pd'] == 3:
        a(f's_lshl_b32 {sT0}, {sG}, 4\ns_add_u32 {sT0}, {sT0}, {sI}\ns_mul_i32 {sT0}, {sT0}, 20736')
        mk_srd(S_X, 20, sT0, 20736)
        a(f'v_lshlrev_b32 {t0}, 6, {vL}')
        for k in range(6):
            a(f's_mov_b32 {sT0}, {4096 * k}')
            a(f'buffer_load_dword {vDUM}, {t0}, {srd(S_X)}, {sT0} offen', dummy=1)
    if P['wd_at'] == 1:
        wd_pieces()
    a.wait('CG')
    cg_reduce('CH')
    a.label('W3_C2')
    if P['xbar']:
        a('s_barrier')
    stamp('C poll', 3)
    xgather('C')
    xq_write()
    so = stats_ops()
    lines(so[:9])
    a('s_waitcnt lgkmcnt(0)')
    a('s_barrier')
    stamp('x1 ready')
    lines(so[9:])
    pub('buffer_store_dwordx4', ST.t(4), aASPUB, sDS)
    a(f's_add_u32 {sSLOT}, {sSLOT}, 0x20000')
    dump(9, XC)
    lines(resid_ops())
    skip_l2('W3_EPOCH')
    if P['wd_at'] == 2:
        wd_pieces()
    a.jmp('GD_L1')
    a.label('W3_EPOCH')
    a('s_cmp_lg_u32 s2, 0')
    a.br('s_cbranch_scc1', 'GD_ACK', lambda c: not c['final'])
    a(f'''v_mov_b32 {t0}, 0
        s_mov_b64 exec, 1
        buffer_store_dword {ST + 3}, {t0}, {srd(S_W)}, 0 offen
        s_mov_b64 exec, -1''')
    a.jmp('GD_ACK')

    a.label('W3_OUT')
    lines([f'v_add_f32 {XR + r}, {XC + r}, {vMP}' for r in range(4)])
    a(f'''v_cvt_pk_bf16_f32 {PK2}, {XR}, {XR + 1}
        v_cvt_pk_bf16_f32 {PK2 + 1}, {XR + 2}, {XR + 3}
        buffer_store_dwordx2 {PK2.t(2)}, {aOUT}, {srd(S_OUT)}, 0 offen''')
    a.label('FINISH')
    if P['hold']:
        a.label('HOLD')
        a(f's_memrealtime {sTS}\ns_waitcnt lgkmcnt(0)\ns_sub_u32 {sT0}, {sTSlo}, s3\ns_cmp_lt_u32 {sT0}, {P["hold"]}')
        a.br('s_cbranch_scc1', 'HOLD', lambda c: False)
    if P['stamps']:
        stamp('end', 1)
        a(f'''s_memrealtime {sTS}
            s_waitcnt lgkmcnt(0)
            v_writelane_b32 {vTS}, {sTSlo}, 31
            v_writelane_b32 {vTS}, {sRC}, 62
            s_mov_b32 {sT3}, {OFF_DBG:#x}
            buffer_store_dword {vTS}, {aDM}, {srd(S_W)}, {sT3} offen''')
    a.label('END')
    a('s_endpgm')
    for tag, issue, reissue in retry_blocks:
        a.label('RETRY_' + tag)
        if P['stamps'] >= 2 and len(tag) == 1:
            a(f's_add_u32 {sRC}, {sRC}, {1 << (6 * "ABCDE".index(tag))}')
        a(f's_sub_u32 {sBUD}, {sBUD}, 1')
        if reissue:
            a.br('s_cbranch_scc1', 'GIVEUP_' + tag, lambda c: False)
            reissue()
            a.jmp(issue)
            a.label('GIVEUP_' + tag)
        else:
            a.br('s_cbranch_scc0', issue, lambda c: True)
        a(f's_mov_b32 {sBUD}, 0')
        a.jmp('CONT_' + tag)
    a.label('CODE_END')

    ctxs = []
    for w in (0, 3):
        for fin in (True, False):
            for rt in (False, True):
                ctxs.append(lambda w=w, fin=fin, rt=rt: dict(layer=0, wave=w, final=fin, retry=rt,
                                                              name='w%d fin%d retry%d' % (w, fin, rt)))
    a.resolve_waits(ctxs)
    a.fix_hazards(ctxs)
    errs = a.check_waits(ctxs)
    return a, errs, v.n, names


HEADER = '''; Persistent decode kernel: 256 workgroups (one per CU) keep K, V and all weights on chip for both layers.
; @launch grid=(256,1,1) block=(256,1,1) lds=%d
.amdgcn_target "amdgcn-amd-amdhsa--gfx950"
.text
.globl %s
.p2align 8
.type %s,@function
%s:
'''
FOOTER = '''.section .rodata,"a"
.p2align 6
.amdhsa_kernel %s
  .amdhsa_next_free_vgpr 512
  .amdhsa_next_free_sgpr 102
  .amdhsa_accum_offset 256
  .amdhsa_group_segment_fixed_size 0
  .amdhsa_kernarg_size 96
  .amdhsa_user_sgpr_count 2
  .amdhsa_user_sgpr_kernarg_segment_ptr 1
  .amdhsa_system_sgpr_workgroup_id_x 1
.end_amdhsa_kernel
'''


def render(**kw):
    a, errs, nv, names = build(**kw)
    txt = HEADER % (LDS_BYTES, KNAME, KNAME, KNAME) + a.text() + FOOTER % KNAME
    if names:
        txt = '; stamps: ' + ','.join(names) + '\n' + txt
    return txt, a, errs, nv, names


if __name__ == '__main__':
    out = sys.argv[1]
    kw = {}
    for s in sys.argv[2:]:
        k, x = s.split('=')
        kw[k] = int(x)
    txt, a, errs, nv, names = render(**kw)
    for e in sorted(set(errs)):
        print('WAIT ERROR', e)
    open(out, 'w').write(txt)
    print('vgprs', nv, 'lds', LDS_BYTES, 'pads', sum(p for p, _ in a.pads()))
    if errs:
        sys.exit(1)
```

```python
import sys
from asmlib import Asm

KNAME = 'interleave_layers__sliding_block_cached__glu_gated_bilinear__decode_kernel'

DEFAULTS = dict(
    stamps=0,
    dump=0,
    ka=5,
    kb=5,
    v0=4,
    v2=16, wo_at=0,
    po=0,
    pd=3,
    wd_at=2,
    pnt=0,
    near=1,
    pretouch=1, prewrite=1, codepf=2, tlbpf=0,
    ackwait=1,
    xbar=1,
    forceslow=0, xdelay=0,
    amp=-1, hold=0,
)

OFF_AD, OFF_CQ, OFF_BD = 0x1000, 0x41000, 0x81000
OFF_DD, OFF_CG = 0xC1000, 0x121000
OFF_AS, OFF_DS, OFF_BS = 0x181000, 0x182000, 0x183000
OFF_X = 0x200000
WS_USED = 0x280000
OFF_DBG = 0x300000
WS_SRD = 0x1000000
OOB = 0x80000000
L_K, L_V = 0, 65536
L_GU, L_WD = 0, 65536
L_X = 131072
L_ONE = L_X + 128
L_Q = L_X + 192
L_O = L_Q + 512
L_H = L_O + 512
L_PS = L_H + 640
L_DUM = L_PS + 64
L_PO = (L_DUM + 1024 + 255) // 256 * 256
L_WQ = L_PO + 4096
L_WO = L_WQ
LDS_BYTES = L_WO + 20480 + 256
assert 81920 < LDS_BYTES <= 163840

S_K, S_V, S_WQ, S_WO, S_WG, S_WU, S_WD, S_X, S_OUT, S_W, S_F, S_S = range(28, 76, 4)
(sW, sG, sI, sROT, sT, sThi, sTsh, sLAY, sBUD, sXCC, sCQ, sBD, sDS, sCG, sSLOT,
 sR0, sR1, sT0, sT1, sT2, sT3, sE) = ['s%d' % n for n in range(76, 98)]
sM9, sP = 's[98:99]', 's[100:101]'
sC, sINV, sHIM, sRC, sTS, sTSlo, sTX = 's4', 's5', 's6', 's7', 's[8:9]', 's8', 's10'
A_K, A_V, A_GU, A_WO, A_WD = 0, 64, 128, 184, 216
DPP = ' row_mask:0xf bank_mask:0xf'


def srd(b):
    return 's[%d:%d]' % (b, b + 3)


class R(int):
    def __str__(self):
        return 'v%d' % int(self)
    __format__ = lambda self, spec: str(self)

    def __add__(self, o):
        return R(int(self) + o)

    def t(self, k):
        return 'v[%d:%d]' % (int(self), int(self) + k - 1)


def ar(b, k):
    return 'a[%d:%d]' % (b, b + k - 1)


class V:
    def __init__(self):
        self.n = 1

    def __call__(self, k=1, al=1):
        if k > 1:
            al = max(al, 2)
        self.n = (self.n + al - 1) // al * al
        r = self.n
        self.n += k
        assert self.n <= 256
        return R(r)


def build(**kw):
    P = dict(DEFAULTS)
    for k in kw:
        assert k in P, k
    P.update(kw)
    a = Asm()
    v = V()
    L1 = lambda c: c['layer'] == 0
    L2 = lambda c: c['layer'] == 1
    W3 = lambda c: c['wave'] == 3
    NW3 = lambda c: c['wave'] != 3

    vL, vRow, vN = v(), v(), v()
    t0, t1, t2, t3, t4, t5, vSINK, vOOB = [v() for _ in range(8)]
    (aXQR, aAPUB, aAGET, aASGET, aASPUB, aBSGET, aBSPUB, aQW, aQR, aPOW, aPOR, aPSW, aPSR, aOR, aXPUB,
     aXGET, aXQW, aDPUB, aDG1, aDG1b, aDG2, aHW1, aHW2, aOUT) = [v() for _ in range(24)]
    SEL4, MASK4, SELX, SELD = v(4, 4), v(4, 4), v(4, 4), v(4, 4)
    vSELH, vTAB, vTD, vEPS, vMP, t6 = v(), v(), v(), v(), v(), v()
    XG, ST, BST, PSV = v(4, 4), v(4, 4), v(4, 4), v(4, 4)
    WQ = v(18, 2)
    XQ, QA, PA, ONE = v(2), v(4, 2), v(2), v(2)
    ACC = [v(4, 4) for _ in range(4)]
    G = [v(4, 4) for _ in range(7)]
    OP = v(36, 4)
    G2 = [OP + 4 * q for q in range(6)]
    AW = [OP + 4 * q for q in range(4)]
    XC, XR, CI = v(4, 4), v(4, 4), v(4, 4)
    CSQ, CSG = v(), v(4, 2)
    Y, PK2 = v(2), v(2)
    PO, PS = v(4, 2), v(8, 2)
    vDM, vRS, vE0, vE1, vE2 = v(), v(), v(), v(), v()
    aK = [v() for _ in range(4)]
    aV, aWQ, aTR, aTR2, aDM = v(), v(), v(), v(), v()
    aGU = [v() for _ in range(2)]
    aTL = [v() for _ in range(6)]
    vCQ = v()
    vTS, vDUM = v(), v()
    names = []

    def lines(xs):
        for x in xs:
            a(x)

    def stamp(name, level=2):
        if P['stamps'] < level:
            return
        k = len(names)
        names.append(name)
        assert k < 30
        a(f'''s_memtime {sTS}
            s_lshl_b32 {sT3}, {sLAY}, 5
            s_add_u32 m0, {sT3}, {k}
            s_waitcnt lgkmcnt(0)
            v_writelane_b32 {vTS}, {sTSlo}, m0''')

    def rstamp(k):
        if P['amp'] in (k, k + 8):
            a(f's_cmp_lg_u32 {sLAY}, {P["amp"] >> 3}')
            a.br('s_cbranch_scc1', 'AMP%d' % k, lambda c: c['layer'] != P['amp'] >> 3)
            a(f's_memrealtime {sTS}\ns_waitcnt lgkmcnt(0)\ns_sub_u32 s11, {sTSlo}, s3')
            a.label('AMP%d' % k)
        if P['stamps'] != 1:
            return
        a(f'''s_memrealtime {sTS}
            s_lshl_b32 {sT3}, {sLAY}, 3
            s_add_u32 m0, {sT3}, {40 + k}
            s_waitcnt lgkmcnt(0)
            v_writelane_b32 {vTS}, {sTSlo}, m0''')

    def estamp(name):
        if P['stamps'] < 3:
            return
        k = len(names)
        names.append(name)
        a(f's_memtime s[86:87]\ns_waitcnt lgkmcnt(0)\nv_writelane_b32 {vTS}, s86, {k}')

    def dump(idx, reg):
        if not P['dump']:
            return
        a(f'''s_lshl_b32 {sT3}, {sLAY}, 18
            s_add_u32 {sT3}, {sT3}, {OFF_DBG + 0x100000 + idx * 0x80000:#x}
            buffer_store_dword {reg}, {aDM}, {srd(S_W)}, {sT3} offen
            s_waitcnt vmcnt(0)''')

    def mk_srd(b, ptr, off, size):
        if off is None:
            a(f's_mov_b32 s{b}, s{ptr}\ns_and_b32 s{b + 1}, s{ptr + 1}, 0xffff')
        else:
            a(f's_add_u32 s{b}, s{ptr}, {off}\ns_addc_u32 s{b + 1}, s{ptr + 1}, 0\ns_and_b32 s{b + 1}, s{b + 1}, 0xffff')
        a(f's_mov_b32 s{b + 2}, {size:#x}\ns_mov_b32 s{b + 3}, 0x20000')

    def pub(op, data, addr, soff):
        a(f'{op} {data}, {addr}, {srd(S_F)}, {soff} offen')
        a(f'{op} {data}, {addr}, {srd(S_S)}, {soff} offen sc1')

    def gload(dst, addr, soff, off=0, tag=None):
        a(f'buffer_load_dwordx4 {dst.t(4)}, {addr}, {srd(S_W)}, {soff} offen' + (f' offset:{off}' if off else '') + ' sc1', tag=tag)

    retry_blocks = []

    def retry(tag, issue_label, reissue=None):
        def taken(c):
            k = (tag, c['layer'])
            if c.get('retry') and k not in c.setdefault('_done', set()):
                c['_done'].add(k)
                return True
            return False
        a.br('s_cbranch_scc1', 'RETRY_' + tag, taken)
        a.label('CONT_' + tag)
        retry_blocks.append((tag, issue_label, reissue))

    def skip_l2(label):
        a(f's_cmp_lg_u32 {sLAY}, 0')
        a.br('s_cbranch_scc1', label, L2)

    def w3_to(label):
        a(f's_cmp_eq_u32 {sW}, 3')
        a.br('s_cbranch_scc1', label, W3)

    def wave16k():
        a(f's_lshl_b32 {sT1}, {sW}, 14')

    def kvdma(j, isv):
        a(f'''s_add_u32 m0, {sT1}, {(L_V if isv else L_K) + 1024 * j}
            s_add_u32 {sT0}, {sROT}, {j << 12}
            s_and_b32 {sT0}, {sT0}, 0xf000''')
        if isv:
            a(f'buffer_load_dwordx4 {aV}, {srd(S_V)}, {sT0} offen nt lds', fills='V%d' % (j // 4))
        else:
            a(f'buffer_load_dwordx4 {aK[j & 3]}, {srd(S_K)}, {sT0} offen nt lds', fills='K')

    def tall_base():
        a(f's_mul_i32 {sT2}, {sW}, 5120\ns_mul_i32 {sT3}, {sW}, {64 * 1152}')

    def tall_dma(S, region, k, fills):
        if k < 5:
            a(f's_add_u32 m0, {sT2}, {region + 1024 * k}')
            a(f'buffer_load_dwordx4 {aTL[k]}, {srd(S)}, {sT3} offen nt lds', fills=fills)
        else:
            a(f's_lshl_b32 {sT0}, {sW}, 10\ns_add_u32 m0, {sT0}, {region + 20480}')
            a(f'buffer_load_dwordx4 {aTL[5]}, {srd(S)}, 0 offen nt lds', fills=fills)

    def prefetch(ptr, size):
        a(f's_lshl_b32 {sT0}, {sG}, 4\ns_add_u32 {sT0}, {sT0}, {sI}\ns_mul_i32 {sT0}, {sT0}, {size}')
        mk_srd(S_X, ptr, sT0, size)
        a(f'v_lshlrev_b32 {t0}, 6, v0\ns_mov_b32 {sT0}, 16384')
        nt = ' nt' if P['pnt'] else ''
        a(f'buffer_load_dword {vDUM}, {t0}, {srd(S_X)}, 0 offen{nt}', dummy=1)
        a(f'buffer_load_dword {vDUM}, {t0}, {srd(S_X)}, {sT0} offen{nt}', dummy=1)

    def wd_pieces():
        tall_base()
        for k in range(6):
            tall_dma(S_WD, L_WD, k, 'WD')

    def gu_batch(lo, hi):
        if hi > lo:
            a(f's_mul_i32 {sT2}, {sW}, 5184\ns_mov_b32 exec_hi, 0x3fffff')
            for k in range(lo, hi):
                gudma(k)
            a('s_mov_b32 exec_hi, -1')

    def gudma(k):
        j, mu = k >> 1, k & 1
        a(f's_add_u32 m0, {sT2}, {L_GU + 20736 * mu + 864 * j}\ns_mov_b32 {sT0}, {(j >> 1) * 3 * 9216}')
        a(f'buffer_load_dwordx4 {aGU[j & 1]}, {srd(S_WU if mu else S_WG)}, {sT0} offen nt lds', fills='GU')

    def set_tags():
        a(f'''s_and_b32 {sT}, {sT}, 0x1fff1fff
            s_add_u32 {sT}, {sT}, 0x10001
            s_and_b32 {sT}, {sT}, 0x1fff1fff
            s_or_b32 {sT}, {sT}, 0x20002000
            s_lshr_b32 {sThi}, {sT}, 16
            s_lshl_b32 {sTsh}, {sT}, 16
            s_and_b32 {sT0}, {sT}, 0xffff0000
            v_mov_b32 {t0}, {sTsh}
            v_mov_b32 {t1}, {sT0}
            s_mov_b32 vcc_lo, 0x55555555
            s_mov_b32 vcc_hi, 0x55555555
            v_cndmask_b32 {vTAB}, {t1}, {t0}, vcc
            s_mov_b32 vcc_lo, 0x0f0f0f0f
            s_mov_b32 vcc_hi, 0x0f0f0f0f
            v_cndmask_b32 {vTD}, {t1}, {t0}, vcc
            v_mov_b32 {ST + 3}, {sT}
            v_mov_b32 {BST + 3}, {sT}''')

    def ror_steps(op, regs, first_src=None):
        out = []
        for k, sh in enumerate((8, 4, 2, 1)):
            grp = []
            for q, r in enumerate(regs):
                s = first_src[q] if (k == 0 and first_src) else r
                grp.append(f'{op}_dpp {r}, {s}, {s} row_ror:{sh}{DPP}')
            out.append(grp)
        return out

    def bcast_steps(op, regs):
        return [[f'{op}_dpp {r}, {r}, {r} row_bcast:{bc} row_mask:{rm} bank_mask:0xf' for r in regs]
                for bc, rm in ((15, '0xa'), (31, '0xc'))]

    def flat(groups):
        return [x for g in groups for x in g]

    def stats_ops():
        return [f'v_add_f32 {t4}, {XC}, {XC + 1}',
                f'v_mul_f32 {t5}, {XC}, {XC}',
                f'v_add_f32 {t6}, {XC + 2}, {XC + 3}',
                f'v_fmac_f32 {t5}, {XC + 1}, {XC + 1}',
                f'v_add_f32 {t4}, {t4}, {t6}',
                f'v_fmac_f32 {t5}, {XC + 2}, {XC + 2}',
                f'v_cndmask_b32 {ST}, 0, {t4}, {sM9}',
                f'v_fmac_f32 {t5}, {XC + 3}, {XC + 3}',
                f'v_cndmask_b32 {ST + 1}, 0, {t5}, {sM9}'] + flat(ror_steps('v_add_f32', [ST, ST + 1]))

    def resid_ops():
        return [f'v_add_f32 {XR + r}, {XC + r}, {vMP}' for r in range(4)] + [
            f'v_cvt_pk_bf16_f32 {XR + 1}, {XR}, {XR + 1}',
            f'v_cvt_pk_bf16_f32 {XR + 3}, {XR + 2}, {XR + 3}',
            f'v_lshlrev_b32 {XR}, 16, {XR + 1}',
            f'v_lshlrev_b32 {XR + 2}, 16, {XR + 3}',
            f'v_and_b32 {XR + 1}, {sHIM}, {XR + 1}',
            f'v_and_b32 {XR + 3}, {sHIM}, {XR + 3}']

    def ln_ops(S):
        return ror_steps('v_add_f32', [vE0, vE1], [S, S + 1]) + [
            [f'v_mul_f32 {vDM}, {sINV}, {vE0}', f'v_fma_f32 {vRS}, {vE1}, {sINV}, {vEPS}'],
            [f'v_fma_f32 {vRS}, -{vDM}, {vDM}, {vRS}'],
            [f'v_rsq_f32 {vRS}, {vRS}']]

    def newmean_ops():
        return [f'v_add_f32 {vMP}, {vMP}, {vDM}'] + [f'v_sub_f32 {CI + r}, {XR + r}, {vMP}' for r in range(4)]

    def m16(d, A, B, C):
        a(f'v_mfma_f32_16x16x32_bf16 {d.t(4)}, {A}, {B}, {C}')

    def m4(d, A, B, first, abid):
        a(f'v_mfma_f32_4x4x4_16b_bf16 {d.t(4)}, {A}, {B}, {"0" if first else d.t(4)} cbsz:4 abid:{abid}')

    def chk_ab(g, first):
        a(f'v_bitop3_b32 {t0}, {g}, {g + 2}, {sT} bitop3:0x7e\nv_bitop3_b32 {t1}, {g + 1}, {g + 3}, {sThi} bitop3:0x7e')
        a(f'v_or_b32 {vE2}, {t0}, {t1}' if first else f'v_or3_b32 {vE2}, {t0}, {t1}, {vE2}')

    def chk_d(g, h, first):
        a(f'v_bitop3_b32 {t0}, {g + 1}, {h + 1}, {sTsh} bitop3:0x7e\nv_bitop3_b32 {t1}, {g + 3}, {h + 3}, {sT} bitop3:0x7e')
        a(f'v_or_b32 {vE2}, {t0}, {t1}' if first else f'v_or3_b32 {vE2}, {t0}, {t1}, {vE2}')

    def tall_addr(region):
        a(f'''v_lshrrev_b32 {t0}, 2, {vN}
            v_lshl_add_u32 {t0}, {vRow}, 3, {t0}
            v_mul_u32_u24 {t0}, 80, {t0}
            v_and_b32 {t1}, 3, {vL}
            v_lshl_add_u32 {t0}, {t1}, 3, {t0}
            s_and_b32 {sT0}, {sI}, 1
            s_lshl_b32 {sT0}, {sT0}, 3
            s_mul_i32 {sT3}, {sW}, 24
            s_add_u32 {sT0}, {sT0}, {sT3}
            s_add_u32 {sT0}, {sT0}, {region}
            v_add_u32 {aTR}, {sT0}, {t0}''')

    def tall_tr(nk, AB):
        for k in range(nk):
            for u in range(2):
                a(f'ds_read_b64_tr_b16 {ar(AB + 4 * k + 2 * u, 2)}, {aTR} offset:{2560 * k + 320 * u}')

    def tall_stage(nk, AB, ldsoff):
        for k in range(nk):
            a(f'ds_read_b128 {(OP + 4 * k).t(4)}, {aOR} offset:{ldsoff + 64 * k}')
        for k in range(nk):
            a(f's_waitcnt lgkmcnt({nk - 1 - k})')
            m16(ACC[0], ar(AB + 4 * k, 4), (OP + 4 * k).t(4), '0' if k == 0 else ACC[0].t(4))
        a(f'''v_cvt_pk_bf16_f32 {XG}, {ACC[0]}, {ACC[0] + 1}
            v_cvt_pk_bf16_f32 {XG + 1}, {ACC[0] + 2}, {ACC[0] + 3}
            buffer_store_dwordx4 {XG.t(4)}, {aXPUB}, {srd(S_W)}, {sSLOT} offen sc1''', tag='XP')

    def cg_loads():
        for q, (ad, off) in enumerate(((aDG1, 0), (aDG1, 1536), (aDG1b, 0), (aDG1b, 1536), (aDG2, 0), (aDG2, 1536))):
            gload(G2[q], ad, sCG, off, 'CG')

    def cg_reduce(tag):
        a.label('CHECK_' + tag)
        for q in range(4):
            m16(ACC[2], SELD.t(4), G2[q].t(4), '0' if q == 0 else ACC[2].t(4))
        for q in range(2):
            m16(ACC[3], SELD.t(4), G2[4 + q].t(4), '0' if q == 0 else ACC[3].t(4))
        for q in range(3):
            chk_d(G2[2 * q], G2[2 * q + 1], q == 0)
        a(f'v_cmp_lt_u32 vcc, 0xffff, {vE2}\ns_cmp_lg_u64 vcc, 0')
        retry(tag, 'CHECK_' + tag, lambda: (cg_loads(), a('s_waitcnt vmcnt(0)')))
        a(f'''v_mov_b32 {CSG}, {ACC[2]}
            v_mov_b32 {CSG + 1}, {ACC[2] + 1}
            v_add_f32_dpp {CSG + 2}, {ACC[3]}, {ACC[3]} row_ror:8{DPP}
            v_add_f32_dpp {CSG + 3}, {ACC[3] + 1}, {ACC[3] + 1} row_ror:8{DPP}''')

    def cq_loads():
        for q in range(4):
            gload(G2[q], aAGET, sCQ, 1024 * q, 'CQ')

    def cq_reduce(tag):
        a.label('CHECK_' + tag)
        for q in range(4):
            m16(ACC[2], SEL4.t(4), G2[q].t(4), '0' if q == 0 else ACC[2].t(4))
            chk_ab(G2[q], q == 0)
        a(f'v_cmp_ne_u16 vcc, 0, {vE2}\ns_cmp_lg_u64 vcc, 0')
        retry(tag, 'CHECK_' + tag, lambda: (cq_loads(), a('s_waitcnt vmcnt(0)')))
        a(f'v_mov_b32 {CSQ}, {ACC[2]}')

    def a_loads():
        gload(G[4], aASGET, '0', tag='A')
        for q in range(4):
            gload(G[q], aAGET, '0', 1024 * q, 'A')

    def b_loads():
        gload(G[4], aBSGET, '0', tag='B')
        for q in range(4):
            gload(G[q], aAGET, sBD, 1024 * q, 'B')

    def b_reduce(waits):
        a(f'v_cmp_ne_u32 {sP}, {sT}, {G[4] + 3}')
        lines(flat(ror_steps('v_max_f32', [vE0], [G[4]])))
        a(f'v_sub_f32 {vE0}, {G[4]}, {vE0}\nv_exp_f32 {vE0}, {vE0}\nv_mul_f32 {vE1}, {vE0}, {G[4] + 1}')
        lsum = flat(ror_steps('v_add_f32', [vE1]))
        for q in range(4):
            for d in range(4):
                a(f'v_and_b32_dpp {AW[q] + d}, {vE0}, {MASK4 + d} row_newbcast:{q}{DPP}')
            a(lsum[q])
            if waits:
                a(f's_waitcnt vmcnt({3 - q})')
            chk_ab(G[q], q == 0)
            m16(ACC[0], AW[q].t(4), G[q].t(4), '0' if q == 0 else ACC[0].t(4))
        a(f'v_cmp_ne_u16 vcc, 0, {vE2}\nv_rcp_f32 {vE1}, {vE1}\ns_or_b64 vcc, vcc, {sP}')

    def d_loads():
        gload(G[6], aASGET, sDS)
        gload(G[4], aDG2, '0')
        gload(G[5], aDG2, '0', 1536)
        gload(G[0], aDG1, '0')
        gload(G[1], aDG1, '0', 1536)
        gload(G[2], aDG1b, '0')
        gload(G[3], aDG1b, '0', 1536)

    def a_reduce(waits):
        lo = ln_ops(G[4])
        a(f'v_cmp_ne_u32 {sP}, {sT}, {G[4] + 3}')
        lines(lo[0])
        for q in range(4):
            if waits:
                a(f's_waitcnt vmcnt({3 - q})')
            m16(ACC[0], SEL4.t(4), G[q].t(4), '0' if q == 0 else ACC[0].t(4))
            chk_ab(G[q], q == 0)
            lines(lo[1 + q])
        a(f'v_cmp_ne_u16 vcc, 0, {vE2}')
        lines(lo[5])
        a(f's_or_b64 vcc, vcc, {sP}')
        return lo

    def xgather(tag):
        if P['xdelay']:
            a('s_sleep %d' % P['xdelay'])
        a.label('GX_ISSUE_' + tag)
        for q in range(4):
            gload(G[q], aXGET, sSLOT, 256 * q)
        for q in range(4):
            a(f's_waitcnt vmcnt({3 - q})')
            m16(XC, SELX.t(4), G[q].t(4), CI.t(4) if q == 0 else XC.t(4))
            if q & 1:
                a(f'v_bitop3_b32 {(t0, t1)[q >> 1]}, {G[q - 1] + 3}, {G[q] + 3}, {sTX} bitop3:0x7e')
        a(f'v_or_b32 {t0}, {t0}, {t1}\nv_cmp_ne_u32 vcc, 0, {t0}\ns_cmp_lg_u64 vcc, 0')
        retry(tag, 'GX_ISSUE_' + tag)

    def xq_write():
        a(f'''v_cvt_pk_bf16_f32 {PK2}, {XC}, {XC + 1}
            v_cvt_pk_bf16_f32 {PK2 + 1}, {XC + 2}, {XC + 3}
            ds_write_b64 {aXQW}, {PK2.t(2)}''')

    def setlayer2():
        a(f's_mov_b32 {sLAY}, 1')
        a.act(lambda c: c.__setitem__('layer', 1))
        if P['stamps'] >= 2:
            a(f'v_writelane_b32 {vTS}, {sRC}, 30\ns_mov_b32 {sRC}, 0')

    a('s_cmp_ge_u32 s2, 256')
    a.br('s_cbranch_scc1', 'END', lambda c: False)
    if P['stamps']:
        a('s_memtime s[86:87]')
        names.append('start')
    if P['stamps'] or P['hold']:
        a('s_memrealtime s[90:91]')
    a(f'''s_load_dwordx16 s[4:19], s[0:1], 0
        s_load_dwordx8 s[20:27], s[0:1], 64
        v_lshrrev_b32 {t0}, 6, v0
        v_and_b32 {vL}, 63, v0
        v_readfirstlane_b32 {sW}, {t0}
        s_and_b32 {sT0}, s2, 7
        s_lshl_b32 {sT0}, {sT0}, 1
        s_bfe_u32 {sT1}, s2, 0x10003
        s_add_u32 {sG}, {sT0}, {sT1}
        s_lshr_b32 {sI}, s2, 4
        s_lshl_b32 {sROT}, s2, 9
        s_and_b32 {sROT}, {sROT}, 0xf000
        s_mov_b32 {sLAY}, 0
        v_lshrrev_b32 {vRow}, 4, {vL}
        v_and_b32 {vN}, 15, {vL}
        v_lshrrev_b32 {t0}, 3, {vL}
        v_and_b32 {t1}, 7, {vL}
        v_lshlrev_b32 {t0}, 13, {t0}
        v_lshl_add_u32 {t0}, {t1}, 4, {t0}
        s_lshl_b32 {sT0}, {sW}, 7
        v_add_u32 {aWQ}, {sT0}, {t0}
        s_lshl_b32 {sT0}, {sW}, 10
        v_lshl_add_u32 {t0}, {vRow}, 8, {sT0}
        v_xor_b32 {t1}, {vN}, {vRow}
        v_lshl_add_u32 {aK[0]}, {t1}, 4, {t0}
        v_xor_b32 {aK[1]}, 64, {aK[0]}
        v_xor_b32 {aK[2]}, 128, {aK[0]}
        v_xor_b32 {aK[3]}, 192, {aK[0]}
        v_lshlrev_b32 {t1}, 2, {vRow}
        v_xor_b32 {t1}, {vN}, {t1}
        v_lshl_add_u32 {aV}, {t1}, 4, {t0}
        v_lshlrev_b32 {t2}, 4, {vL}
        s_mul_i32 {sT3}, {sI}, 72
        v_lshl_add_u32 {t3}, {vN}, 3, {sT3}
        s_mul_i32 {sT0}, {sI}, {36 * 8192}
        s_lshl_b32 {sT1}, {sG}, 9
        s_add_u32 {sT0}, {sT0}, {sT1}
        s_lshl_b32 {sT2}, {sG}, 23
        s_lshl_b32 {sT3}, {sI}, 16
        s_add_u32 {sT2}, {sT2}, {sT3}
        s_add_u32 {sT2}, {sT2}, {28672 * 256}
        s_mul_i32 {sT1}, {sW}, 4608
        s_cmp_lg_u32 {sW}, 3
        s_waitcnt lgkmcnt(0)''')
    a.br('s_cbranch_scc1', 'NOX', NW3)
    mk_srd(S_X, 4, None, 1152)
    a(f'''buffer_load_dwordx4 {G[0].t(4)}, {t2}, {srd(S_X)}, 0 offen
        buffer_load_dwordx4 {G[1].t(4)}, {t2}, {srd(S_X)}, 0 offen offset:1024
        buffer_load_dwordx2 {G[2].t(2)}, {t3}, {srd(S_X)}, 0 offen''', tag='X')
    a.label('NOX')
    if P['hold']:
        a('s_mov_b32 s3, s90')
    if P['stamps']:
        a(f'v_mov_b32 {vTS}, 0\nv_writelane_b32 {vTS}, s86, 0\nv_writelane_b32 {vTS}, s90, 63')
    estamp('kernarg')
    a(f's_load_dword {sE}, s[26:27], 0')
    mk_srd(S_WQ, 10, sT0, 35 * 8192 + 512)
    for k in range(5):
        a(f's_add_u32 m0, {sT1}, {L_WQ + 1024 * k}\ns_mov_b32 {sT0}, {65536 * k}')
        if k == 4:
            a('s_mov_b32 exec_hi, 0')
        a(f'buffer_load_dwordx4 {aWQ}, {srd(S_WQ)}, {sT0} offen nt lds', fills='WQ')
        if k == 4:
            a('s_mov_b32 exec_hi, -1')
    mk_srd(S_K, 6, sT2, 65536)
    if P['codepf']:
        a(f's_getpc_b64 {sP}')
        a.label('PCREF')
        a(f'''s_lshl_b32 {sT0}, {sW}, 12
            v_lshl_add_u32 {t2}, {vL}, 6, {sT0}
            s_cmp_lt_u32 s2, {P['codepf'] * 8}
            s_cselect_b32 {sT0}, CODE_END-PCREF-4, 0
            v_min_u32 {t2}, {sT0}, {t2}''')
        a(f'global_load_dword {vDUM}, {t2}, {sP}', dummy=1)
    wave16k()
    for j in range(P['ka']):
        kvdma(j, False)
    mk_srd(S_V, 8, sT2, 65536)
    WSZ = WS_SRD if (P['dump'] or P['stamps']) else WS_USED
    mk_srd(S_W, 26, None, WSZ)
    mk_srd(S_F, 26, None, 0)
    mk_srd(S_S, 26, None, WS_USED)
    a(f'''s_mov_b32 {sINV}, 0x3ae38e39
        s_mov_b32 {sHIM}, 0xffff0000
        s_getreg_b32 {sXCC}, hwreg(HW_REG_XCC_ID)
        s_and_b32 {sXCC}, {sXCC}, 15
        s_mov_b32 s98, 0x01ff01ff
        s_mov_b32 s99, 0x01ff01ff
        v_mov_b32 {ONE}, 0x3f803f80
        v_mov_b32 {ONE + 1}, 0x3f803f80
        v_mov_b32 {ST + 2}, {sXCC}
        v_mov_b32 {vOOB}, {OOB:#x}
        s_mov_b32 {sT2}, {L_DUM}
        v_lshl_add_u32 {vSINK}, {vL}, 4, {sT2}
        v_lshrrev_b32 {t0}, 2, {vL}
        s_mov_b32 {sT0}, {L_X}
        v_lshl_add_u32 {t1}, {t0}, 3, {sT0}
        v_mov_b32 {t2}, {L_ONE}
        s_mov_b32 vcc_lo, 0x22222222
        s_mov_b32 vcc_hi, 0x22222222
        v_cndmask_b32 {aXQR}, {t1}, {t2}, vcc
        ds_write_b64 {t2}, {ONE.t(2)}
        v_lshl_add_u32 {t0}, {vN}, 3, {sT0}
        s_mov_b64 vcc, 0xffff
        v_cndmask_b32 {aXQW}, {vSINK}, {t0}, vcc
        s_lshl_b32 {sT0}, {sG}, 14
        s_lshl_b32 {sT2}, {sW}, 8
        s_add_u32 {sT0}, {sT0}, {sT2}
        s_add_u32 {sT0}, {sT0}, {OFF_AD:#x}
        v_lshl_add_u32 {t0}, {vRow}, 12, {sT0}
        v_lshl_add_u32 {aAGET}, {vN}, 4, {t0}
        s_lshl_b32 {sT3}, {sI}, 10
        s_add_u32 {sT0}, {sT0}, {sT3}
        v_lshl_add_u32 {aAPUB}, {vL}, 2, {sT0}
        s_lshl_b32 {sT0}, {sG}, 8
        s_add_u32 {sT0}, {sT0}, {OFF_AS:#x}
        v_lshl_add_u32 {aASGET}, {vN}, 4, {sT0}
        s_lshl_b32 {sT3}, {sI}, 4
        s_add_u32 {sT0}, {sT0}, {sT3}
        v_mov_b32 {t0}, {sT0}
        v_cmp_eq_u32 vcc, 192, v0
        v_lshrrev_b32 {t1}, 2, {vN}
        v_lshlrev_b32 {t1}, 7, {t1}
        v_cndmask_b32 {aASPUB}, {vOOB}, {t0}, vcc
        v_lshl_add_u32 {t1}, {vRow}, 5, {t1}
        v_and_b32 {t2}, 3, {vL}
        v_lshl_add_u32 {t1}, {t2}, 3, {t1}
        s_mul_i32 {sT0}, {sW}, 4608
        s_add_u32 {sT0}, {sT0}, {L_WQ}
        v_add_u32 {aTR}, {sT0}, {t1}''')
    if P['stamps']:
        a(f's_mov_b32 {sRC}, 0')
    if P['dump'] or P['stamps']:
        a(f's_lshl_b32 {sT0}, s2, 10\nv_lshl_add_u32 {aDM}, v0, 2, {sT0}')
    k0 = P['ka'] + P['kb']
    for j in range(P['ka'], k0):
        kvdma(j, False)
    a(f's_waitcnt lgkmcnt(0)\ns_mov_b32 {sT}, {sE}')
    set_tags()
    a(f's_mov_b32 {sTX}, {sT}')
    if P['hold']:
        a('s_mov_b32 s11, 0')
    rstamp(6)
    stamp('set-up A', 3)
    a(f's_cmp_lg_u32 {sW}, 3')
    a.br('s_cbranch_scc1', 'Q_ENTRY', NW3)
    a.wait('X')
    a(f'v_mov_b32 {t0}, 0')
    for q in range(8):
        a(f'v_dot2c_f32_bf16 {t0}, {G[q >> 2] + (q & 3)}, {ONE}')
    a(f'''v_lshlrev_b32 {XC}, 16, {G[2]}
        v_and_b32 {XC + 1}, {sHIM}, {G[2]}
        v_lshlrev_b32 {XC + 2}, 16, {G[2] + 1}
        v_and_b32 {XC + 3}, {sHIM}, {G[2] + 1}''')
    lines(flat(ror_steps('v_add_f32', [t0]) + bcast_steps('v_add_f32', [t0])))
    a(f'v_readlane_b32 {sT0}, {t0}, 63\nv_mov_b32 {t0}, {sT0}\nv_mul_f32 {vMP}, {sINV}, {t0}')
    for r in range(4):
        a(f'v_sub_f32 {XC + r}, {XC + r}, {vMP}')
    xq_write()
    a.jmp('Q_WAIT')

    a.label('W3_E')
    lines(newmean_ops())
    skip_l2('W3_E1')
    cq_loads()
    a('s_waitcnt vmcnt(0)')
    cq_reduce('CR')
    set_tags()
    if P['xbar']:
        a('s_barrier')
    a.jmp('W3_E2')
    a.label('W3_E1')
    if P['xbar']:
        a('s_barrier')
    a(f's_cmp_lg_u32 {sG}, {sI}')
    a.br('s_cbranch_scc1', 'FINISH', lambda c: not c['final'])
    a.label('W3_E2')
    stamp('E poll', 3)
    xgather('E')
    dump(10, XC)
    skip_l2('W3_OUT')
    xq_write()
    a(f's_add_u32 {sSLOT}, {sSLOT}, 0x20000')
    setlayer2()
    a.label('Q_WAIT')
    so = stats_ops()
    lines(so[:9])
    a(f's_waitcnt lgkmcnt(0)\ns_barrier\nds_read_b64 {XQ.t(2)}, {aXQR}')
    lines(so[9:])
    pub('buffer_store_dwordx4', ST.t(4), aASPUB, '0')
    a.label('Q_JOIN')
    stamp('x ready', 3)
    skip_l2('Q_GO')
    a.wait('WQ')
    for j in range(9):
        a(f'ds_read_b64_tr_b16 {(WQ + 2 * j).t(2)}, {aTR} offset:{512 * j}', needs=('WQ',))
    a.label('Q_GO')
    a('s_waitcnt lgkmcnt(0)')
    for j in range(9):
        m4(ACC[j % 3], XQ.t(2), (WQ + 2 * j).t(2), j < 3, j)
    a(f'''v_pk_add_f32 {Y.t(2)}, {ACC[0].t(2)}, {ACC[1].t(2)}
        v_pk_add_f32 {Y.t(2)}, {Y.t(2)}, {ACC[2].t(2)}
        v_cvt_pk_bf16_f32 {t2}, {vTAB}, {Y}''')
    pub('buffer_store_dword', t2, aAPUB, '0')
    dump(0, Y)
    stamp('A pub')
    lines(resid_ops())
    skip_l2('GA_PRE')
    a(f'v_cvt_pk_bf16_f32 {vCQ}, {vTAB}, {Y + 1}')
    wave16k()
    for j in range(k0, 16):
        kvdma(j, False)
    for j in range(P['v0']):
        kvdma(j, True)
    a(f'''s_mul_i32 {sT0}, {sG}, {256 * 1152}
        s_mul_i32 {sT2}, {sI}, 72
        s_and_b32 {sT2}, {sT2}, 0xfffffff0
        s_add_u32 {sT0}, {sT0}, {sT2}''')
    mk_srd(S_WO, 12, sT0, 255 * 1152 + 80)
    a(f's_mul_i32 {sT0}, {sG}, {288 * 1152}\ns_add_u32 {sT0}, {sT0}, {sT2}')
    mk_srd(S_WD, 20, sT0, 287 * 1152 + 80)
    a(f's_mul_i32 {sT0}, {sI}, {36 * 9216}\ns_mul_i32 {sT2}, {sG}, 576\ns_add_u32 {sT0}, {sT0}, {sT2}')
    mk_srd(S_WG, 16, sT0, 35 * 9216 + 576)
    mk_srd(S_WU, 18, sT0, 35 * 9216 + 576)
    mk_srd(S_OUT, 22, None, 1152)
    a(f'''s_mov_b32 {sCQ}, {OFF_CQ - OFF_AD:#x}
        s_mov_b32 {sBD}, {OFF_BD - OFF_AD:#x}
        s_mov_b32 {sDS}, {OFF_DS - OFF_AS:#x}
        s_mov_b32 {sCG}, {OFF_CG - OFF_DD:#x}
        s_mov_b32 {sSLOT}, 0
        s_mov_b32 {sC}, 0x3e0293ee
        s_mov_b32 {sBUD}, 200000
        v_mov_b32 {vEPS}, 0x3727c5ac
        v_mov_b32 {XG + 2}, 0
        v_mov_b32 {XG + 3}, {sTX}
        v_mov_b32 {BST + 2}, 0
        v_mov_b32 {CSQ}, 0
        v_mov_b32 {t0}, 0xffff0000
        v_mov_b32 {t1}, 0x3f800000
        v_mov_b32 {t2}, 0x3f80''')

    def lanemask(ns):
        m = sum(1 << n for n in ns) * 0x10001
        a(f's_mov_b32 vcc_lo, {m:#x}\ns_mov_b32 vcc_hi, {m:#x}')
    for q in range(4):
        lanemask([4 * q])
        a(f'v_cndmask_b32 {MASK4 + q}, 0, {t0}, vcc\nv_cndmask_b32 {SEL4 + q}, 0, {t1}, vcc')
    for dst, lo_n, hi_n in ((SELX, 0, 1), (SELX + 1, 2, 3), (SELD, 0, 1), (SELD + 1, 8, None), (SELD + 2, 4, 5), (SELD + 3, 9, None)):
        lanemask([lo_n])
        a(f'v_cndmask_b32 {dst}, 0, {t2}, vcc')
        if hi_n is not None:
            lanemask([hi_n])
            a(f'v_cndmask_b32 {dst}, {dst}, {t1}, vcc')
    a(f'''v_mov_b32 {SELX + 2}, 0
        v_mov_b32 {SELX + 3}, 0
        v_mov_b32 {t1}, 0x03020706
        v_mov_b32 {t2}, 0x05040100
        s_mov_b32 vcc_lo, 0x55555555
        s_mov_b32 vcc_hi, 0x55555555
        v_cndmask_b32 {vSELH}, {t1}, {t2}, vcc
        v_and_b32 {t1}, 1, {vL}
        v_lshrrev_b32 {t0}, 2, {vL}
        v_lshlrev_b32 {t0}, 3, {t0}
        v_lshl_add_u32 {t0}, {t1}, 8, {t0}
        v_add_u32 {aQR}, {L_Q}, {t0}
        s_lshl_b32 {sT3}, {sI}, 4
        s_lshl_b32 {sT0}, {sG}, 9
        s_lshr_b32 {sT2}, {sW}, 1
        s_lshl_b32 {sT2}, {sT2}, 8
        s_add_u32 {sT0}, {sT0}, {sT2}
        s_add_u32 {sT0}, {sT0}, {OFF_BS:#x}
        v_lshl_add_u32 {t0}, {vRow}, 2, {vN}
        v_and_b32 {t0}, 15, {t0}
        v_lshl_add_u32 {aBSGET}, {t0}, 4, {sT0}
        s_add_u32 {sT0}, {sT0}, {sT3}
        v_mov_b32 {t0}, {sT0}
        v_and_b32 {t1}, 127, v0
        v_cmp_eq_u32 vcc, 0, {t1}
        s_lshl_b32 {sT0}, {sW}, 7
        s_add_u32 {sT0}, {sT0}, {L_Q}
        v_cndmask_b32 {aBSPUB}, {vOOB}, {t0}, vcc
        v_lshl_add_u32 {t0}, {vN}, 2, {vRow}
        v_lshl_add_u32 {aQW}, {t0}, 1, {sT0}
        s_lshl_b32 {sT0}, {sW}, 8
        s_add_u32 {sT0}, {sT0}, {L_PO}
        v_lshl_add_u32 {aPOW}, {vL}, 2, {sT0}
        s_lshl_b32 {sT0}, {sW}, 10
        s_add_u32 {sT0}, {sT0}, {L_PO}
        v_lshl_add_u32 {aPOR}, {vL}, 2, {sT0}
        s_lshl_b32 {sT0}, {sW}, 4
        s_add_u32 {sT0}, {sT0}, {L_PS}
        v_mov_b32 {t0}, {sT0}
        s_mov_b32 vcc_lo, 0
        s_mov_b32 vcc_hi, 0x80000000
        v_cndmask_b32 {aPSW}, {vSINK}, {t0}, vcc
        s_lshr_b32 {sT0}, {sW}, 1
        s_lshl_b32 {sT0}, {sT0}, 3
        s_add_u32 {sT0}, {sT0}, {L_PS}
        v_mov_b32 {aPSR}, {sT0}
        s_mov_b32 {sT0}, {L_O}
        v_lshl_add_u32 {aOR}, {vRow}, 4, {sT0}
        s_lshr_b32 {sT0}, {sI}, 1
        s_lshl_b32 {sT0}, {sT0}, 14
        s_and_b32 {sT2}, {sI}, 1
        s_lshl_b32 {sT2}, {sT2}, 12
        s_add_u32 {sT0}, {sT0}, {sT2}
        s_add_u32 {sT0}, {sT0}, {OFF_X:#x}
        s_lshr_b32 {sT2}, {sXCC}, 2
        s_and_b32 {sT2}, {sT2}, 1
        s_xor_b32 {sT2}, {sT2}, {1 if P['near'] == 1 else 0}
        s_lshl_b32 {sT2}, {sT2}, 13
        s_and_b32 {sT2}, {sT2}, {0x2000 if P['near'] else 0}
        s_add_u32 {sT2}, {sT2}, {sT0}
        v_min_u32 {t0}, 8, {vN}
        v_mul_u32_u24 {t1}, 43, {t0}
        v_lshrrev_b32 {t1}, 7, {t1}
        v_add_u32 {t0}, {t0}, {t1}
        v_lshl_add_u32 {t1}, {vRow}, 10, {sT2}
        v_lshl_add_u32 {aXGET}, {t0}, 4, {t1}
        s_lshl_b32 {sT2}, {sG}, 8
        s_add_u32 {sT0}, {sT0}, {sT2}
        s_lshl_b32 {sT2}, {sW}, 6
        s_add_u32 {sT2}, {sT0}, {sT2}
        v_lshl_add_u32 {t0}, {vRow}, 4, {sT2}
        v_lshl_add_u32 {t0}, {vN}, 13, {t0}
        s_mov_b32 vcc_lo, {0x00030003 if P['near'] else 0x00010001}
        s_mov_b32 vcc_hi, {3 if P['near'] else 1}
        v_cndmask_b32 {aXPUB}, {vOOB}, {t0}, vcc''')
    nmisc = 0
    if P['prewrite']:
        a(f'''s_and_b32 {sT2}, {sW}, 1
            s_xor_b32 {sT2}, {sT2}, 1
            s_lshl_b32 {sT2}, {sT2}, 13
            s_add_u32 {sT2}, {sT2}, {sT0}
            v_lshl_add_u32 {t0}, {vRow}, 17, {sT2}
            v_lshl_add_u32 {t0}, {vN}, 4, {t0}
            v_cmp_le_u32 vcc, {128 if P['near'] else 192}, v0
            v_mov_b32 {G[5]}, 0
            v_mov_b32 {G[5] + 1}, 0
            v_mov_b32 {G[5] + 2}, 0
            v_mov_b32 {G[5] + 3}, 0
            v_cndmask_b32 {t0}, {vOOB}, {t0}, vcc
            buffer_store_dwordx4 {G[5].t(4)}, {t0}, {srd(S_W)}, 0 offen sc1''')
        nmisc += 1
    a(f'''s_mul_i32 {sT0}, {sI}, 72
        v_lshl_add_u32 {t0}, {vN}, 3, {sT0}
        s_mov_b64 vcc, 0x1ff
        v_cndmask_b32 {aOUT}, {vOOB}, {t0}, vcc
        s_mul_i32 {sT0}, {sG}, {16 * 1536}
        s_add_u32 {sT0}, {sT0}, {OFF_DD:#x}
        s_mul_i32 {sT2}, {sI}, 1536
        s_lshl_b32 {sT3}, {sW}, 9
        s_add_u32 {sT2}, {sT2}, {sT3}
        s_add_u32 {sT2}, {sT2}, {sT0}
        v_lshrrev_b32 {t0}, 3, {vL}
        v_lshl_add_u32 {t0}, {t0}, 6, {sT2}
        v_and_b32 {t1}, 3, {vL}
        v_lshl_add_u32 {t0}, {t1}, 4, {t0}
        v_and_b32 {t1}, 4, {vL}
        v_cmp_gt_u32 vcc, 192, v0
        v_lshl_add_u32 {t0}, {t1}, 1, {t0}
        s_mul_i32 {sT2}, {sW}, 384
        v_cndmask_b32 {aDPUB}, {vOOB}, {t0}, vcc
        s_add_u32 {sT0}, {sT0}, {sT2}
        v_mul_u32_u24 {t0}, 6144, {vRow}
        v_add_u32 {t0}, {sT0}, {t0}
        v_lshl_add_u32 {aDG1}, {vN}, 4, {t0}
        v_add_u32 {aDG1b}, 3072, {aDG1}
        v_lshrrev_b32 {t1}, 3, {vN}
        v_mul_u32_u24 {t1}, 3072, {t1}
        v_and_b32 {t2}, 7, {vN}
        v_lshl_add_u32 {t1}, {t2}, 4, {t1}
        v_add_u32 {t0}, {t0}, {t1}
        v_add_u32 {aDG2}, 256, {t0}
        s_mul_i32 {sT0}, {sW}, 24''')
    for dst, base, src in ((aHW1, 0, vN), (aHW2, 16, t2)):
        a(f'''s_add_u32 {sT2}, {sT0}, {base}
            v_add_u32 {t0}, {sT2}, {src}
            v_lshrrev_b32 {t1}, 5, {t0}
            v_mul_u32_u24 {t1}, 96, {t1}
            v_and_b32 {t0}, 31, {t0}
            v_and_b32 {t3}, 28, {t0}
            v_add_u32 {t3}, {t3}, {t0}
            v_lshl_add_u32 {t3}, {vRow}, 2, {t3}
            v_add_u32 {t0}, 64, {t0}
            s_mov_b32 vcc_lo, 0
            s_mov_b32 vcc_hi, 0xffff
            v_cndmask_b32 {t0}, {t3}, {t0}, vcc
            v_add_u32 {t0}, {t0}, {t1}
            v_lshlrev_b32 {t0}, 1, {t0}
            v_add_u32 {t0}, {L_H}, {t0}
            s_mov_b32 vcc_hi, 0xffff0000
            v_cndmask_b32 {dst}, {t0}, {vSINK}, vcc''')
    if P['pretouch']:
        a(f'''s_lshl_b32 {sT0}, {sG}, 4
            s_add_u32 {sT0}, {sT0}, {sI}
            s_mul_i32 {sT2}, {sT0}, 1536
            s_add_u32 {sT2}, {sT2}, {OFF_DD - 16 * 128}
            v_lshl_add_u32 {t0}, {vL}, 7, {sT2}
            v_add_u32 {t1}, {OFF_CG - OFF_DD - 12 * 128}, {t0}
            v_cmp_gt_u32 vcc, 28, {vL}
            s_lshl_b32 {sT2}, {sT0}, 10
            s_add_u32 {sT2}, {sT2}, {OFF_BD}
            v_cndmask_b32 {t0}, {t1}, {t0}, vcc
            v_lshl_add_u32 {t1}, {vL}, 7, {sT2}
            s_mov_b64 vcc, 0xff
            v_cndmask_b32 {t0}, {t0}, {t1}, vcc
            v_add_u32 {t1}, {(OFF_CQ - OFF_BD - 1024) & 0xffffffff:#x}, {t1}
            s_mov_b64 vcc, 0xff00
            v_cndmask_b32 {t0}, {t0}, {t1}, vcc
            s_lshl_b32 {sT2}, {sG}, 8
            s_add_u32 {sT2}, {sT2}, {OFF_DS - 40 * 32}
            v_lshl_add_u32 {t1}, {vL}, 5, {sT2}
            s_mov_b32 vcc_lo, 0
            s_mov_b32 vcc_hi, 0xff00
            v_cndmask_b32 {t0}, {t0}, {t1}, vcc
            s_mov_b32 vcc_hi, 0xffff0000
            v_cndmask_b32 {t0}, {t0}, {aBSGET}, vcc
            v_cmp_eq_u32 vcc, {sW}, {vRow}
            s_or_b32 vcc_hi, vcc_hi, 0x01010000
            v_cndmask_b32 {t0}, {vOOB}, {t0}, vcc''')
        a(f'buffer_load_dword {vDUM}, {t0}, {srd(S_W)}, 0 offen sc1', dummy=1)
        nmisc += 1
    a(f's_mul_i32 {sT0}, {sW}, {9 * 9216}')
    for j in range(2):
        a(f'''v_add_u32 {t0}, {54 * j}, {vL}
            v_mul_u32_u24 {t1}, 58255, {t0}
            v_lshrrev_b32 {t1}, 21, {t1}
            v_mul_u32_u24 {t1}, {9216 - 576}, {t1}
            v_lshl_add_u32 {t1}, {t0}, 4, {t1}
            v_add_u32 {aGU[j]}, {sT0}, {t1}''')
    for j in range(5):
        a(f'''v_add_u32 {t0}, {64 * j}, {vL}
            v_mul_u32_u24 {t1}, 52429, {t0}
            v_lshrrev_b32 {t1}, 18, {t1}
            v_mul_u32_u24 {t1}, 1072, {t1}
            v_lshl_add_u32 {aTL[j]}, {t0}, 4, {t1}''')
    a(f'''v_add_u32 {t0}, 1280, v0
        v_mul_u32_u24 {t1}, 52429, {t0}
        v_lshrrev_b32 {t1}, 18, {t1}
        v_mul_u32_u24 {t1}, 1072, {t1}
        v_lshl_add_u32 {aTL[5]}, {t0}, 4, {t1}''')
    stamp('set-up B', 3)
    a(f'''v_lshlrev_b32 {t0}, 8, {vL}
        v_lshl_add_u32 {t0}, {vN}, 4, {t0}
        v_add_u32 {aTR}, {sT1}, {t0}''')
    a.wait('K')
    for p in range(16):
        a(f'v_xor_b32 {(t0, t1)[p & 1]}, {16 * p}, {aTR}')
        a(f'ds_read_b128 {ar(A_K + 4 * p, 4)}, {(t0, t1)[p & 1]}', needs=('K',))
    a('s_waitcnt lgkmcnt(0)\ns_barrier')
    rstamp(4)
    a_loads()
    gu_batch(0, 12)
    a.wait('A')
    a_reduce(False)
    a.jmp('GA_CHECK')
    a.label('GA_PRE')
    if P['ackwait']:
        a('s_waitcnt vmcnt(0)')
    a.label('GA_ISSUE')
    a_loads()
    a('s_waitcnt vmcnt(4)')
    lo = a_reduce(True)
    a.label('GA_CHECK')
    retry('A', 'GA_ISSUE')
    lines(lo[6])
    a(f'''v_fma_f32 {t0}, -{vDM}, {CSQ}, {ACC[0]}
        v_mul_f32 {t0}, {t0}, {vRS}
        v_cvt_pk_bf16_f32 {t1}, {t0}, {t0}
        ds_write_b16 {aQW}, {t1}''')
    dump(1, t0)
    stamp('q sum', 3)
    a(f'''s_waitcnt lgkmcnt(0)
        s_barrier
        ds_read_b64 {QA.t(2)}, {aQR}
        ds_read_b64 {(QA + 2).t(2)}, {aQR} offset:128''')
    stamp('q ready')
    lines(newmean_ops())
    skip_l2('S_GO')
    a(f'v_cmp_ne_u32 vcc, {sXCC}, {G[4] + 2}\ns_cmp_eq_u64 vcc, 0')
    if P['forceslow']:
        a(f's_cmp_eq_u32 {sW}, 77')
    a(f's_cselect_b32 s{S_F + 2}, {WS_USED:#x}, 0\ns_cselect_b32 s{S_S + 2}, 0, {WS_USED:#x}')
    pub('buffer_store_dword', vCQ, aAPUB, sCQ)
    if P['po']:
        prefetch(12, 18432)
    if P['pd'] == 1:
        prefetch(20, 20736)
    for j in range(P['v0'], P['v2']):
        kvdma(j, True)
    a.label('S_GO')
    a('s_waitcnt lgkmcnt(0)')
    for j in range(32):
        m4(ACC[j % 3], (QA + 2 * (j >> 4)).t(2), ar(A_K + 2 * j, 2), j < 3, j & 15)
    a(f'''v_pk_add_f32 {Y.t(2)}, {ACC[2].t(2)}, {ACC[0].t(2)}
        v_pk_add_f32 {Y.t(2)}, {Y.t(2)}, {ACC[1].t(2)}
        v_mul_f32 {Y}, {sC}, {Y}
        v_mul_f32 {Y + 1}, {sC}, {Y + 1}''')
    dump(2, Y)
    stamp('scores', 3)
    lines(flat(ror_steps('v_max_f32', [PSV, PSV + 2], [Y, Y + 1]) + bcast_steps('v_max_f32', [PSV, PSV + 2])))
    a(f'''v_ceil_f32 {PSV}, {PSV}
        v_ceil_f32 {PSV + 2}, {PSV + 2}
        v_readlane_b32 {sR0}, {PSV}, 63
        v_readlane_b32 {sR1}, {PSV + 2}, 63
        v_subrev_f32 {Y}, {sR0}, {Y}
        v_subrev_f32 {Y + 1}, {sR1}, {Y + 1}
        v_exp_f32 {Y}, {Y}
        v_exp_f32 {Y + 1}, {Y + 1}
        v_cvt_pk_bf16_f32 {t0}, {Y}, {Y + 1}
        v_mov_b32_dpp {t1}, {t0} quad_perm:[1,0,3,2]{DPP}
        v_perm_b32 {PA}, {t1}, {t0}, {vSELH}
        v_mov_b32_dpp {PA + 1}, {PA} quad_perm:[2,3,2,3]{DPP}''')
    stamp('p ready')
    skip_l2('PV_GO')
    a.wait('GU')
    a('s_barrier', needs=('GU',))
    w3_to('NOGU')
    a(f'''v_lshrrev_b32 {t0}, 2, {vN}
        v_mul_u32_u24 {t0}, 576, {t0}
        s_mul_i32 {sT0}, {sW}, 192
        v_add_u32 {t0}, {sT0}, {t0}
        v_and_b32 {t1}, 3, {vL}
        v_lshl_add_u32 {t2}, {vRow}, 2, {t1}
        v_lshl_add_u32 {aTR}, {t2}, 3, {t0}
        v_lshrrev_b32 {t2}, 1, {t2}
        v_lshl_add_u32 {t0}, {t2}, 3, {t0}
        v_and_b32 {t1}, 1, {vL}
        v_mul_u32_u24 {t1}, 20736, {t1}
        v_add_u32 {aTR2}, {t0}, {t1}''')
    for j in range(9):
        a(f'ds_read_b64_tr_b16 {ar(A_GU + 2 * j, 2)}, {aTR} offset:{2304 * j}')
        a(f'ds_read_b64_tr_b16 {ar(A_GU + 18 + 2 * j, 2)}, {aTR} offset:{20736 + 2304 * j}')
        a(f'ds_read_b64_tr_b16 {ar(A_GU + 36 + 2 * j, 2)}, {aTR2} offset:{128 + 2304 * j}')
    a('s_waitcnt lgkmcnt(0)')
    for j in range(9):
        for b in range(3):
            m4(ACC[b], ONE.t(2), ar(A_GU + 18 * b + 2 * j, 2), j == 0, 0)
    a(f'v_cvt_pk_bf16_f32 {PK2}, {ACC[0]}, {ACC[1]}\nv_cvt_pk_bf16_f32 {PK2 + 1}, {ACC[2]}, {vTD}')
    a.label('NOGU')
    pub('buffer_store_dwordx2', PK2.t(2), aDPUB, sCG)
    a(f'''v_lshrrev_b32 {t0}, 2, {vN}
        v_lshlrev_b32 {t1}, 2, {t0}
        v_bfe_u32 {t2}, {vL}, 1, 1
        v_lshl_add_u32 {t2}, {vRow}, 1, {t2}
        v_xor_b32 {t2}, {t2}, {t1}
        v_lshlrev_b32 {t0}, 8, {t0}
        v_lshl_add_u32 {t0}, {t2}, 4, {t0}
        v_and_b32 {t1}, 1, {vL}
        v_lshl_add_u32 {t0}, {t1}, 3, {t0}
        s_add_u32 {sT0}, {sT1}, {L_V}
        v_add_u32 {aTR}, {sT0}, {t0}
        v_xor_b32 {aTR2}, 128, {aTR}''')
    for grp in range(4):
        if grp == P['wo_at']:
            wave16k()
            for j in range(P['v2'], 16):
                kvdma(j, True)
            tall_base()
            for k in range(5):
                tall_dma(S_WO, L_WO, k, 'WO')
            if P['pd'] == 2:
                prefetch(20, 20736)
        a.wait('V%d' % grp)
        for b in range(4 * grp, 4 * grp + 4):
            for eta in range(2):
                a(f'ds_read_b64_tr_b16 {ar(A_V + 4 * b + 2 * eta, 2)}, {aTR2 if eta else aTR} offset:{1024 * b}',
                  needs=('V%d' % grp,))
    a('s_waitcnt lgkmcnt(0)')
    stamp('V ready', 3)
    rstamp(3)
    a.label('PV_GO')
    ls = flat(ror_steps('v_add_f32', [PSV + 1, PSV + 3], [Y, Y + 1]) + bcast_steps('v_add_f32', [PSV + 1, PSV + 3]))
    for b in range(16):
        for eta in range(2):
            m4(ACC[2 * (b & 1) + eta], PA.t(2), ar(A_V + 4 * b + 2 * eta, 2), b < 2, b)
            if ls:
                a(ls.pop(0))
    a(f'''ds_write_b128 {aPSW}, {PSV.t(4)}
        v_pk_add_f32 {PO.t(2)}, {ACC[0].t(2)}, {ACC[2].t(2)}
        v_pk_add_f32 {(PO + 2).t(2)}, {ACC[1].t(2)}, {ACC[3].t(2)}
        ds_write2st64_b32 {aPOW}, {PO}, {PO + 1} offset0:0 offset1:8
        ds_write2st64_b32 {aPOW}, {PO + 2}, {PO + 3} offset0:4 offset1:12''')
    stamp('PV done', 3)
    a(f'''s_waitcnt lgkmcnt(0)
        s_barrier
        ds_read2_b64 {PS.t(4)}, {aPSR} offset0:0 offset1:2
        ds_read2_b64 {(PS + 4).t(4)}, {aPSR} offset0:4 offset1:6
        ds_read2st64_b32 {PO.t(2)}, {aPOR} offset0:0 offset1:1
        ds_read2st64_b32 {(PO + 2).t(2)}, {aPOR} offset0:2 offset1:3
        s_waitcnt lgkmcnt(2)
        v_max3_f32 {BST}, {PS}, {PS + 2}, {PS + 4}
        v_max_f32 {BST}, {BST}, {PS + 6}''')
    lines([f'v_sub_f32 {PS + 2 * q}, {PS + 2 * q}, {BST}' for q in range(4)])
    lines([f'v_exp_f32 {PS + 2 * q}, {PS + 2 * q}' for q in range(4)])
    a(f's_waitcnt lgkmcnt(0)\nv_mul_f32 {t0}, {PS}, {PO}')
    lines([f'v_fmac_f32 {t0}, {PS + 2 * q}, {PO + q}' for q in range(1, 4)])
    a(f'v_cvt_pk_bf16_f32 {t2}, {vTAB}, {t0}')
    pub('buffer_store_dword', t2, aAPUB, sBD)
    a(f'v_mul_f32 {BST + 1}, {PS}, {PS + 1}')
    lines([f'v_fmac_f32 {BST + 1}, {PS + 2 * q}, {PS + 2 * q + 1}' for q in range(1, 4)])
    pub('buffer_store_dwordx4', BST.t(4), aBSPUB, '0')
    dump(3, t0)
    stamp('B pub')
    rstamp(0)
    skip_l2('GB_PRE')
    tall_addr(L_WO)
    a.wait('WO')
    a('s_barrier', needs=('WO',))
    tall_tr(8, A_WO)
    a.label('GB_PRE')
    if P['ackwait']:
        a('s_waitcnt vmcnt(0)')
    a.label('GB_ISSUE')
    b_loads()
    a('s_waitcnt vmcnt(4)')
    b_reduce(True)
    a.label('GB_CHECK')
    retry('B', 'GB_ISSUE')
    a(f'''v_mul_f32 {t0}, {ACC[0]}, {vE1}
        v_cvt_pk_bf16_f32 {t1}, {t0}, {t0}
        ds_write_b16 {aQW}, {t1} offset:{L_O - L_Q}''')
    dump(4, t0)
    stamp('o sum', 3)
    a('s_waitcnt lgkmcnt(0)\ns_barrier')
    stamp('o ready')
    w3_to('W3_C')
    tall_stage(8, A_WO, 0)
    dump(5, ACC[0])
    stamp('C pub')
    rstamp(2)
    skip_l2('C_WAIT')
    cg_loads()
    if P['wd_at'] == 1:
        wd_pieces()
    if P['xbar']:
        a.wait('XP')
        a('s_barrier')
    a.wait('CG')
    cg_reduce('CG')
    a.jmp('C_BAR')
    a.label('C_WAIT')
    if P['xbar']:
        a.wait('XP')
        a('s_barrier')
    a.label('C_BAR')
    a(f's_barrier\nds_read_b64 {XQ.t(2)}, {aXQR}')
    if P['wd_at'] == 2:
        skip_l2('G_GO')
        wd_pieces()
        a.label('G_GO')
    a(f's_add_u32 {sSLOT}, {sSLOT}, 0x20000\ns_waitcnt lgkmcnt(0)')
    for j in range(9):
        for b in range(3):
            m4(ACC[b], XQ.t(2), ar(A_GU + 18 * b + 2 * j, 2), j == 0, j)
    a(f'v_cvt_pk_bf16_f32 {PK2}, {ACC[0]}, {ACC[1]}\nv_cvt_pk_bf16_f32 {PK2 + 1}, {ACC[2]}, {vTD}')
    pub('buffer_store_dwordx2', PK2.t(2), aDPUB, '0')
    dump(6, ACC[0])
    stamp('D pub')
    skip_l2('GD_ACK')
    a.label('GD_L1')
    tall_addr(L_WD)
    a('s_waitcnt vmcnt(0)')
    a('s_barrier', needs=('WD',))
    tall_tr(9, A_WD)
    a.label('GD_ACK')
    if P['ackwait']:
        a('s_waitcnt vmcnt(0)')
    a.label('GD_ISSUE')
    d_loads()
    a.label('GD_WAIT')
    lo = ln_ops(G[6])
    a(f's_waitcnt vmcnt(6)\nv_cmp_ne_u32 {sP}, {sT}, {G[6] + 3}')
    lines(lo[0])
    a('s_waitcnt vmcnt(5)')
    m16(ACC[1], SELD.t(4), G[4].t(4), '0')
    lines(lo[1])
    a('s_waitcnt vmcnt(4)')
    m16(ACC[1], SELD.t(4), G[5].t(4), ACC[1].t(4))
    chk_d(G[4], G[5], True)
    lines(lo[2])
    a('s_waitcnt vmcnt(3)')
    m16(ACC[0], SELD.t(4), G[0].t(4), '0')
    lines(lo[3])
    a('s_waitcnt vmcnt(2)')
    m16(ACC[0], SELD.t(4), G[1].t(4), ACC[0].t(4))
    chk_d(G[0], G[1], False)
    lines(lo[4] + lo[5] + lo[6])
    a('s_waitcnt vmcnt(1)')
    m16(ACC[0], SELD.t(4), G[2].t(4), ACC[0].t(4))
    a(f'''v_add_f32_dpp {t4}, {ACC[1]}, {ACC[1]} row_ror:8{DPP}
        v_add_f32_dpp {t5}, {ACC[1] + 1}, {ACC[1] + 1} row_ror:8{DPP}
        v_mul_f32 {vRS}, {vRS}, {vRS}
        s_waitcnt vmcnt(0)''')
    m16(ACC[0], SELD.t(4), G[3].t(4), ACC[0].t(4))
    chk_d(G[2], G[3], False)
    a(f'''v_cmp_lt_u32 vcc, 0xffff, {vE2}
        v_fma_f32 {t4}, -{vDM}, {CSG + 2}, {t4}
        v_fma_f32 {t5}, -{vDM}, {CSG + 3}, {t5}
        s_or_b64 vcc, vcc, {sP}''')
    retry('D', 'GD_ISSUE')
    a(f'''v_mul_f32 {t4}, {t4}, {vRS}
        v_mul_f32 {t4}, {t4}, {t5}
        v_fma_f32 {t0}, -{vDM}, {CSG}, {ACC[0]}
        v_fma_f32 {t1}, -{vDM}, {CSG + 1}, {ACC[0] + 1}
        v_mul_f32 {t0}, {t0}, {vRS}
        v_mul_f32 {t0}, {t0}, {t1}
        v_cvt_pk_bf16_f32 {t1}, {t0}, {t4}
        ds_write_b16 {aHW1}, {t1}
        ds_write_b16_d16_hi {aHW2}, {t1}''')
    dump(7, t0)
    stamp('h sum', 3)
    a('s_waitcnt lgkmcnt(0)\ns_barrier')
    stamp('h ready')
    w3_to('W3_E')
    tall_stage(9, A_WD, L_H - L_O)
    dump(8, ACC[0])
    stamp('E pub')
    rstamp(1)
    skip_l2('E_LAST')
    cq_loads()
    if P['xbar']:
        a('s_waitcnt vmcnt(4)\ns_barrier')
    a('s_waitcnt vmcnt(0)')
    cq_reduce('CQ')
    a(f's_add_u32 {sSLOT}, {sSLOT}, 0x20000')
    set_tags()
    setlayer2()
    a.label('Q_ENTRY')
    a(f's_barrier\nds_read_b64 {XQ.t(2)}, {aXQR}')
    a.jmp('Q_JOIN')
    a.label('E_LAST')
    if P['xbar']:
        a('s_waitcnt vmcnt(0)\ns_barrier')
    a.jmp('FINISH')

    a.label('W3_C')
    skip_l2('W3_C2')
    cg_loads()
    if P['pd'] == 3:
        a(f's_lshl_b32 {sT0}, {sG}, 4\ns_add_u32 {sT0}, {sT0}, {sI}\ns_mul_i32 {sT0}, {sT0}, 20736')
        mk_srd(S_X, 20, sT0, 20736)
        a(f'v_lshlrev_b32 {t0}, 6, {vL}')
        for k in range(6):
            a(f's_mov_b32 {sT0}, {4096 * k}')
            a(f'buffer_load_dword {vDUM}, {t0}, {srd(S_X)}, {sT0} offen', dummy=1)
    if P['wd_at'] == 1:
        wd_pieces()
    a.wait('CG')
    cg_reduce('CH')
    a.label('W3_C2')
    if P['xbar']:
        a('s_barrier')
    stamp('C poll', 3)
    xgather('C')
    xq_write()
    so = stats_ops()
    lines(so[:9])
    a('s_waitcnt lgkmcnt(0)')
    a('s_barrier')
    stamp('x1 ready')
    lines(so[9:])
    pub('buffer_store_dwordx4', ST.t(4), aASPUB, sDS)
    a(f's_add_u32 {sSLOT}, {sSLOT}, 0x20000')
    dump(9, XC)
    lines(resid_ops())
    skip_l2('W3_EPOCH')
    if P['wd_at'] == 2:
        wd_pieces()
    a.jmp('GD_L1')
    a.label('W3_EPOCH')
    a('s_cmp_lg_u32 s2, 0')
    a.br('s_cbranch_scc1', 'GD_ACK', lambda c: not c['final'])
    a(f'''v_mov_b32 {t0}, 0
        s_mov_b64 exec, 1
        buffer_store_dword {ST + 3}, {t0}, {srd(S_W)}, 0 offen
        s_mov_b64 exec, -1''')
    a.jmp('GD_ACK')

    a.label('W3_OUT')
    lines([f'v_add_f32 {XR + r}, {XC + r}, {vMP}' for r in range(4)])
    a(f'''v_cvt_pk_bf16_f32 {PK2}, {XR}, {XR + 1}
        v_cvt_pk_bf16_f32 {PK2 + 1}, {XR + 2}, {XR + 3}
        buffer_store_dwordx2 {PK2.t(2)}, {aOUT}, {srd(S_OUT)}, 0 offen''')
    a.label('FINISH')
    if P['hold']:
        rstamp(5)
        a(f's_mul_i32 s11, s11, 10\ns_add_u32 s11, s11, {P["hold"]}')
        a.label('HOLD')
        a(f's_memrealtime {sTS}\ns_waitcnt lgkmcnt(0)\ns_sub_u32 {sT0}, {sTSlo}, s3\ns_cmp_lt_u32 {sT0}, s11')
        a.br('s_cbranch_scc1', 'HOLD', lambda c: False)
    if P['stamps']:
        stamp('end', 1)
        a(f'''s_memrealtime {sTS}
            s_waitcnt lgkmcnt(0)
            v_writelane_b32 {vTS}, {sTSlo}, 31
            v_writelane_b32 {vTS}, {sRC}, 62
            s_mov_b32 {sT3}, {OFF_DBG:#x}
            buffer_store_dword {vTS}, {aDM}, {srd(S_W)}, {sT3} offen''')
    a.label('END')
    a('s_endpgm')
    for tag, issue, reissue in retry_blocks:
        a.label('RETRY_' + tag)
        if P['stamps'] >= 2 and len(tag) == 1:
            a(f's_add_u32 {sRC}, {sRC}, {1 << (6 * "ABCDE".index(tag))}')
        a(f's_sub_u32 {sBUD}, {sBUD}, 1')
        if reissue:
            a.br('s_cbranch_scc1', 'GIVEUP_' + tag, lambda c: False)
            reissue()
            a.jmp(issue)
            a.label('GIVEUP_' + tag)
        else:
            a.br('s_cbranch_scc0', issue, lambda c: True)
        a(f's_mov_b32 {sBUD}, 0')
        a.jmp('CONT_' + tag)
    a.label('CODE_END')

    ctxs = []
    for w in (0, 3):
        for fin in (True, False):
            for rt in (False, True):
                ctxs.append(lambda w=w, fin=fin, rt=rt: dict(layer=0, wave=w, final=fin, retry=rt,
                                                              name='w%d fin%d retry%d' % (w, fin, rt)))
    a.resolve_waits(ctxs)
    a.fix_hazards(ctxs)
    errs = a.check_waits(ctxs)
    return a, errs, v.n, names


HEADER = '''; Persistent decode kernel: 256 workgroups (one per CU) keep K, V and all weights on chip for both layers.
; @launch grid=(256,1,1) block=(256,1,1) lds=%d
.amdgcn_target "amdgcn-amd-amdhsa--gfx950"
.text
.globl %s
.p2align 8
.type %s,@function
%s:
'''
FOOTER = '''.section .rodata,"a"
.p2align 6
.amdhsa_kernel %s
  .amdhsa_next_free_vgpr 512
  .amdhsa_next_free_sgpr 102
  .amdhsa_accum_offset 256
  .amdhsa_group_segment_fixed_size 0
  .amdhsa_kernarg_size 96
  .amdhsa_user_sgpr_count 2
  .amdhsa_user_sgpr_kernarg_segment_ptr 1
  .amdhsa_system_sgpr_workgroup_id_x 1
.end_amdhsa_kernel
'''


def render(**kw):
    a, errs, nv, names = build(**kw)
    txt = HEADER % (LDS_BYTES, KNAME, KNAME, KNAME) + a.text() + FOOTER % KNAME
    if names:
        txt = '; stamps: ' + ','.join(names) + '\n' + txt
    return txt, a, errs, nv, names


if __name__ == '__main__':
    out = sys.argv[1]
    kw = {}
    for s in sys.argv[2:]:
        k, x = s.split('=')
        kw[k] = int(x)
    txt, a, errs, nv, names = render(**kw)
    for e in sorted(set(errs)):
        print('WAIT ERROR', e)
    open(out, 'w').write(txt)
    print('vgprs', nv, 'lds', LDS_BYTES, 'pads', sum(p for p, _ in a.pads()))
    if errs:
        sys.exit(1)
```

```python
import sys
from asmlib import Asm

KNAME = 'interleave_layers__sliding_block_cached__glu_gated_bilinear__decode_kernel'

DEFAULTS = dict(
    stamps=0,
    dump=0,
    ka=5,
    kb=5,
    v0=4,
    v2=16, wo_at=0,
    po=0,
    pd=3,
    wd_at=2,
    pnt=0,
    probe=1, xack1=0, pform=1, dnl1=0, tnt=1,
    near=1,
    pretouch=1, prewrite=1, codepf=2, tlbpf=0,
    ackwait=1,
    xbar=1,
    forceslow=0, xdelay=0,
    amp=-1, hold=0,
)

OFF_AD, OFF_CQ, OFF_BD = 0x1000, 0x41000, 0x81000
OFF_DD, OFF_CG = 0xC1000, 0x121000
OFF_AS, OFF_DS, OFF_BS = 0x181000, 0x182000, 0x183000
OFF_X = 0x200000
WS_USED = 0x2A0000
OFF_DBG = 0x300000
WS_SRD = 0x1000000
OOB = 0x80000000
L_K, L_V = 0, 65536
L_GU, L_WD = 0, 65536
L_X = 131072
L_ONE = L_X + 128
L_Q = L_X + 192
L_O = L_Q + 512
L_H = L_O + 512
L_PS = L_H + 640
L_DUM = L_PS + 64
L_PO = (L_DUM + 1024 + 255) // 256 * 256
L_WQ = L_PO + 4096
L_WO = L_WQ
LDS_BYTES = L_WO + 20480 + 256
assert 81920 < LDS_BYTES <= 163840

S_K, S_V, S_WQ, S_WO, S_WG, S_WU, S_WD, S_X, S_OUT, S_W, S_F, S_S = range(28, 76, 4)
(sW, sG, sI, sROT, sT, sThi, sTsh, sLAY, sBUD, sXCC, sCQ, sBD, sDS, sCG, sSLOT,
 sR0, sR1, sT0, sT1, sT2, sT3, sE) = ['s%d' % n for n in range(76, 98)]
sM9, sP = 's[98:99]', 's[100:101]'
sC, sINV, sHIM, sRC, sTS, sTSlo, sTX, sTXh = 's4', 's5', 's6', 's7', 's[8:9]', 's8', 's10', 's14'
A_K, A_V, A_GU, A_WO, A_WD = 0, 64, 128, 184, 216
DPP = ' row_mask:0xf bank_mask:0xf'


def srd(b):
    return 's[%d:%d]' % (b, b + 3)


class R(int):
    def __str__(self):
        return 'v%d' % int(self)
    __format__ = lambda self, spec: str(self)

    def __add__(self, o):
        return R(int(self) + o)

    def t(self, k):
        return 'v[%d:%d]' % (int(self), int(self) + k - 1)


def ar(b, k):
    return 'a[%d:%d]' % (b, b + k - 1)


class V:
    def __init__(self):
        self.n = 1

    def __call__(self, k=1, al=1):
        if k > 1:
            al = max(al, 2)
        self.n = (self.n + al - 1) // al * al
        r = self.n
        self.n += k
        assert self.n <= 256
        return R(r)


def build(**kw):
    P = dict(DEFAULTS)
    for k in kw:
        assert k in P, k
    P.update(kw)
    a = Asm()
    v = V()
    L1 = lambda c: c['layer'] == 0
    L2 = lambda c: c['layer'] == 1
    W3 = lambda c: c['wave'] == 3
    NW3 = lambda c: c['wave'] != 3

    vL, vRow, vN = v(), v(), v()
    t0, t1, t2, t3, t4, t5, vSINK, vOOB = [v() for _ in range(8)]
    (aXQR, aAPUB, aAGET, aASGET, aASPUB, aBSGET, aBSPUB, aQW, aQR, aPOW, aPOR, aPSW, aPSR, aOR, aXPUB,
     aXGET, aXQW, aDPUB, aDG1, aDG1b, aDG2, aHW1, aHW2, aOUT) = [v() for _ in range(24)]
    SEL4, MASK4, SELX, SELD = v(4, 4), v(4, 4), v(4, 4), v(4, 4)
    vSELH, vTAB, vTD, vEPS, vMP, t6 = v(), v(), v(), v(), v(), v()
    XG, ST, BST, PSV = v(4, 4), v(4, 4), v(4, 4), v(4, 4)
    WQ = v(18, 2)
    XQ, QA, PA, ONE = v(2), v(4, 2), v(2), v(2)
    ACC = [v(4, 4) for _ in range(4)]
    G = [v(4, 4) for _ in range(7)]
    OP = v(36, 4)
    G2 = [OP + 4 * q for q in range(6)]
    AW = [OP + 4 * q for q in range(4)]
    XC, XR, CI = v(4, 4), v(4, 4), v(4, 4)
    CSQ, CSG = v(), v(4, 2)
    Y, PK2 = v(2), v(2)
    PO, PS = v(4, 2), v(8, 2)
    vDM, vRS, vE0, vE1, vE2 = v(), v(), v(), v(), v()
    aK = [v() for _ in range(4)]
    aV, aWQ, aTR, aTR2, aDM = v(), v(), v(), v(), v()
    aGU = [v() for _ in range(2)]
    aTL = [v() for _ in range(6)]
    vCQ, aPB = v(), v()
    vTS, vDUM = v(), v()
    names = []

    def lines(xs):
        for x in xs:
            a(x)

    def stamp(name, level=2):
        if P['stamps'] < level:
            return
        k = len(names)
        names.append(name)
        assert k < 30
        a(f'''s_memtime {sTS}
            s_lshl_b32 {sT3}, {sLAY}, 5
            s_add_u32 m0, {sT3}, {k}
            s_waitcnt lgkmcnt(0)
            v_writelane_b32 {vTS}, {sTSlo}, m0''')

    def rstamp(k):
        if P['amp'] in (k, k + 8):
            a(f's_cmp_lg_u32 {sLAY}, {P["amp"] >> 3}')
            a.br('s_cbranch_scc1', 'AMP%d' % k, lambda c: c['layer'] != P['amp'] >> 3)
            a(f's_memrealtime {sTS}\ns_waitcnt lgkmcnt(0)\ns_sub_u32 s11, {sTSlo}, s3')
            a.label('AMP%d' % k)
        if P['stamps'] != 1:
            return
        a(f'''s_memrealtime {sTS}
            s_lshl_b32 {sT3}, {sLAY}, 3
            s_add_u32 m0, {sT3}, {40 + k}
            s_waitcnt lgkmcnt(0)
            v_writelane_b32 {vTS}, {sTSlo}, m0''')

    def estamp(name):
        if P['stamps'] < 3:
            return
        k = len(names)
        names.append(name)
        a(f's_memtime s[86:87]\ns_waitcnt lgkmcnt(0)\nv_writelane_b32 {vTS}, s86, {k}')

    def dump(idx, reg):
        if not P['dump']:
            return
        a(f'''s_lshl_b32 {sT3}, {sLAY}, 18
            s_add_u32 {sT3}, {sT3}, {OFF_DBG + 0x100000 + idx * 0x80000:#x}
            buffer_store_dword {reg}, {aDM}, {srd(S_W)}, {sT3} offen
            s_waitcnt vmcnt(0)''')

    def mk_srd(b, ptr, off, size):
        if off is None:
            a(f's_mov_b32 s{b}, s{ptr}\ns_and_b32 s{b + 1}, s{ptr + 1}, 0xffff')
        else:
            a(f's_add_u32 s{b}, s{ptr}, {off}\ns_addc_u32 s{b + 1}, s{ptr + 1}, 0\ns_and_b32 s{b + 1}, s{b + 1}, 0xffff')
        a(f's_mov_b32 s{b + 2}, {size:#x}\ns_mov_b32 s{b + 3}, 0x20000')

    def pub(op, data, addr, soff):
        a(f'{op} {data}, {addr}, {srd(S_F)}, {soff} offen')
        a(f'{op} {data}, {addr}, {srd(S_S)}, {soff} offen sc1')

    def gload(dst, addr, soff, off=0, tag=None):
        a(f'buffer_load_dwordx4 {dst.t(4)}, {addr}, {srd(S_W)}, {soff} offen' + (f' offset:{off}' if off else '') + ' sc1', tag=tag)

    retry_blocks = []

    def retry(tag, issue_label, reissue=None):
        def taken(c):
            k = (tag, c['layer'])
            if c.get('retry') and k not in c.setdefault('_done', set()):
                c['_done'].add(k)
                return True
            return False
        a.br('s_cbranch_scc1', 'RETRY_' + tag, taken)
        a.label('CONT_' + tag)
        retry_blocks.append((tag, issue_label, reissue))

    def skip_l2(label):
        a(f's_cmp_lg_u32 {sLAY}, 0')
        a.br('s_cbranch_scc1', label, L2)

    def skip_l1(label):
        a(f's_cmp_eq_u32 {sLAY}, 0')
        a.br('s_cbranch_scc1', label, L1)

    def w3_to(label):
        a(f's_cmp_eq_u32 {sW}, 3')
        a.br('s_cbranch_scc1', label, W3)

    def wave16k():
        a(f's_lshl_b32 {sT1}, {sW}, 14')

    def kvdma(j, isv):
        a(f'''s_add_u32 m0, {sT1}, {(L_V if isv else L_K) + 1024 * j}
            s_add_u32 {sT0}, {sROT}, {j << 12}
            s_and_b32 {sT0}, {sT0}, 0xf000''')
        if isv:
            a(f'buffer_load_dwordx4 {aV}, {srd(S_V)}, {sT0} offen nt lds', fills='V%d' % (j // 4))
        else:
            a(f'buffer_load_dwordx4 {aK[j & 3]}, {srd(S_K)}, {sT0} offen nt lds', fills='K')

    def tall_base():
        a(f's_mul_i32 {sT2}, {sW}, 5120\ns_mul_i32 {sT3}, {sW}, {64 * 1152}')

    def tall_dma(S, region, k, fills):
        if k < 5:
            a(f's_add_u32 m0, {sT2}, {region + 1024 * k}')
            a(f'buffer_load_dwordx4 {aTL[k]}, {srd(S)}, {sT3} offen{" nt" if P["tnt"] else ""} lds', fills=fills)
        else:
            a(f's_lshl_b32 {sT0}, {sW}, 10\ns_add_u32 m0, {sT0}, {region + 20480}')
            a(f'buffer_load_dwordx4 {aTL[5]}, {srd(S)}, 0 offen{" nt" if P["tnt"] else ""} lds', fills=fills)

    def prefetch(ptr, size):
        a(f's_lshl_b32 {sT0}, {sG}, 4\ns_add_u32 {sT0}, {sT0}, {sI}\ns_mul_i32 {sT0}, {sT0}, {size}')
        mk_srd(S_X, ptr, sT0, size)
        a(f'v_lshlrev_b32 {t0}, 6, v0\ns_mov_b32 {sT0}, 16384')
        nt = ' nt' if P['pnt'] else ''
        a(f'buffer_load_dword {vDUM}, {t0}, {srd(S_X)}, 0 offen{nt}', dummy=1)
        a(f'buffer_load_dword {vDUM}, {t0}, {srd(S_X)}, {sT0} offen{nt}', dummy=1)

    def wd_pieces():
        tall_base()
        for k in range(6):
            tall_dma(S_WD, L_WD, k, 'WD')

    def gu_batch(lo, hi):
        if hi > lo:
            a(f's_mul_i32 {sT2}, {sW}, 5184\ns_mov_b32 exec_hi, 0x3fffff')
            for k in range(lo, hi):
                gudma(k)
            a('s_mov_b32 exec_hi, -1')

    def gudma(k):
        j, mu = k >> 1, k & 1
        a(f's_add_u32 m0, {sT2}, {L_GU + 20736 * mu + 864 * j}\ns_mov_b32 {sT0}, {(j >> 1) * 3 * 9216}')
        a(f'buffer_load_dwordx4 {aGU[j & 1]}, {srd(S_WU if mu else S_WG)}, {sT0} offen nt lds', fills='GU')

    def set_tags():
        a(f'''s_and_b32 {sT}, {sT}, 0x1fff1fff
            s_add_u32 {sT}, {sT}, 0x10001
            s_and_b32 {sT}, {sT}, 0x1fff1fff
            s_or_b32 {sT}, {sT}, 0x20002000
            s_lshr_b32 {sThi}, {sT}, 16
            s_lshl_b32 {sTsh}, {sT}, 16
            s_and_b32 {sT0}, {sT}, 0xffff0000
            v_mov_b32 {t0}, {sTsh}
            v_mov_b32 {t1}, {sT0}
            s_mov_b32 vcc_lo, 0x55555555
            s_mov_b32 vcc_hi, 0x55555555
            v_cndmask_b32 {vTAB}, {t1}, {t0}, vcc
            s_mov_b32 vcc_lo, 0x0f0f0f0f
            s_mov_b32 vcc_hi, 0x0f0f0f0f
            v_cndmask_b32 {vTD}, {t1}, {t0}, vcc
            v_mov_b32 {ST + 3}, {sT}
            v_mov_b32 {BST + 3}, {sT}''')

    def ror_steps(op, regs, first_src=None):
        out = []
        for k, sh in enumerate((8, 4, 2, 1)):
            grp = []
            for q, r in enumerate(regs):
                s = first_src[q] if (k == 0 and first_src) else r
                grp.append(f'{op}_dpp {r}, {s}, {s} row_ror:{sh}{DPP}')
            out.append(grp)
        return out

    def bcast_steps(op, regs):
        return [[f'{op}_dpp {r}, {r}, {r} row_bcast:{bc} row_mask:{rm} bank_mask:0xf' for r in regs]
                for bc, rm in ((15, '0xa'), (31, '0xc'))]

    def flat(groups):
        return [x for g in groups for x in g]

    def stats_ops():
        return [f'v_add_f32 {t4}, {XC}, {XC + 1}',
                f'v_mul_f32 {t5}, {XC}, {XC}',
                f'v_add_f32 {t6}, {XC + 2}, {XC + 3}',
                f'v_fmac_f32 {t5}, {XC + 1}, {XC + 1}',
                f'v_add_f32 {t4}, {t4}, {t6}',
                f'v_fmac_f32 {t5}, {XC + 2}, {XC + 2}',
                f'v_cndmask_b32 {ST}, 0, {t4}, {sM9}',
                f'v_fmac_f32 {t5}, {XC + 3}, {XC + 3}',
                f'v_cndmask_b32 {ST + 1}, 0, {t5}, {sM9}'] + flat(ror_steps('v_add_f32', [ST, ST + 1]))

    def resid_ops():
        return [f'v_add_f32 {XR + r}, {XC + r}, {vMP}' for r in range(4)] + [
            f'v_cvt_pk_bf16_f32 {XR + 1}, {XR}, {XR + 1}',
            f'v_cvt_pk_bf16_f32 {XR + 3}, {XR + 2}, {XR + 3}',
            f'v_lshlrev_b32 {XR}, 16, {XR + 1}',
            f'v_lshlrev_b32 {XR + 2}, 16, {XR + 3}',
            f'v_and_b32 {XR + 1}, {sHIM}, {XR + 1}',
            f'v_and_b32 {XR + 3}, {sHIM}, {XR + 3}']

    def ln_ops(S):
        return ror_steps('v_add_f32', [vE0, vE1], [S, S + 1]) + [
            [f'v_mul_f32 {vDM}, {sINV}, {vE0}', f'v_fma_f32 {vRS}, {vE1}, {sINV}, {vEPS}'],
            [f'v_fma_f32 {vRS}, -{vDM}, {vDM}, {vRS}'],
            [f'v_rsq_f32 {vRS}, {vRS}']]

    def newmean_ops():
        return [f'v_add_f32 {vMP}, {vMP}, {vDM}'] + [f'v_sub_f32 {CI + r}, {XR + r}, {vMP}' for r in range(4)]

    def m16(d, A, B, C):
        a(f'v_mfma_f32_16x16x32_bf16 {d.t(4)}, {A}, {B}, {C}')

    def m4(d, A, B, first, abid):
        a(f'v_mfma_f32_4x4x4_16b_bf16 {d.t(4)}, {A}, {B}, {"0" if first else d.t(4)} cbsz:4 abid:{abid}')

    def chk_ab(g, first, lo=sT, hi=sThi):
        a(f'v_bitop3_b32 {t0}, {g}, {g + 2}, {lo} bitop3:0x7e\nv_bitop3_b32 {t1}, {g + 1}, {g + 3}, {hi} bitop3:0x7e')
        a(f'v_or_b32 {vE2}, {t0}, {t1}' if first else f'v_or3_b32 {vE2}, {t0}, {t1}, {vE2}')

    def chk_d(g, h, first):
        a(f'v_bitop3_b32 {t0}, {g + 1}, {h + 1}, {sTsh} bitop3:0x7e\nv_bitop3_b32 {t1}, {g + 3}, {h + 3}, {sT} bitop3:0x7e')
        a(f'v_or_b32 {vE2}, {t0}, {t1}' if first else f'v_or3_b32 {vE2}, {t0}, {t1}, {vE2}')

    def tall_addr(region):
        a(f'''v_lshrrev_b32 {t0}, 2, {vN}
            v_lshl_add_u32 {t0}, {vRow}, 3, {t0}
            v_mul_u32_u24 {t0}, 80, {t0}
            v_and_b32 {t1}, 3, {vL}
            v_lshl_add_u32 {t0}, {t1}, 3, {t0}
            s_and_b32 {sT0}, {sI}, 1
            s_lshl_b32 {sT0}, {sT0}, 3
            s_mul_i32 {sT3}, {sW}, 24
            s_add_u32 {sT0}, {sT0}, {sT3}
            s_add_u32 {sT0}, {sT0}, {region}
            v_add_u32 {aTR}, {sT0}, {t0}''')

    def tall_tr(nk, AB):
        for k in range(nk):
            for u in range(2):
                a(f'ds_read_b64_tr_b16 {ar(AB + 4 * k + 2 * u, 2)}, {aTR} offset:{2560 * k + 320 * u}')

    def tall_first(nk, AB, ldsoff):
        def rd(k):
            for u in range(2):
                a(f'ds_read_b64_tr_b16 {ar(AB + 4 * k + 2 * u, 2)}, {aTR} offset:{2560 * k + 320 * u}')
            a(f'ds_read_b128 {(OP + 4 * k).t(4)}, {aOR} offset:{ldsoff + 64 * k}')
        for k in range(5):
            rd(k)
        for k in range(nk):
            a(f's_waitcnt lgkmcnt({3 * (min(nk, k + 5) - k - 1)})')
            m16(ACC[0], ar(AB + 4 * k, 4), (OP + 4 * k).t(4), '0' if k == 0 else ACC[0].t(4))
            if k + 5 < nk:
                rd(k + 5)

    def tall_stage(nk, AB, ldsoff, join=None):
        for k in range(nk):
            a(f'ds_read_b128 {(OP + 4 * k).t(4)}, {aOR} offset:{ldsoff + 64 * k}')
        for k in range(nk):
            a(f's_waitcnt lgkmcnt({nk - 1 - k})')
            m16(ACC[0], ar(AB + 4 * k, 4), (OP + 4 * k).t(4), '0' if k == 0 else ACC[0].t(4))
        if join:
            a.label(join)
        a(f'''v_cvt_pk_bf16_f32 {XG}, {ACC[0]}, {ACC[0] + 1}
            v_cvt_pk_bf16_f32 {XG + 1}, {ACC[0] + 2}, {ACC[0] + 3}
            buffer_store_dwordx4 {XG.t(4)}, {aXPUB}, {srd(S_W)}, {sSLOT} offen sc1''', tag='XP')

    def cg_loads():
        for q, (ad, off) in enumerate(((aDG1, 0), (aDG1, 1536), (aDG1b, 0), (aDG1b, 1536), (aDG2, 0), (aDG2, 1536))):
            gload(G2[q], ad, sCG, off, 'CG')

    def cg_reduce(tag):
        a.label('CHECK_' + tag)
        for q in range(4):
            m16(ACC[2], SELD.t(4), G2[q].t(4), '0' if q == 0 else ACC[2].t(4))
        for q in range(2):
            m16(ACC[3], SELD.t(4), G2[4 + q].t(4), '0' if q == 0 else ACC[3].t(4))
        for q in range(3):
            chk_d(G2[2 * q], G2[2 * q + 1], q == 0)
        a(f'v_cmp_lt_u32 vcc, 0xffff, {vE2}\ns_cmp_lg_u64 vcc, 0')
        retry(tag, 'CHECK_' + tag, lambda: (cg_loads(), a('s_waitcnt vmcnt(0)')))
        a(f'''v_mov_b32 {CSG}, {ACC[2]}
            v_mov_b32 {CSG + 1}, {ACC[2] + 1}
            v_add_f32_dpp {CSG + 2}, {ACC[3]}, {ACC[3]} row_ror:8{DPP}
            v_add_f32_dpp {CSG + 3}, {ACC[3] + 1}, {ACC[3] + 1} row_ror:8{DPP}''')

    def cq_loads():
        for q in range(4):
            gload(G2[q], aAGET, sCQ, 1024 * q, 'CQ')

    def cq_reduce(tag):
        a.label('CHECK_' + tag)
        for q in range(4):
            m16(ACC[2], SEL4.t(4), G2[q].t(4), '0' if q == 0 else ACC[2].t(4))
            chk_ab(G2[q], q == 0, sTX, sTXh)
        a(f'v_cmp_ne_u16 vcc, 0, {vE2}\ns_cmp_lg_u64 vcc, 0')
        retry(tag, 'CHECK_' + tag, lambda: (cq_loads(), a('s_waitcnt vmcnt(0)')))
        a(f'v_mov_b32 {CSQ}, {ACC[2]}')

    def a_loads():
        gload(G[4], aASGET, '0', tag='A')
        for q in range(4):
            gload(G[q], aAGET, '0', 1024 * q, 'A')

    def b_loads():
        gload(G[4], aBSGET, '0', tag='B')
        for q in range(4):
            gload(G[q], aAGET, sBD, 1024 * q, 'B')

    def b_reduce(waits):
        a(f'v_cmp_ne_u32 {sP}, {sT}, {G[4] + 3}')
        lines(flat(ror_steps('v_max_f32', [vE0], [G[4]])))
        a(f'v_sub_f32 {vE0}, {G[4]}, {vE0}\nv_exp_f32 {vE0}, {vE0}\nv_mul_f32 {vE1}, {vE0}, {G[4] + 1}')
        lsum = flat(ror_steps('v_add_f32', [vE1]))
        for q in range(4):
            for d in range(4):
                a(f'v_and_b32_dpp {AW[q] + d}, {vE0}, {MASK4 + d} row_newbcast:{q}{DPP}')
            a(lsum[q])
            if waits:
                a(f's_waitcnt vmcnt({3 - q})')
            chk_ab(G[q], q == 0)
            m16(ACC[0], AW[q].t(4), G[q].t(4), '0' if q == 0 else ACC[0].t(4))
        a(f'v_cmp_ne_u16 vcc, 0, {vE2}\nv_rcp_f32 {vE1}, {vE1}\ns_or_b64 vcc, vcc, {sP}')

    def d_loads():
        gload(G[6], aASGET, sDS)
        gload(G[4], aDG2, '0')
        gload(G[5], aDG2, '0', 1536)
        gload(G[0], aDG1, '0')
        gload(G[1], aDG1, '0', 1536)
        gload(G[2], aDG1b, '0')
        gload(G[3], aDG1b, '0', 1536)

    def a_reduce(waits):
        lo = ln_ops(G[4])
        a(f'v_cmp_ne_u32 {sP}, {sT}, {G[4] + 3}')
        lines(lo[0])
        for q in range(4):
            if waits:
                a(f's_waitcnt vmcnt({3 - q})')
            m16(ACC[0], SEL4.t(4), G[q].t(4), '0' if q == 0 else ACC[0].t(4))
            chk_ab(G[q], q == 0)
            lines(lo[1 + q])
        a(f'v_cmp_ne_u16 vcc, 0, {vE2}')
        lines(lo[5])
        a(f's_or_b64 vcc, vcc, {sP}')
        return lo

    def xgather(tag):
        if P['xdelay']:
            a('s_sleep %d' % P['xdelay'])
        a.label('GX_ISSUE_' + tag)
        for q in range(4):
            gload(G[q], aXGET, sSLOT, 256 * q)
        for q in range(4):
            a(f's_waitcnt vmcnt({3 - q})')
            m16(XC, SELX.t(4), G[q].t(4), CI.t(4) if q == 0 else XC.t(4))
            if q & 1:
                a(f'v_bitop3_b32 {(t0, t1)[q >> 1]}, {G[q - 1] + 3}, {G[q] + 3}, {sTX} bitop3:0x7e')
        a(f'v_or_b32 {t0}, {t0}, {t1}\nv_cmp_ne_u32 vcc, 0, {t0}\ns_cmp_lg_u64 vcc, 0')
        retry(tag, 'GX_ISSUE_' + tag)

    def xq_write():
        a(f'''v_cvt_pk_bf16_f32 {PK2}, {XC}, {XC + 1}
            v_cvt_pk_bf16_f32 {PK2 + 1}, {XC + 2}, {XC + 3}
            ds_write_b64 {aXQW}, {PK2.t(2)}''')

    def setlayer2():
        a(f's_mov_b32 {sLAY}, 1')
        a.act(lambda c: c.__setitem__('layer', 1))
        if P['stamps'] >= 2:
            a(f'v_writelane_b32 {vTS}, {sRC}, 30\ns_mov_b32 {sRC}, 0')

    a('s_cmp_ge_u32 s2, 256')
    a.br('s_cbranch_scc1', 'END', lambda c: False)
    if P['stamps']:
        a('s_memtime s[86:87]')
        names.append('start')
    if P['stamps'] or P['hold']:
        a('s_memrealtime s[90:91]')
    a(f'''s_load_dwordx16 s[4:19], s[0:1], 0
        s_load_dwordx8 s[20:27], s[0:1], 64
        v_lshrrev_b32 {t0}, 6, v0
        v_and_b32 {vL}, 63, v0
        v_readfirstlane_b32 {sW}, {t0}
        s_and_b32 {sT0}, s2, 7
        s_lshl_b32 {sT0}, {sT0}, 1
        s_bfe_u32 {sT1}, s2, 0x10003
        s_add_u32 {sG}, {sT0}, {sT1}
        s_lshr_b32 {sI}, s2, 4
        s_lshl_b32 {sROT}, s2, 9
        s_and_b32 {sROT}, {sROT}, 0xf000
        s_mov_b32 {sLAY}, 0
        v_lshrrev_b32 {vRow}, 4, {vL}
        v_and_b32 {vN}, 15, {vL}
        v_lshrrev_b32 {t0}, 3, {vL}
        v_and_b32 {t1}, 7, {vL}
        v_lshlrev_b32 {t0}, 13, {t0}
        v_lshl_add_u32 {t0}, {t1}, 4, {t0}
        s_lshl_b32 {sT0}, {sW}, 7
        v_add_u32 {aWQ}, {sT0}, {t0}
        s_lshl_b32 {sT0}, {sW}, 10
        v_lshl_add_u32 {t0}, {vRow}, 8, {sT0}
        v_xor_b32 {t1}, {vN}, {vRow}
        v_lshl_add_u32 {aK[0]}, {t1}, 4, {t0}
        v_xor_b32 {aK[1]}, 64, {aK[0]}
        v_xor_b32 {aK[2]}, 128, {aK[0]}
        v_xor_b32 {aK[3]}, 192, {aK[0]}
        v_lshlrev_b32 {t1}, 2, {vRow}
        v_xor_b32 {t1}, {vN}, {t1}
        v_lshl_add_u32 {aV}, {t1}, 4, {t0}
        v_lshlrev_b32 {t2}, 4, {vL}
        s_mul_i32 {sT3}, {sI}, 72
        v_lshl_add_u32 {t3}, {vN}, 3, {sT3}
        s_mul_i32 {sT0}, {sI}, {36 * 8192}
        s_lshl_b32 {sT1}, {sG}, 9
        s_add_u32 {sT0}, {sT0}, {sT1}
        s_lshl_b32 {sT2}, {sG}, 23
        s_lshl_b32 {sT3}, {sI}, 16
        s_add_u32 {sT2}, {sT2}, {sT3}
        s_add_u32 {sT2}, {sT2}, {28672 * 256}
        s_mul_i32 {sT1}, {sW}, 4608
        s_cmp_lg_u32 {sW}, 3
        s_waitcnt lgkmcnt(0)''')
    a.br('s_cbranch_scc1', 'NOX', NW3)
    mk_srd(S_X, 4, None, 1152)
    a(f'''buffer_load_dwordx4 {G[0].t(4)}, {t2}, {srd(S_X)}, 0 offen
        buffer_load_dwordx4 {G[1].t(4)}, {t2}, {srd(S_X)}, 0 offen offset:1024
        buffer_load_dwordx2 {G[2].t(2)}, {t3}, {srd(S_X)}, 0 offen''', tag='X')
    a.label('NOX')
    if P['hold']:
        a('s_mov_b32 s3, s90')
    if P['stamps']:
        a(f'v_mov_b32 {vTS}, 0\nv_writelane_b32 {vTS}, s86, 0\nv_writelane_b32 {vTS}, s90, 63')
    estamp('kernarg')
    a(f's_load_dword {sE}, s[26:27], 0')
    mk_srd(S_WQ, 10, sT0, 35 * 8192 + 512)
    for k in range(5):
        a(f's_add_u32 m0, {sT1}, {L_WQ + 1024 * k}\ns_mov_b32 {sT0}, {65536 * k}')
        if k == 4:
            a('s_mov_b32 exec_hi, 0')
        a(f'buffer_load_dwordx4 {aWQ}, {srd(S_WQ)}, {sT0} offen nt lds', fills='WQ')
        if k == 4:
            a('s_mov_b32 exec_hi, -1')
    mk_srd(S_K, 6, sT2, 65536)
    if P['codepf']:
        a(f's_getpc_b64 {sP}')
        a.label('PCREF')
        a(f'''s_lshl_b32 {sT0}, {sW}, 12
            v_lshl_add_u32 {t2}, {vL}, 6, {sT0}
            s_cmp_lt_u32 s2, {P['codepf'] * 8}
            s_cselect_b32 {sT0}, CODE_END-PCREF-4, 0
            v_min_u32 {t2}, {sT0}, {t2}''')
        a(f'global_load_dword {vDUM}, {t2}, {sP}', dummy=1)
    wave16k()
    for j in range(P['ka']):
        kvdma(j, False)
    mk_srd(S_V, 8, sT2, 65536)
    if P['tlbpf']:
        a(f's_load_dword {sR0}, s[{S_V}:{S_V + 1}], 0', dummy=1)
        for ptr, mul, reg, b, end in ((12, 256 * 1152, sG, S_WO, 255 * 1152), (16, 36 * 9216, sI, S_WG, 35 * 9216),
                                      (18, 36 * 9216, sI, S_WU, 35 * 9216), (20, 288 * 1152, sG, S_WD, 287 * 1152)):
            a(f's_mul_i32 {sT3}, {reg}, {mul}\ns_add_u32 s{b}, s{ptr}, {sT3}\ns_addc_u32 s{b + 1}, s{ptr + 1}, 0')
            a(f's_load_dword {sR0}, s[{b}:{b + 1}], 0', dummy=1)
            a(f's_load_dword {sR0}, s[{b}:{b + 1}], {end:#x}', dummy=1)
        a(f's_add_u32 s{S_OUT}, s26, {OFF_X:#x}\ns_addc_u32 s{S_OUT + 1}, s27, 0')
        a(f's_load_dword {sR0}, s[{S_OUT}:{S_OUT + 1}], {WS_USED - OFF_X - 64:#x}', dummy=1)
        a(f's_load_dword {sR0}, s[22:23], 0', dummy=1)
    WSZ = WS_SRD if (P['dump'] or P['stamps']) else WS_USED
    mk_srd(S_W, 26, None, WSZ)
    mk_srd(S_F, 26, None, 0)
    mk_srd(S_S, 26, None, WS_USED)
    a(f'''s_mov_b32 {sINV}, 0x3ae38e39
        s_mov_b32 {sHIM}, 0xffff0000
        s_getreg_b32 {sXCC}, hwreg(HW_REG_XCC_ID)
        s_and_b32 {sXCC}, {sXCC}, 15
        s_mov_b32 s98, 0x01ff01ff
        s_mov_b32 s99, 0x01ff01ff
        v_mov_b32 {ONE}, 0x3f803f80
        v_mov_b32 {ONE + 1}, 0x3f803f80
        v_mov_b32 {ST + 2}, {sXCC}
        v_mov_b32 {vOOB}, {OOB:#x}
        s_mov_b32 {sT2}, {L_DUM}
        v_lshl_add_u32 {vSINK}, {vL}, 4, {sT2}
        v_lshrrev_b32 {t0}, 2, {vL}
        s_mov_b32 {sT0}, {L_X}
        v_lshl_add_u32 {t1}, {t0}, 3, {sT0}
        v_mov_b32 {t2}, {L_ONE}
        s_mov_b32 vcc_lo, 0x22222222
        s_mov_b32 vcc_hi, 0x22222222
        v_cndmask_b32 {aXQR}, {t1}, {t2}, vcc
        ds_write_b64 {t2}, {ONE.t(2)}
        v_lshl_add_u32 {t0}, {vN}, 3, {sT0}
        s_mov_b64 vcc, 0xffff
        v_cndmask_b32 {aXQW}, {vSINK}, {t0}, vcc
        s_lshl_b32 {sT0}, {sG}, 14
        s_lshl_b32 {sT2}, {sW}, 8
        s_add_u32 {sT0}, {sT0}, {sT2}
        s_add_u32 {sT0}, {sT0}, {OFF_AD:#x}
        v_lshl_add_u32 {t0}, {vRow}, 12, {sT0}
        v_lshl_add_u32 {aAGET}, {vN}, 4, {t0}
        s_lshl_b32 {sT3}, {sI}, 10
        s_add_u32 {sT0}, {sT0}, {sT3}
        v_lshl_add_u32 {aAPUB}, {vL}, 2, {sT0}
        s_lshl_b32 {sT0}, {sG}, 8
        s_add_u32 {sT0}, {sT0}, {OFF_AS:#x}
        v_lshl_add_u32 {aASGET}, {vN}, 4, {sT0}
        s_lshl_b32 {sT3}, {sI}, 4
        s_add_u32 {sT0}, {sT0}, {sT3}
        v_mov_b32 {t0}, {sT0}
        v_cmp_eq_u32 vcc, 192, v0
        v_lshrrev_b32 {t1}, 2, {vN}
        v_lshlrev_b32 {t1}, 7, {t1}
        v_cndmask_b32 {aASPUB}, {vOOB}, {t0}, vcc
        v_lshl_add_u32 {t1}, {vRow}, 5, {t1}
        v_and_b32 {t2}, 3, {vL}
        v_lshl_add_u32 {t1}, {t2}, 3, {t1}
        s_mul_i32 {sT0}, {sW}, 4608
        s_add_u32 {sT0}, {sT0}, {L_WQ}
        v_add_u32 {aTR}, {sT0}, {t1}''')
    if P['stamps']:
        a(f's_mov_b32 {sRC}, 0')
    if P['dump'] or P['stamps']:
        a(f's_lshl_b32 {sT0}, s2, 10\nv_lshl_add_u32 {aDM}, v0, 2, {sT0}')
    k0 = P['ka'] + P['kb']
    for j in range(P['ka'], k0):
        kvdma(j, False)
    a(f's_waitcnt lgkmcnt(0)\ns_mov_b32 {sT}, {sE}')
    set_tags()
    a(f's_mov_b32 {sTX}, {sT}\ns_mov_b32 {sTXh}, {sThi}')
    if P['hold']:
        a('s_mov_b32 s11, 0')
    rstamp(6)
    stamp('set-up A', 3)
    a(f's_cmp_lg_u32 {sW}, 3')
    a.br('s_cbranch_scc1', 'Q_ENTRY', NW3)
    a.wait('X')
    a(f'v_mov_b32 {t0}, 0')
    for q in range(8):
        a(f'v_dot2c_f32_bf16 {t0}, {G[q >> 2] + (q & 3)}, {ONE}')
    a(f'''v_lshlrev_b32 {XC}, 16, {G[2]}
        v_and_b32 {XC + 1}, {sHIM}, {G[2]}
        v_lshlrev_b32 {XC + 2}, 16, {G[2] + 1}
        v_and_b32 {XC + 3}, {sHIM}, {G[2] + 1}''')
    lines(flat(ror_steps('v_add_f32', [t0]) + bcast_steps('v_add_f32', [t0])))
    a(f'v_readlane_b32 {sT0}, {t0}, 63\nv_mov_b32 {t0}, {sT0}\nv_mul_f32 {vMP}, {sINV}, {t0}')
    for r in range(4):
        a(f'v_sub_f32 {XC + r}, {XC + r}, {vMP}')
    xq_write()
    a.jmp('Q_WAIT')

    a.label('W3_E')
    skip_l2('W3_E1')
    if P['probe']:
        a(f'v_xor_b32 {t2}, 0x2000, {aPB}\ns_waitcnt vmcnt(0)')
        a(f'buffer_load_dword {vDUM}, {aPB}, {srd(S_W)}, 0 offen sc1', dummy=1, tag='PB')
        a(f'buffer_load_dword {vDUM}, {t2}, {srd(S_W)}, 0 offen sc1', dummy=1)
    cq_loads()
    if P['probe']:
        a.wait('PB')
    lines(newmean_ops())
    set_tags()
    if P['probe']:
        a(f'''s_getreg_b32 {sT0}, hwreg(HW_REG_IB_STS, 0, 4)
            s_cmp_eq_u32 {sT0}, 5
            s_cselect_b32 {sT0}, 0, 0x2000
            v_xor_b32 {aXGET}, {sT0}, {aXGET}''')
        if P['stamps'] == 1:
            a(f's_add_u32 {sT0}, {sT0}, 1\nv_writelane_b32 {vTS}, {sT0}, 46')
    a('s_waitcnt vmcnt(0)')
    cq_reduce('CR')
    if P['xbar']:
        a('s_barrier')
    a.jmp('W3_E2')
    a.label('W3_E1')
    lines(newmean_ops())
    if P['xbar']:
        a('s_barrier')
    a(f's_cmp_lg_u32 {sG}, {sI}')
    a.br('s_cbranch_scc1', 'FINISH', lambda c: not c['final'])
    a.label('W3_E2')
    stamp('E poll', 3)
    xgather('E')
    dump(10, XC)
    skip_l2('W3_OUT')
    xq_write()
    a(f's_add_u32 {sSLOT}, {sSLOT}, 0x20000')
    setlayer2()
    a.label('Q_WAIT')
    so = stats_ops()
    lines(so[:9])
    a(f's_waitcnt lgkmcnt(0)\ns_barrier\nds_read_b64 {XQ.t(2)}, {aXQR}')
    lines(so[9:])
    pub('buffer_store_dwordx4', ST.t(4), aASPUB, '0')
    a.label('Q_JOIN')
    stamp('x ready', 3)
    skip_l2('Q_GO')
    a.wait('WQ')
    for j in range(9):
        a(f'ds_read_b64_tr_b16 {(WQ + 2 * j).t(2)}, {aTR} offset:{512 * j}', needs=('WQ',))
    a.label('Q_GO')
    a('s_waitcnt lgkmcnt(0)')
    for j in range(9):
        m4(ACC[j % 3], XQ.t(2), (WQ + 2 * j).t(2), j < 3, j)
    a(f'''v_pk_add_f32 {Y.t(2)}, {ACC[0].t(2)}, {ACC[1].t(2)}
        v_pk_add_f32 {Y.t(2)}, {Y.t(2)}, {ACC[2].t(2)}
        v_cvt_pk_bf16_f32 {t2}, {vTAB}, {Y}''')
    pub('buffer_store_dword', t2, aAPUB, '0')
    dump(0, Y)
    stamp('A pub')
    lines(resid_ops())
    skip_l2('GA_PRE')
    a(f'v_cvt_pk_bf16_f32 {vCQ}, {vTAB}, {Y + 1}')
    wave16k()
    for j in range(k0, 16):
        kvdma(j, False)
    for j in range(P['v0']):
        kvdma(j, True)
    a(f'''s_mul_i32 {sT0}, {sG}, {256 * 1152}
        s_mul_i32 {sT2}, {sI}, 72
        s_and_b32 {sT2}, {sT2}, 0xfffffff0
        s_add_u32 {sT0}, {sT0}, {sT2}''')
    mk_srd(S_WO, 12, sT0, 255 * 1152 + 80)
    a(f's_mul_i32 {sT0}, {sG}, {288 * 1152}\ns_add_u32 {sT0}, {sT0}, {sT2}')
    mk_srd(S_WD, 20, sT0, 287 * 1152 + 80)
    a(f's_mul_i32 {sT0}, {sI}, {36 * 9216}\ns_mul_i32 {sT2}, {sG}, 576\ns_add_u32 {sT0}, {sT0}, {sT2}')
    mk_srd(S_WG, 16, sT0, 35 * 9216 + 576)
    mk_srd(S_WU, 18, sT0, 35 * 9216 + 576)
    mk_srd(S_OUT, 22, None, 1152)
    a(f'''s_mov_b32 {sCQ}, {OFF_CQ - OFF_AD:#x}
        s_mov_b32 {sBD}, {OFF_BD - OFF_AD:#x}
        s_mov_b32 {sDS}, {OFF_DS - OFF_AS:#x}
        s_mov_b32 {sCG}, {OFF_CG - OFF_DD:#x}
        s_mov_b32 {sSLOT}, 0
        s_mov_b32 {sC}, 0x3e0293ee
        s_mov_b32 {sBUD}, 200000
        v_mov_b32 {vEPS}, 0x3727c5ac
        v_mov_b32 {XG + 2}, 0
        v_mov_b32 {XG + 3}, {sTX}
        v_mov_b32 {BST + 2}, 0
        v_mov_b32 {CSQ}, 0
        v_mov_b32 {t0}, 0xffff0000
        v_mov_b32 {t1}, 0x3f800000
        v_mov_b32 {t2}, 0x3f80''')

    def lanemask(ns):
        m = sum(1 << n for n in ns) * 0x10001
        a(f's_mov_b32 vcc_lo, {m:#x}\ns_mov_b32 vcc_hi, {m:#x}')
    for q in range(4):
        lanemask([4 * q])
        a(f'v_cndmask_b32 {MASK4 + q}, 0, {t0}, vcc\nv_cndmask_b32 {SEL4 + q}, 0, {t1}, vcc')
    for dst, lo_n, hi_n in ((SELX, 0, 1), (SELX + 1, 2, 3), (SELD, 0, 1), (SELD + 1, 8, None), (SELD + 2, 4, 5), (SELD + 3, 9, None)):
        lanemask([lo_n])
        a(f'v_cndmask_b32 {dst}, 0, {t2}, vcc')
        if hi_n is not None:
            lanemask([hi_n])
            a(f'v_cndmask_b32 {dst}, {dst}, {t1}, vcc')
    a(f'''v_mov_b32 {SELX + 2}, 0
        v_mov_b32 {SELX + 3}, 0
        v_mov_b32 {t1}, 0x03020706
        v_mov_b32 {t2}, 0x05040100
        s_mov_b32 vcc_lo, 0x55555555
        s_mov_b32 vcc_hi, 0x55555555
        v_cndmask_b32 {vSELH}, {t1}, {t2}, vcc
        v_and_b32 {t1}, 1, {vL}
        v_lshrrev_b32 {t0}, 2, {vL}
        v_lshlrev_b32 {t0}, 3, {t0}
        v_lshl_add_u32 {t0}, {t1}, 8, {t0}
        v_add_u32 {aQR}, {L_Q}, {t0}
        s_lshl_b32 {sT3}, {sI}, 4
        s_lshl_b32 {sT0}, {sG}, 9
        s_lshr_b32 {sT2}, {sW}, 1
        s_lshl_b32 {sT2}, {sT2}, 8
        s_add_u32 {sT0}, {sT0}, {sT2}
        s_add_u32 {sT0}, {sT0}, {OFF_BS:#x}
        v_lshl_add_u32 {t0}, {vRow}, 2, {vN}
        v_and_b32 {t0}, 15, {t0}
        v_lshl_add_u32 {aBSGET}, {t0}, 4, {sT0}
        s_add_u32 {sT0}, {sT0}, {sT3}
        v_mov_b32 {t0}, {sT0}
        v_and_b32 {t1}, 127, v0
        v_cmp_eq_u32 vcc, 0, {t1}
        s_lshl_b32 {sT0}, {sW}, 7
        s_add_u32 {sT0}, {sT0}, {L_Q}
        v_cndmask_b32 {aBSPUB}, {vOOB}, {t0}, vcc
        v_lshl_add_u32 {t0}, {vN}, 2, {vRow}
        v_lshl_add_u32 {aQW}, {t0}, 1, {sT0}
        s_lshl_b32 {sT0}, {sW}, 8
        s_add_u32 {sT0}, {sT0}, {L_PO}
        v_lshl_add_u32 {aPOW}, {vL}, 2, {sT0}
        s_lshl_b32 {sT0}, {sW}, 10
        s_add_u32 {sT0}, {sT0}, {L_PO}
        v_lshl_add_u32 {aPOR}, {vL}, 2, {sT0}
        s_lshl_b32 {sT0}, {sW}, 4
        s_add_u32 {sT0}, {sT0}, {L_PS}
        v_mov_b32 {t0}, {sT0}
        s_mov_b32 vcc_lo, 0
        s_mov_b32 vcc_hi, 0x80000000
        v_cndmask_b32 {aPSW}, {vSINK}, {t0}, vcc
        s_lshr_b32 {sT0}, {sW}, 1
        s_lshl_b32 {sT0}, {sT0}, 3
        s_add_u32 {sT0}, {sT0}, {L_PS}
        v_mov_b32 {aPSR}, {sT0}
        s_mov_b32 {sT0}, {L_O}
        v_lshl_add_u32 {aOR}, {vRow}, 4, {sT0}
        s_lshr_b32 {sT0}, {sI}, 1
        s_lshl_b32 {sT0}, {sT0}, 14
        s_and_b32 {sT2}, {sI}, 1
        s_lshl_b32 {sT2}, {sT2}, 12
        s_add_u32 {sT0}, {sT0}, {sT2}
        s_add_u32 {sT0}, {sT0}, {OFF_X:#x}
        s_lshr_b32 {sT2}, {sXCC}, 2
        s_and_b32 {sT2}, {sT2}, 1
        s_xor_b32 {sT2}, {sT2}, {1 if P['near'] == 1 else 0}
        s_lshl_b32 {sT2}, {sT2}, 13
        s_and_b32 {sT2}, {sT2}, {0x2000 if P['near'] else 0}
        s_add_u32 {sT2}, {sT2}, {sT0}
        v_min_u32 {t0}, 8, {vN}
        v_mul_u32_u24 {t1}, 43, {t0}
        v_lshrrev_b32 {t1}, 7, {t1}
        v_add_u32 {t0}, {t0}, {t1}
        v_lshl_add_u32 {t1}, {vRow}, 10, {sT2}
        v_lshl_add_u32 {aXGET}, {t0}, 4, {t1}
        s_lshl_b32 {sT3}, {sG}, 8
        s_add_u32 {sT2}, {sT2}, {sT3}
        s_add_u32 {sT2}, {sT2}, 0x80000
        v_mov_b32 {aPB}, {sT2}
        s_lshl_b32 {sT2}, {sG}, 8
        s_add_u32 {sT0}, {sT0}, {sT2}
        s_lshl_b32 {sT2}, {sW}, 6
        s_add_u32 {sT2}, {sT0}, {sT2}
        v_lshl_add_u32 {t0}, {vRow}, 4, {sT2}
        v_lshl_add_u32 {t0}, {vN}, 13, {t0}
        s_mov_b32 vcc_lo, {0x00030003 if P['near'] else 0x00010001}
        s_mov_b32 vcc_hi, {3 if P['near'] else 1}
        v_cndmask_b32 {aXPUB}, {vOOB}, {t0}, vcc''')
    nmisc = 0
    if P['prewrite']:
        a(f'''s_and_b32 {sT2}, {sW}, 1
            s_xor_b32 {sT2}, {sT2}, 1
            s_lshl_b32 {sT2}, {sT2}, 13
            s_add_u32 {sT2}, {sT2}, {sT0}
            v_lshl_add_u32 {t0}, {vRow}, 17, {sT2}
            v_lshl_add_u32 {t0}, {vN}, 4, {t0}
            v_cmp_le_u32 vcc, {128 if P['near'] else 192}, v0
            v_mov_b32 {G[5]}, 0
            v_mov_b32 {G[5] + 1}, 0
            v_mov_b32 {G[5] + 2}, 0
            v_mov_b32 {G[5] + 3}, 0
            v_cndmask_b32 {t0}, {vOOB}, {t0}, vcc
            buffer_store_dwordx4 {G[5].t(4)}, {t0}, {srd(S_W)}, 0 offen sc1''')
        if P['probe']:
            a(f'''s_mov_b64 vcc, 0xff
                s_mov_b32 {sT2}, 0x80000
                v_cndmask_b32 {t0}, {vOOB}, {t0}, vcc
                buffer_store_dwordx4 {G[5].t(4)}, {t0}, {srd(S_W)}, {sT2} offen sc1''')
        nmisc += 1
    a(f'''s_mul_i32 {sT0}, {sI}, 72
        v_lshl_add_u32 {t0}, {vN}, 3, {sT0}
        s_mov_b64 vcc, 0x1ff
        v_cndmask_b32 {aOUT}, {vOOB}, {t0}, vcc
        s_mul_i32 {sT0}, {sG}, {16 * 1536}
        s_add_u32 {sT0}, {sT0}, {OFF_DD:#x}
        s_mul_i32 {sT2}, {sI}, 1536
        s_lshl_b32 {sT3}, {sW}, 9
        s_add_u32 {sT2}, {sT2}, {sT3}
        s_add_u32 {sT2}, {sT2}, {sT0}
        v_lshrrev_b32 {t0}, 3, {vL}
        v_lshl_add_u32 {t0}, {t0}, 6, {sT2}
        v_and_b32 {t1}, 3, {vL}
        v_lshl_add_u32 {t0}, {t1}, 4, {t0}
        v_and_b32 {t1}, 4, {vL}
        v_cmp_gt_u32 vcc, 192, v0
        v_lshl_add_u32 {t0}, {t1}, 1, {t0}
        s_mul_i32 {sT2}, {sW}, 384
        v_cndmask_b32 {aDPUB}, {vOOB}, {t0}, vcc
        s_add_u32 {sT0}, {sT0}, {sT2}
        v_mul_u32_u24 {t0}, 6144, {vRow}
        v_add_u32 {t0}, {sT0}, {t0}
        v_lshl_add_u32 {aDG1}, {vN}, 4, {t0}
        v_add_u32 {aDG1b}, 3072, {aDG1}
        v_lshrrev_b32 {t1}, 3, {vN}
        v_mul_u32_u24 {t1}, 3072, {t1}
        v_and_b32 {t2}, 7, {vN}
        v_lshl_add_u32 {t1}, {t2}, 4, {t1}
        v_add_u32 {t0}, {t0}, {t1}
        v_add_u32 {aDG2}, 256, {t0}
        s_mul_i32 {sT0}, {sW}, 24''')
    for dst, base, src in ((aHW1, 0, vN), (aHW2, 16, t2)):
        a(f'''s_add_u32 {sT2}, {sT0}, {base}
            v_add_u32 {t0}, {sT2}, {src}
            v_lshrrev_b32 {t1}, 5, {t0}
            v_mul_u32_u24 {t1}, 96, {t1}
            v_and_b32 {t0}, 31, {t0}
            v_and_b32 {t3}, 28, {t0}
            v_add_u32 {t3}, {t3}, {t0}
            v_lshl_add_u32 {t3}, {vRow}, 2, {t3}
            v_add_u32 {t0}, 64, {t0}
            s_mov_b32 vcc_lo, 0
            s_mov_b32 vcc_hi, 0xffff
            v_cndmask_b32 {t0}, {t3}, {t0}, vcc
            v_add_u32 {t0}, {t0}, {t1}
            v_lshlrev_b32 {t0}, 1, {t0}
            v_add_u32 {t0}, {L_H}, {t0}
            s_mov_b32 vcc_hi, 0xffff0000
            v_cndmask_b32 {dst}, {t0}, {vSINK}, vcc''')
    if P['pretouch']:
        a(f'''s_lshl_b32 {sT0}, {sG}, 4
            s_add_u32 {sT0}, {sT0}, {sI}
            s_mul_i32 {sT2}, {sT0}, 1536
            s_add_u32 {sT2}, {sT2}, {OFF_DD - 16 * 128}
            v_lshl_add_u32 {t0}, {vL}, 7, {sT2}
            v_add_u32 {t1}, {OFF_CG - OFF_DD - 12 * 128}, {t0}
            v_cmp_gt_u32 vcc, 28, {vL}
            s_lshl_b32 {sT2}, {sT0}, 10
            s_add_u32 {sT2}, {sT2}, {OFF_BD}
            v_cndmask_b32 {t0}, {t1}, {t0}, vcc
            v_lshl_add_u32 {t1}, {vL}, 7, {sT2}
            s_mov_b64 vcc, 0xff
            v_cndmask_b32 {t0}, {t0}, {t1}, vcc
            v_add_u32 {t1}, {(OFF_CQ - OFF_BD - 1024) & 0xffffffff:#x}, {t1}
            s_mov_b64 vcc, 0xff00
            v_cndmask_b32 {t0}, {t0}, {t1}, vcc
            s_lshl_b32 {sT2}, {sG}, 8
            s_add_u32 {sT2}, {sT2}, {OFF_DS - 40 * 32}
            v_lshl_add_u32 {t1}, {vL}, 5, {sT2}
            s_mov_b32 vcc_lo, 0
            s_mov_b32 vcc_hi, 0xff00
            v_cndmask_b32 {t0}, {t0}, {t1}, vcc
            s_mov_b32 vcc_hi, 0xffff0000
            v_cndmask_b32 {t0}, {t0}, {aBSGET}, vcc
            v_cmp_eq_u32 vcc, {sW}, {vRow}
            s_or_b32 vcc_hi, vcc_hi, 0x01010000
            v_cndmask_b32 {t0}, {vOOB}, {t0}, vcc''')
        a(f'buffer_load_dword {vDUM}, {t0}, {srd(S_W)}, 0 offen sc1', dummy=1)
        nmisc += 1
    a(f's_mul_i32 {sT0}, {sW}, {9 * 9216}')
    for j in range(2):
        a(f'''v_add_u32 {t0}, {54 * j}, {vL}
            v_mul_u32_u24 {t1}, 58255, {t0}
            v_lshrrev_b32 {t1}, 21, {t1}
            v_mul_u32_u24 {t1}, {9216 - 576}, {t1}
            v_lshl_add_u32 {t1}, {t0}, 4, {t1}
            v_add_u32 {aGU[j]}, {sT0}, {t1}''')
    for j in range(5):
        a(f'''v_add_u32 {t0}, {64 * j}, {vL}
            v_mul_u32_u24 {t1}, 52429, {t0}
            v_lshrrev_b32 {t1}, 18, {t1}
            v_mul_u32_u24 {t1}, 1072, {t1}
            v_lshl_add_u32 {aTL[j]}, {t0}, 4, {t1}''')
    a(f'''v_add_u32 {t0}, 1280, v0
        v_mul_u32_u24 {t1}, 52429, {t0}
        v_lshrrev_b32 {t1}, 18, {t1}
        v_mul_u32_u24 {t1}, 1072, {t1}
        v_lshl_add_u32 {aTL[5]}, {t0}, 4, {t1}''')
    if P['tlbpf'] >= 2:
        a(f'v_mul_u32_u24 {t0}, {287 * 1152}, {vRow}')
        a(f'buffer_load_dword {vDUM}, {t0}, {srd(S_WD)}, 0 offen nt', dummy=1)
        a(f'v_mov_b32 {t0}, 0')
        a(f'buffer_load_dword {vDUM}, {t0}, {srd(S_OUT)}, 0 offen nt', dummy=1)
    stamp('set-up B', 3)
    a(f'''v_lshlrev_b32 {t0}, 8, {vL}
        v_lshl_add_u32 {t0}, {vN}, 4, {t0}
        v_add_u32 {aTR}, {sT1}, {t0}''')
    a.wait('K')
    for p in range(16):
        a(f'v_xor_b32 {(t0, t1)[p & 1]}, {16 * p}, {aTR}')
        a(f'ds_read_b128 {ar(A_K + 4 * p, 4)}, {(t0, t1)[p & 1]}', needs=('K',))
    a('s_waitcnt lgkmcnt(0)\ns_barrier')
    rstamp(4)
    a_loads()
    gu_batch(0, 12)
    a.wait('A')
    a_reduce(False)
    a.jmp('GA_CHECK')
    a.label('GA_PRE')
    if P['ackwait']:
        a('s_waitcnt vmcnt(0)')
    a.label('GA_ISSUE')
    a_loads()
    a('s_waitcnt vmcnt(4)')
    lo = a_reduce(True)
    a.label('GA_CHECK')
    retry('A', 'GA_ISSUE')
    lines(lo[6])
    a(f'''v_fma_f32 {t0}, -{vDM}, {CSQ}, {ACC[0]}
        v_mul_f32 {t0}, {t0}, {vRS}
        v_cvt_pk_bf16_f32 {t1}, {t0}, {t0}
        ds_write_b16 {aQW}, {t1}''')
    dump(1, t0)
    stamp('q sum', 3)
    a(f'''s_waitcnt lgkmcnt(0)
        s_barrier
        ds_read_b64 {QA.t(2)}, {aQR}
        ds_read_b64 {(QA + 2).t(2)}, {aQR} offset:128''')
    stamp('q ready')
    lines(newmean_ops())
    skip_l2('S_GO')
    a(f'v_cmp_ne_u32 vcc, {sXCC}, {G[4] + 2}\ns_cmp_eq_u64 vcc, 0')
    if P['forceslow']:
        a(f's_cmp_eq_u32 {sW}, 77')
    a(f's_cselect_b32 s{S_F + 2}, {WS_USED:#x}, 0\ns_cselect_b32 s{S_S + 2}, 0, {WS_USED:#x}')
    pub('buffer_store_dword', vCQ, aAPUB, sCQ)
    if P['po']:
        prefetch(12, 18432)
    if P['pd'] == 1:
        prefetch(20, 20736)
    for j in range(P['v0'], P['v2']):
        kvdma(j, True)
    a.label('S_GO')
    a('s_waitcnt lgkmcnt(0)')
    for j in range(32):
        m4(ACC[j % 3], (QA + 2 * (j >> 4)).t(2), ar(A_K + 2 * j, 2), j < 3, j & 15)
    a(f'''v_pk_add_f32 {Y.t(2)}, {ACC[2].t(2)}, {ACC[0].t(2)}
        v_pk_add_f32 {Y.t(2)}, {Y.t(2)}, {ACC[1].t(2)}
        v_mul_f32 {Y}, {sC}, {Y}
        v_mul_f32 {Y + 1}, {sC}, {Y + 1}''')
    dump(2, Y)
    stamp('scores', 3)
    lines(flat(ror_steps('v_max_f32', [PSV, PSV + 2], [Y, Y + 1]) + bcast_steps('v_max_f32', [PSV, PSV + 2])))
    a(f'''v_ceil_f32 {PSV}, {PSV}
        v_ceil_f32 {PSV + 2}, {PSV + 2}
        v_readlane_b32 {sR0}, {PSV}, 63
        v_readlane_b32 {sR1}, {PSV + 2}, 63
        v_subrev_f32 {Y}, {sR0}, {Y}
        v_subrev_f32 {Y + 1}, {sR1}, {Y + 1}
        v_exp_f32 {Y}, {Y}
        v_exp_f32 {Y + 1}, {Y + 1}
        v_cvt_pk_bf16_f32 {t0}, {Y}, {Y + 1}
        v_mov_b32_dpp {t1}, {t0} quad_perm:[1,0,3,2]{DPP}
        v_perm_b32 {PA}, {t1}, {t0}, {vSELH}
        v_mov_b32_dpp {PA + 1}, {PA} quad_perm:[2,3,2,3]{DPP}''')
    stamp('p ready')
    skip_l2('PV_GO')
    a.wait('GU')
    a('s_barrier', needs=('GU',))
    w3_to('NOGU')
    a(f'''v_lshrrev_b32 {t0}, 2, {vN}
        v_mul_u32_u24 {t0}, 576, {t0}
        s_mul_i32 {sT0}, {sW}, 192
        v_add_u32 {t0}, {sT0}, {t0}
        v_and_b32 {t1}, 3, {vL}
        v_lshl_add_u32 {t2}, {vRow}, 2, {t1}
        v_lshl_add_u32 {aTR}, {t2}, 3, {t0}
        v_lshrrev_b32 {t2}, 1, {t2}
        v_lshl_add_u32 {t0}, {t2}, 3, {t0}
        v_and_b32 {t1}, 1, {vL}
        v_mul_u32_u24 {t1}, 20736, {t1}
        v_add_u32 {aTR2}, {t0}, {t1}''')
    for j in range(9):
        a(f'ds_read_b64_tr_b16 {ar(A_GU + 2 * j, 2)}, {aTR} offset:{2304 * j}')
        a(f'ds_read_b64_tr_b16 {ar(A_GU + 18 + 2 * j, 2)}, {aTR} offset:{20736 + 2304 * j}')
        a(f'ds_read_b64_tr_b16 {ar(A_GU + 36 + 2 * j, 2)}, {aTR2} offset:{128 + 2304 * j}')
    a('s_waitcnt lgkmcnt(0)')
    for j in range(9):
        for b in range(3):
            m4(ACC[b], ONE.t(2), ar(A_GU + 18 * b + 2 * j, 2), j == 0, 0)
    a(f'v_cvt_pk_bf16_f32 {PK2}, {ACC[0]}, {ACC[1]}\nv_cvt_pk_bf16_f32 {PK2 + 1}, {ACC[2]}, {vTD}')
    a.label('NOGU')
    pub('buffer_store_dwordx2', PK2.t(2), aDPUB, sCG)
    a(f'''v_lshrrev_b32 {t0}, 2, {vN}
        v_lshlrev_b32 {t1}, 2, {t0}
        v_bfe_u32 {t2}, {vL}, 1, 1
        v_lshl_add_u32 {t2}, {vRow}, 1, {t2}
        v_xor_b32 {t2}, {t2}, {t1}
        v_lshlrev_b32 {t0}, 8, {t0}
        v_lshl_add_u32 {t0}, {t2}, 4, {t0}
        v_and_b32 {t1}, 1, {vL}
        v_lshl_add_u32 {t0}, {t1}, 3, {t0}
        s_add_u32 {sT0}, {sT1}, {L_V}
        v_add_u32 {aTR}, {sT0}, {t0}
        v_xor_b32 {aTR2}, 128, {aTR}''')
    for grp in range(4):
        if grp == P['wo_at']:
            wave16k()
            for j in range(P['v2'], 16):
                kvdma(j, True)
            tall_base()
            for k in range(5):
                tall_dma(S_WO, L_WO, k, 'WO')
            if P['pd'] == 2:
                prefetch(20, 20736)
        a.wait('V%d' % grp)
        for b in range(4 * grp, 4 * grp + 4):
            for eta in range(2):
                a(f'ds_read_b64_tr_b16 {ar(A_V + 4 * b + 2 * eta, 2)}, {aTR2 if eta else aTR} offset:{1024 * b}',
                  needs=('V%d' % grp,))
    a('s_waitcnt lgkmcnt(0)')
    stamp('V ready', 3)
    rstamp(3)
    a.label('PV_GO')
    ls = flat(ror_steps('v_add_f32', [PSV + 1, PSV + 3], [Y, Y + 1]) + bcast_steps('v_add_f32', [PSV + 1, PSV + 3]))
    for b in range(16):
        for eta in range(2):
            m4(ACC[2 * (b & 1) + eta], PA.t(2), ar(A_V + 4 * b + 2 * eta, 2), b < 2, b)
            if ls:
                a(ls.pop(0))
    a(f'''ds_write_b128 {aPSW}, {PSV.t(4)}
        v_pk_add_f32 {PO.t(2)}, {ACC[0].t(2)}, {ACC[2].t(2)}
        v_pk_add_f32 {(PO + 2).t(2)}, {ACC[1].t(2)}, {ACC[3].t(2)}
        ds_write2st64_b32 {aPOW}, {PO}, {PO + 1} offset0:0 offset1:8
        ds_write2st64_b32 {aPOW}, {PO + 2}, {PO + 3} offset0:4 offset1:12''')
    stamp('PV done', 3)
    a(f'''s_waitcnt lgkmcnt(0)
        s_barrier
        ds_read2_b64 {PS.t(4)}, {aPSR} offset0:0 offset1:2
        ds_read2_b64 {(PS + 4).t(4)}, {aPSR} offset0:4 offset1:6
        ds_read2st64_b32 {PO.t(2)}, {aPOR} offset0:0 offset1:1
        ds_read2st64_b32 {(PO + 2).t(2)}, {aPOR} offset0:2 offset1:3
        s_waitcnt lgkmcnt(2)
        v_max3_f32 {BST}, {PS}, {PS + 2}, {PS + 4}
        v_max_f32 {BST}, {BST}, {PS + 6}''')
    lines([f'v_sub_f32 {PS + 2 * q}, {PS + 2 * q}, {BST}' for q in range(4)])
    lines([f'v_exp_f32 {PS + 2 * q}, {PS + 2 * q}' for q in range(4)])
    a(f's_waitcnt lgkmcnt(0)\nv_mul_f32 {t0}, {PS}, {PO}')
    lines([f'v_fmac_f32 {t0}, {PS + 2 * q}, {PO + q}' for q in range(1, 4)])
    a(f'v_cvt_pk_bf16_f32 {t2}, {vTAB}, {t0}')
    pub('buffer_store_dword', t2, aAPUB, sBD)
    a(f'v_mul_f32 {BST + 1}, {PS}, {PS + 1}')
    lines([f'v_fmac_f32 {BST + 1}, {PS + 2 * q}, {PS + 2 * q + 1}' for q in range(1, 4)])
    pub('buffer_store_dwordx4', BST.t(4), aBSPUB, '0')
    dump(3, t0)
    stamp('B pub')
    rstamp(0)
    skip_l2('GB_PRE')
    tall_addr(L_WO)
    a.wait('WO')
    stamp('wo own', 3)
    a('s_barrier', needs=('WO',))
    tall_tr(8, A_WO)
    a.label('GB_PRE')
    if P['ackwait']:
        a('s_waitcnt vmcnt(0)')
    a.label('GB_ISSUE')
    b_loads()
    a('s_waitcnt vmcnt(4)')
    b_reduce(True)
    a.label('GB_CHECK')
    retry('B', 'GB_ISSUE')
    a(f'''v_mul_f32 {t0}, {ACC[0]}, {vE1}
        v_cvt_pk_bf16_f32 {t1}, {t0}, {t0}
        ds_write_b16 {aQW}, {t1} offset:{L_O - L_Q}''')
    if P['pd'] == 4:
        skip_l2('NOPD')
        prefetch(20, 20736)
        a.label('NOPD')
    dump(4, t0)
    stamp('o sum', 3)
    a('s_waitcnt lgkmcnt(0)\ns_barrier')
    stamp('o ready')
    w3_to('W3_C')
    tall_stage(8, A_WO, 0)
    dump(5, ACC[0])
    stamp('C pub')
    rstamp(2)
    skip_l2('C_WAIT')
    if P['xbar'] and not P['xack1']:
        a('s_barrier')
    cg_loads()
    if P['wd_at'] == 1:
        wd_pieces()
    if P['xbar'] and P['xack1']:
        a.wait('XP')
        a('s_barrier')
    a.wait('CG')
    cg_reduce('CG')
    if P['dnl1']:
        tall_addr(L_WD)
    a.jmp('C_BAR')
    a.label('C_WAIT')
    if P['xbar']:
        a.wait('XP')
        a('s_barrier')
    a.label('C_BAR')
    a(f's_barrier\nds_read_b64 {XQ.t(2)}, {aXQR}')
    if P['wd_at'] == 2:
        skip_l2('G_GO')
        wd_pieces()
        a.label('G_GO')
    a(f's_add_u32 {sSLOT}, {sSLOT}, 0x20000\ns_waitcnt lgkmcnt(0)')
    for j in range(9):
        for b in range(3):
            m4(ACC[b], XQ.t(2), ar(A_GU + 18 * b + 2 * j, 2), j == 0, j)
    a(f'v_cvt_pk_bf16_f32 {PK2}, {ACC[0]}, {ACC[1]}\nv_cvt_pk_bf16_f32 {PK2 + 1}, {ACC[2]}, {vTD}')
    pub('buffer_store_dwordx2', PK2.t(2), aDPUB, '0')
    dump(6, ACC[0])
    stamp('D pub')
    if not P['dnl1']:
        skip_l2('GD_ACK')
    a.label('GD_L1')
    if not P['dnl1']:
        tall_addr(L_WD)
        a('s_waitcnt vmcnt(0)')
        stamp('wd own', 3)
        a('s_barrier', needs=('WD',))
        stamp('wd all', 3)
        tall_tr(9, A_WD)
    a.label('GD_ACK')
    if P['ackwait'] and not P['dnl1']:
        a('s_waitcnt vmcnt(0)')
    elif P['ackwait']:
        skip_l1('GD_ISSUE')
        a('s_waitcnt vmcnt(0)')
    a.label('GD_ISSUE')
    d_loads()
    a.label('GD_WAIT')
    lo = ln_ops(G[6])
    a(f's_waitcnt vmcnt(6)\nv_cmp_ne_u32 {sP}, {sT}, {G[6] + 3}')
    lines(lo[0])
    a('s_waitcnt vmcnt(5)')
    m16(ACC[1], SELD.t(4), G[4].t(4), '0')
    lines(lo[1])
    a('s_waitcnt vmcnt(4)')
    m16(ACC[1], SELD.t(4), G[5].t(4), ACC[1].t(4))
    chk_d(G[4], G[5], True)
    lines(lo[2])
    a('s_waitcnt vmcnt(3)')
    m16(ACC[0], SELD.t(4), G[0].t(4), '0')
    lines(lo[3])
    a('s_waitcnt vmcnt(2)')
    m16(ACC[0], SELD.t(4), G[1].t(4), ACC[0].t(4))
    chk_d(G[0], G[1], False)
    lines(lo[4] + lo[5] + lo[6])
    a('s_waitcnt vmcnt(1)')
    m16(ACC[0], SELD.t(4), G[2].t(4), ACC[0].t(4))
    a(f'''v_add_f32_dpp {t4}, {ACC[1]}, {ACC[1]} row_ror:8{DPP}
        v_add_f32_dpp {t5}, {ACC[1] + 1}, {ACC[1] + 1} row_ror:8{DPP}
        v_mul_f32 {vRS}, {vRS}, {vRS}
        s_waitcnt vmcnt(0)''')
    m16(ACC[0], SELD.t(4), G[3].t(4), ACC[0].t(4))
    chk_d(G[2], G[3], False)
    a(f'''v_cmp_lt_u32 vcc, 0xffff, {vE2}
        v_fma_f32 {t4}, -{vDM}, {CSG + 2}, {t4}
        v_fma_f32 {t5}, -{vDM}, {CSG + 3}, {t5}
        s_or_b64 vcc, vcc, {sP}''')
    retry('D', 'GD_ISSUE')
    a(f'''v_mul_f32 {t4}, {t4}, {vRS}
        v_mul_f32 {t4}, {t4}, {t5}
        v_fma_f32 {t0}, -{vDM}, {CSG}, {ACC[0]}
        v_fma_f32 {t1}, -{vDM}, {CSG + 1}, {ACC[0] + 1}
        v_mul_f32 {t0}, {t0}, {vRS}
        v_mul_f32 {t0}, {t0}, {t1}
        v_cvt_pk_bf16_f32 {t1}, {t0}, {t4}
        ds_write_b16 {aHW1}, {t1}
        ds_write_b16_d16_hi {aHW2}, {t1}''')
    dump(7, t0)
    stamp('h sum', 3)
    a('s_waitcnt lgkmcnt(0)')
    a('s_barrier', needs=('WD',))
    stamp('h ready')
    w3_to('W3_E')
    if P['dnl1']:
        skip_l1('DN_FIRST')
    tall_stage(9, A_WD, L_H - L_O, 'DN_JOIN')
    dump(8, ACC[0])
    stamp('E pub')
    rstamp(1)
    skip_l2('E_LAST')
    cq_loads()
    if P['xbar']:
        a('s_waitcnt vmcnt(4)\ns_barrier')
    a('s_waitcnt vmcnt(0)')
    cq_reduce('CQ')
    a(f's_add_u32 {sSLOT}, {sSLOT}, 0x20000')
    set_tags()
    setlayer2()
    a.label('Q_ENTRY')
    a(f's_barrier\nds_read_b64 {XQ.t(2)}, {aXQR}')
    a.jmp('Q_JOIN')
    a.label('E_LAST')
    if P['xbar']:
        a('s_waitcnt vmcnt(0)\ns_barrier')
    a.jmp('FINISH')

    a.label('W3_C')
    skip_l2('W3_C2')
    cg_loads()
    if P['pd'] == 3:
        a(f's_lshl_b32 {sT0}, {sG}, 4\ns_add_u32 {sT0}, {sT0}, {sI}\ns_mul_i32 {sT0}, {sT0}, 20736')
        mk_srd(S_X, 20, sT0, 20736)
        if P['pform'] == 0:
            a(f'v_lshlrev_b32 {t0}, 6, {vL}')
            for k in range(6):
                a(f's_mov_b32 {sT0}, {4096 * k}')
                a(f'buffer_load_dword {vDUM}, {t0}, {srd(S_X)}, {sT0} offen', dummy=1)
        elif P['pform'] == 1:
            a(f'v_lshlrev_b32 {t0}, 7, {vL}')
            for k in range(3):
                a(f's_mov_b32 {sT0}, {8192 * k}')
                a(f'buffer_load_dword {vDUM}, {t0}, {srd(S_X)}, {sT0} offen' + (' nt' if P['pnt'] else ''), dummy=1)
        else:
            a(f'v_lshlrev_b32 {t0}, 4, {vL}')
            for k in range(21):
                a(f's_mov_b32 m0, {L_K + 1024 * k}\ns_mov_b32 {sT0}, {1024 * k}')
                a(f'buffer_load_dwordx4 {t0}, {srd(S_X)}, {sT0} offen lds')
    if P['wd_at'] == 1:
        wd_pieces()
    a.wait('CG')
    stamp('cg w3', 3)
    cg_reduce('CH')
    a.label('W3_C2')
    if P['xbar']:
        a('s_barrier')
    stamp('C poll', 3)
    xgather('C')
    xq_write()
    so = stats_ops()
    lines(so[:9])
    a('s_waitcnt lgkmcnt(0)')
    a('s_barrier')
    stamp('x1 ready')
    lines(so[9:])
    pub('buffer_store_dwordx4', ST.t(4), aASPUB, sDS)
    a(f's_add_u32 {sSLOT}, {sSLOT}, 0x20000')
    dump(9, XC)
    lines(resid_ops())
    skip_l2('W3_EPOCH')
    if P['wd_at'] == 2:
        wd_pieces()
    a.jmp('GD_L1')
    a.label('W3_EPOCH')
    a('s_cmp_lg_u32 s2, 0')
    a.br('s_cbranch_scc1', 'GD_ACK', lambda c: not c['final'])
    a(f'''v_mov_b32 {t0}, 0
        s_mov_b64 exec, 1
        buffer_store_dword {ST + 3}, {t0}, {srd(S_W)}, 0 offen
        s_mov_b64 exec, -1''')
    a.jmp('GD_ACK')

    if P['dnl1']:
        a.label('DN_FIRST')
        tall_first(9, A_WD, L_H - L_O)
        a.jmp('DN_JOIN')
    a.label('W3_OUT')
    lines([f'v_add_f32 {XR + r}, {XC + r}, {vMP}' for r in range(4)])
    a(f'''v_cvt_pk_bf16_f32 {PK2}, {XR}, {XR + 1}
        v_cvt_pk_bf16_f32 {PK2 + 1}, {XR + 2}, {XR + 3}
        buffer_store_dwordx2 {PK2.t(2)}, {aOUT}, {srd(S_OUT)}, 0 offen''')
    a.label('FINISH')
    if P['hold']:
        rstamp(5)
        a(f's_mul_i32 s11, s11, 10\ns_add_u32 s11, s11, {P["hold"]}')
        a.label('HOLD')
        a(f's_memrealtime {sTS}\ns_waitcnt lgkmcnt(0)\ns_sub_u32 {sT0}, {sTSlo}, s3\ns_cmp_lt_u32 {sT0}, s11')
        a.br('s_cbranch_scc1', 'HOLD', lambda c: False)
    if P['stamps']:
        stamp('end', 1)
        a(f'''s_memrealtime {sTS}
            s_waitcnt lgkmcnt(0)
            v_writelane_b32 {vTS}, {sTSlo}, 31
            v_writelane_b32 {vTS}, {sRC}, 62
            s_mov_b32 {sT3}, {OFF_DBG:#x}
            buffer_store_dword {vTS}, {aDM}, {srd(S_W)}, {sT3} offen''')
    a.label('END')
    a('s_endpgm')
    for tag, issue, reissue in retry_blocks:
        a.label('RETRY_' + tag)
        if P['stamps'] >= 2 and len(tag) == 1:
            a(f's_add_u32 {sRC}, {sRC}, {1 << (6 * "ABCDE".index(tag))}')
        a(f's_sub_u32 {sBUD}, {sBUD}, 1')
        if reissue:
            a.br('s_cbranch_scc1', 'GIVEUP_' + tag, lambda c: False)
            reissue()
            a.jmp(issue)
            a.label('GIVEUP_' + tag)
        else:
            a.br('s_cbranch_scc0', issue, lambda c: True)
        a(f's_mov_b32 {sBUD}, 0')
        a.jmp('CONT_' + tag)
    a.label('CODE_END')

    ctxs = []
    for w in (0, 3):
        for fin in (True, False):
            for rt in (False, True):
                ctxs.append(lambda w=w, fin=fin, rt=rt: dict(layer=0, wave=w, final=fin, retry=rt,
                                                              name='w%d fin%d retry%d' % (w, fin, rt)))
    a.resolve_waits(ctxs)
    a.fix_hazards(ctxs)
    errs = a.check_waits(ctxs)
    return a, errs, v.n, names


HEADER = '''; Persistent decode kernel: 256 workgroups (one per CU) keep K, V and all weights on chip for both layers.
; @launch grid=(256,1,1) block=(256,1,1) lds=%d
.amdgcn_target "amdgcn-amd-amdhsa--gfx950"
.text
.globl %s
.p2align 8
.type %s,@function
%s:
'''
FOOTER = '''.section .rodata,"a"
.p2align 6
.amdhsa_kernel %s
  .amdhsa_next_free_vgpr 512
  .amdhsa_next_free_sgpr 102
  .amdhsa_accum_offset 256
  .amdhsa_group_segment_fixed_size 0
  .amdhsa_kernarg_size 96
  .amdhsa_user_sgpr_count 2
  .amdhsa_user_sgpr_kernarg_segment_ptr 1
  .amdhsa_system_sgpr_workgroup_id_x 1
.end_amdhsa_kernel
'''


def render(**kw):
    a, errs, nv, names = build(**kw)
    txt = HEADER % (LDS_BYTES, KNAME, KNAME, KNAME) + a.text() + FOOTER % KNAME
    if names:
        txt = '; stamps: ' + ','.join(names) + '\n' + txt
    return txt, a, errs, nv, names


if __name__ == '__main__':
    out = sys.argv[1]
    kw = {}
    for s in sys.argv[2:]:
        k, x = s.split('=')
        kw[k] = int(x)
    txt, a, errs, nv, names = render(**kw)
    for e in sorted(set(errs)):
        print('WAIT ERROR', e)
    open(out, 'w').write(txt)
    print('vgprs', nv, 'lds', LDS_BYTES, 'pads', sum(p for p, _ in a.pads()))
    if errs:
        sys.exit(1)
```

```python
import sys
from asmlib import Asm

KNAME = 'interleave_layers__sliding_block_cached__glu_gated_bilinear__decode_kernel'

DEFAULTS = dict(
    ka=5,
    kb=5,
    v0=4,
    tnt=1,
    codepf=2,
    near=1,
    pv2dup=0, stfirst=1, oolmask=15, outinl=0, qall=0, x4=0, only='',
    pvsplit=3,
    stamps=0, dump=0, forceslow=0, amp=-1, hold=0,
)

OFF_AD, OFF_CQ, OFF_BD = 0x1000, 0x41000, 0x81000
OFF_DD, OFF_CG = 0xC1000, 0x121000
OFF_AS, OFF_DS, OFF_BS = 0x181000, 0x182000, 0x183000
OFF_X = 0x200000
WS_USED = 0x2A0000
OFF_DBG = 0x300000
WS_SRD = 0x1000000
OOB = 0x80000000
L_K, L_V = 0, 65536
L_GU, L_WD = 0, 65536
L_X = 131072
L_ONE = L_X + 128
L_ZERO = L_X + 144
L_Q = L_X + 192
L_O = L_Q + 512
L_H = L_O + 512
L_PS = L_H + 640
L_DUM = L_PS + 64
L_PO = (L_DUM + 1024 + 255) // 256 * 256
L_WQ = L_PO + 4096
L_WO = L_WQ
LDS_BYTES = L_WO + 20480 + 256
assert 81920 < LDS_BYTES <= 163840

S_K, S_V, S_WQ, S_WO, S_WG, S_WU, S_WD, S_X, S_OUT, S_W, S_F, S_S = range(28, 76, 4)
(sW, sG, sI, sROT, sT, sThi, sTsh, sLAY, sBUD, sXCC, sCQ, sBD, sDS, sCG, sSLOT,
 sR0, sR1, sT0, sT1, sT2, sT3, sE) = ['s%d' % n for n in range(76, 98)]
sM9, sP = 's[98:99]', 's[100:101]'
sQ = ['s[16:17]', 's[18:19]', 's[22:23]', 's[24:25]']
sFF, sDRY = 's15', 's12'
sC, sINV, sHIM, sRC, sTS, sTSlo, sTX, sTXh = 's4', 's5', 's6', 's7', 's[8:9]', 's8', 's10', 's14'
A_K, A_V, A_GU, A_WO, A_WD = 0, 64, 128, 184, 216
DPP = ' row_mask:0xf bank_mask:0xf'


def srd(b):
    return 's[%d:%d]' % (b, b + 3)


class R(int):
    def __str__(self):
        return 'v%d' % int(self)
    __format__ = lambda self, spec: str(self)

    def __add__(self, o):
        return R(int(self) + o)

    def t(self, k):
        return 'v[%d:%d]' % (int(self), int(self) + k - 1)


def ar(b, k):
    return 'a[%d:%d]' % (b, b + k - 1)


class V:
    def __init__(self):
        self.n = 1

    def __call__(self, k=1, al=1):
        if k > 1:
            al = max(al, 2)
        self.n = (self.n + al - 1) // al * al
        r = self.n
        self.n += k
        assert self.n <= 256
        return R(r)


def build(**kw):
    P = dict(DEFAULTS)
    for k in kw:
        assert k in P, k
    P.update(kw)
    P.update({'pretouch': 1, 'prewrite': 1, 'tlbpf': 0, 'ackwait': 1, 'xbar': 1, 'xdelay': 0, 'v2': 16, 'wo_at': 0, 'po': 0, 'pd': 3, 'wd_at': 2, 'pnt': 0, 'probe': 1, 'xack1': 0, 'pform': 1, 'dnl1': 0, 'dbg_fast0': 0, 'early': 1, 'prestore': 0, 'adelay': 0, 'dbar': 1, 'ddelay': 0, 'sel': 0, 'dry': 0})
    a = Asm()
    v = V()
    L1 = lambda c: c['layer'] == 0
    L2 = lambda c: c['layer'] == 1
    W3 = lambda c: c['wave'] == 3
    NW3 = lambda c: c['wave'] != 3

    vL, vRow, vN = v(), v(), v()
    t0, t1, t2, t3, t4, t5, vSINK, vOOB = [v() for _ in range(8)]
    (aXQR, aAPUB, aAGET, aASGET, aASPUB, aBSGET, aBSPUB, aQW, aQR, aPOW, aPOR, aPSW, aPSR, aOR, aXPUB,
     aXGET, aXQW, aDPUB, aDG1, aDG1b, aDG2, aHW1, aHW2, aOUT) = [v() for _ in range(24)]
    SEL4, MASK4, SELX, SELD = v(4, 4), v(4, 4), v(4, 4), v(4, 4)
    vSELH, vTAB, vTD, vEPS, vMP, t6 = v(), v(), v(), v(), v(), v()
    XG, ST, BST, PSV = v(4, 4), v(4, 4), v(4, 4), v(4, 4)
    vTAX, vIDX, aOW, aOD, vC1 = v(), v(), v(), v(), v()
    WQ = v(18, 2)
    XQ, QA, PA, ONE = v(2), v(4, 2), v(2), v(2)
    ACC = [v(4, 4) for _ in range(4)]
    G = [v(4, 4) for _ in range(7)]
    OP = v(24, 4)
    G2 = [OP + 4 * q for q in range(6)]
    AW = [OP + 4 * q for q in range(4)]
    XC, XR, CI = v(4, 4), v(4, 4), v(4, 4)
    CSQ, CSG = v(), v(4, 2)
    Y, PK2 = v(2), v(2)
    PO, PS = v(4, 2), v(8, 4)
    vDM, vRS, vE0, vE1, vE2 = v(), v(), v(), v(), v()
    aK = [v() for _ in range(4)]
    aV, aWQ, aTR, aTR2, aDM = v(), v(), v(), v(), v()
    aGU = [v() for _ in range(2)]
    aTL = [v() for _ in range(6)]
    vCQ, aPB = v(), v()
    vTS, vDUM = v(), v()
    names = []

    def lines(xs):
        for x in xs:
            a(x)

    def stamp(name, level=2):
        if P['stamps'] < level or (P['only'] and name != 'end' and name not in P['only'].split(',')):
            return
        k = len(names)
        names.append(name)
        assert k < 30
        a(f'''s_memtime {sTS}
            s_lshl_b32 {sT3}, {sLAY}, 5
            s_add_u32 m0, {sT3}, {k}
            s_waitcnt lgkmcnt(0)
            v_writelane_b32 {vTS}, {sTSlo}, m0''')

    def rstamp(k):
        if P['amp'] in (k, k + 8):
            a(f's_cmp_lg_u32 {sLAY}, {P["amp"] >> 3}')
            a.br('s_cbranch_scc1', 'AMP%d' % k, lambda c: c['layer'] != P['amp'] >> 3)
            a(f's_memrealtime {sTS}\ns_waitcnt lgkmcnt(0)\ns_sub_u32 s11, {sTSlo}, s3')
            a.label('AMP%d' % k)
        if P['stamps'] != 1:
            return
        a(f'''s_memrealtime {sTS}
            s_lshl_b32 {sT3}, {sLAY}, 3
            s_add_u32 m0, {sT3}, {40 + k}
            s_waitcnt lgkmcnt(0)
            v_writelane_b32 {vTS}, {sTSlo}, m0''')

    def estamp(name):
        if P['stamps'] < 3 or P['only']:
            return
        k = len(names)
        names.append(name)
        a(f's_memtime s[86:87]\ns_waitcnt lgkmcnt(0)\nv_writelane_b32 {vTS}, s86, {k}')

    def dump(idx, reg):
        if not P['dump']:
            return
        a(f'''s_lshl_b32 {sT3}, {sLAY}, 18
            s_add_u32 {sT3}, {sT3}, {OFF_DBG + 0x100000 + idx * 0x80000:#x}
            buffer_store_dword {reg}, {aDM}, {srd(S_W)}, {sT3} offen
            s_waitcnt vmcnt(0)''')

    def mk_srd(b, ptr, off, size):
        if off is None:
            a(f's_mov_b32 s{b}, s{ptr}\ns_and_b32 s{b + 1}, s{ptr + 1}, 0xffff')
        else:
            a(f's_add_u32 s{b}, s{ptr}, {off}\ns_addc_u32 s{b + 1}, s{ptr + 1}, 0\ns_and_b32 s{b + 1}, s{b + 1}, 0xffff')
        a(f's_mov_b32 s{b + 2}, {size:#x}\ns_mov_b32 s{b + 3}, 0x20000')

    def pub(op, data, addr, soff):
        a(f'{op} {data}, {addr}, {srd(S_F)}, {soff} offen')
        a(f'{op} {data}, {addr}, {srd(S_S)}, {soff} offen sc1')

    def pub_f(op, data, addr, soff):
        a(f'{op} {data}, {addr}, {srd(S_F)}, {soff} offen')

    def pub_s(op, data, addr, soff):
        a(f'{op} {data}, {addr}, {srd(S_S)}, {soff} offen sc1')

    def gload(dst, addr, soff, off=0, tag=None):
        a(f'buffer_load_dwordx4 {dst.t(4)}, {addr}, {srd(S_W)}, {soff} offen' + (f' offset:{off}' if off else '') + ' sc1', tag=tag)

    retry_blocks = []

    def retry(tag, issue_label, reissue=None):
        def taken(c):
            k = (tag, c['layer'])
            if tag == 'A' and c.get('dry'):
                return True
            if c.get('retry') and k not in c.setdefault('_done', set()):
                c['_done'].add(k)
                return True
            return False
        a.br('s_cbranch_scc1', 'RETRY_' + tag, taken)
        a.label('CONT_' + tag)
        retry_blocks.append((tag, issue_label, reissue))

    def skip_l2(label):
        a(f's_cmp_lg_u32 {sLAY}, 0')
        a.br('s_cbranch_scc1', label, L2)

    def ack():
        if P['ackwait']:
            a('s_waitcnt vmcnt(0)')
        if P['adelay']:
            a('s_sleep %d' % P['adelay'])

    ool = []

    def first_only(name, body, back=None):
        if not P['oolmask'] >> ['WQ', 'MODE', 'PV', 'PV2'].index(name) & 1:
            skip_l2('BACK_' + name)
            body()
            a.label('BACK_' + name)
            return
        skip_l1('L1_' + name)
        if back is None:
            back = 'BACK_' + name
            a.label(back)
        ool.append((name, body, back))

    def skip_l1(label):
        a(f's_cmp_eq_u32 {sLAY}, 0')
        a.br('s_cbranch_scc1', label, L1)

    def w3_to(label):
        a(f's_cmp_eq_u32 {sW}, 3')
        a.br('s_cbranch_scc1', label, W3)

    def wave16k():
        a(f's_lshl_b32 {sT1}, {sW}, 14')

    def kvdma(j, isv):
        a(f'''s_add_u32 m0, {sT1}, {(L_V if isv else L_K) + 1024 * j}
            s_add_u32 {sT0}, {sROT}, {j << 12}
            s_and_b32 {sT0}, {sT0}, 0xf000''')
        if isv:
            a(f'buffer_load_dwordx4 {aV}, {srd(S_V)}, {sT0} offen nt lds', fills='V%d' % (j // 4))
        else:
            a(f'buffer_load_dwordx4 {aK[j & 3]}, {srd(S_K)}, {sT0} offen nt lds', fills='K')

    def tall_base():
        a(f's_mul_i32 {sT2}, {sW}, 5120\ns_mul_i32 {sT3}, {sW}, {64 * 1152}')

    def tall_dma(S, region, k, fills):
        if k < 5:
            a(f's_add_u32 m0, {sT2}, {region + 1024 * k}')
            a(f'buffer_load_dwordx4 {aTL[k]}, {srd(S)}, {sT3} offen{" nt" if P["tnt"] else ""} lds', fills=fills)
        else:
            a(f's_lshl_b32 {sT0}, {sW}, 10\ns_add_u32 m0, {sT0}, {region + 20480}')
            a(f'buffer_load_dwordx4 {aTL[5]}, {srd(S)}, 0 offen{" nt" if P["tnt"] else ""} lds', fills=fills)

    def prefetch(ptr, size):
        a(f's_lshl_b32 {sT0}, {sG}, 4\ns_add_u32 {sT0}, {sT0}, {sI}\ns_mul_i32 {sT0}, {sT0}, {size}')
        mk_srd(S_X, ptr, sT0, size)
        a(f'v_lshlrev_b32 {t0}, 6, v0\ns_mov_b32 {sT0}, 16384')
        nt = ' nt' if P['pnt'] else ''
        a(f'buffer_load_dword {vDUM}, {t0}, {srd(S_X)}, 0 offen{nt}', dummy=1)
        a(f'buffer_load_dword {vDUM}, {t0}, {srd(S_X)}, {sT0} offen{nt}', dummy=1)

    def pd_setup():
        a(f's_lshl_b32 {sT0}, {sG}, 4\ns_add_u32 {sT0}, {sT0}, {sI}\ns_mul_i32 {sT0}, {sT0}, 20736')
        mk_srd(S_X, 20, sT0, 20736)
        a(f'v_lshlrev_b32 {aGU[0]}, 7, {vL}')

    def pd_loads():
        for k in range(3):
            a(f's_mov_b32 {sT0}, {8192 * k}')
            a(f'buffer_load_dword {vDUM}, {aGU[0]}, {srd(S_X)}, {sT0} offen', dummy=1)

    def wd_pieces():
        tall_base()
        for k in range(6):
            tall_dma(S_WD, L_WD, k, 'WD')

    def gu_batch(lo, hi):
        if hi > lo:
            a(f's_mul_i32 {sT2}, {sW}, 5184\ns_mov_b32 exec_hi, 0x3fffff')
            for k in range(lo, hi):
                gudma(k)
            a('s_mov_b32 exec_hi, -1')

    def gudma(k):
        j, mu = k >> 1, k & 1
        a(f's_add_u32 m0, {sT2}, {L_GU + 20736 * mu + 864 * j}\ns_mov_b32 {sT0}, {(j >> 1) * 3 * 9216}')
        a(f'buffer_load_dwordx4 {aGU[j & 1]}, {srd(S_WU if mu else S_WG)}, {sT0} offen nt lds', fills='GU')

    def set_tags():
        a(f'''s_and_b32 {sT}, {sT}, 0x1fff1fff
            s_add_u32 {sT}, {sT}, 0x10001
            s_and_b32 {sT}, {sT}, 0x1fff1fff
            s_or_b32 {sT}, {sT}, 0x20002000
            s_lshr_b32 {sThi}, {sT}, 16
            s_lshl_b32 {sTsh}, {sT}, 16
            s_and_b32 {sT0}, {sT}, 0xffff0000
            v_mov_b32 {t0}, {sTsh}
            v_mov_b32 {t1}, {sT0}
            s_mov_b32 vcc_lo, 0x55555555
            s_mov_b32 vcc_hi, 0x55555555
            v_cndmask_b32 {vTAB}, {t1}, {t0}, vcc
            s_mov_b32 vcc_lo, 0x0f0f0f0f
            s_mov_b32 vcc_hi, 0x0f0f0f0f
            v_cndmask_b32 {vTD}, {t1}, {t0}, vcc
            v_mov_b32 {ST + 3}, {sT}
            v_mov_b32 {BST + 3}, {sT}''')

    def ror_steps(op, regs, first_src=None):
        out = []
        for k, sh in enumerate((8, 4, 2, 1)):
            grp = []
            for q, r in enumerate(regs):
                s = first_src[q] if (k == 0 and first_src) else r
                grp.append(f'{op}_dpp {r}, {s}, {s} row_ror:{sh}{DPP}')
            out.append(grp)
        return out

    def bcast_steps(op, regs):
        return [[f'{op}_dpp {r}, {r}, {r} row_bcast:{bc} row_mask:{rm} bank_mask:0xf' for r in regs]
                for bc, rm in ((15, '0xa'), (31, '0xc'))]

    def flat(groups):
        return [x for g in groups for x in g]

    def stats_ops():
        return [f'v_add_f32 {t4}, {XC}, {XC + 1}',
                f'v_mul_f32 {t5}, {XC}, {XC}',
                f'v_add_f32 {t6}, {XC + 2}, {XC + 3}',
                f'v_fmac_f32 {t5}, {XC + 1}, {XC + 1}',
                f'v_add_f32 {t4}, {t4}, {t6}',
                f'v_fmac_f32 {t5}, {XC + 2}, {XC + 2}',
                f'v_cndmask_b32 {ST}, 0, {t4}, {sM9}',
                f'v_fmac_f32 {t5}, {XC + 3}, {XC + 3}',
                f'v_cndmask_b32 {ST + 1}, 0, {t5}, {sM9}'] + flat(ror_steps('v_add_f32', [ST, ST + 1]))

    def resid_ops():
        return [f'v_add_f32 {XR + r}, {XC + r}, {vMP}' for r in range(4)] + [
            f'v_cvt_pk_bf16_f32 {XR + 1}, {XR}, {XR + 1}',
            f'v_cvt_pk_bf16_f32 {XR + 3}, {XR + 2}, {XR + 3}',
            f'v_lshlrev_b32 {XR}, 16, {XR + 1}',
            f'v_lshlrev_b32 {XR + 2}, 16, {XR + 3}',
            f'v_and_b32 {XR + 1}, {sHIM}, {XR + 1}',
            f'v_and_b32 {XR + 3}, {sHIM}, {XR + 3}']

    def ln_ops(S):
        return ror_steps('v_add_f32', [vE0, vE1], [S, S + 1]) + [
            [f'v_mul_f32 {vDM}, {sINV}, {vE0}', f'v_fma_f32 {vRS}, {vE1}, {sINV}, {vEPS}'],
            [f'v_fma_f32 {vRS}, -{vDM}, {vDM}, {vRS}'],
            [f'v_rsq_f32 {vRS}, {vRS}']]

    def newmean_ops():
        return [f'v_add_f32 {vMP}, {vMP}, {vDM}'] + [f'v_sub_f32 {CI + r}, {XR + r}, {vMP}' for r in range(4)]

    def m16(d, A, B, C):
        a(f'v_mfma_f32_16x16x32_bf16 {d.t(4)}, {A}, {B}, {C}')

    def m4(d, A, B, first, abid):
        a(f'v_mfma_f32_4x4x4_16b_bf16 {d.t(4)}, {A}, {B}, {"0" if first else d.t(4)} cbsz:4 abid:{abid}')

    def chk_ab(g, first, lo=sT, hi=sThi):
        a(f'v_bitop3_b32 {t0}, {g}, {g + 2}, {lo} bitop3:0x7e\nv_bitop3_b32 {t1}, {g + 1}, {g + 3}, {hi} bitop3:0x7e')
        a(f'v_or_b32 {vE2}, {t0}, {t1}' if first else f'v_or3_b32 {vE2}, {t0}, {t1}, {vE2}')

    def chk_d(g, h, first):
        a(f'v_bitop3_b32 {t0}, {g + 1}, {h + 1}, {sTsh} bitop3:0x7e\nv_bitop3_b32 {t1}, {g + 3}, {h + 3}, {sT} bitop3:0x7e')
        a(f'v_or_b32 {vE2}, {t0}, {t1}' if first else f'v_or3_b32 {vE2}, {t0}, {t1}, {vE2}')

    nsel = [0]

    def reload(items):
        def f():
            for m, fn in items:
                nsel[0] += 1
                a(f's_cmp_eq_u64 {m}, 0')
                a.br('s_cbranch_scc1', 'SEL%d' % nsel[0], lambda c: False)
                fn()
                a.label('SEL%d' % nsel[0])
            a('s_waitcnt vmcnt(0)')
        return f

    def chk1(g, q):
        a(f'''v_bitop3_b32 {t0}, {g}, {g + 2}, {sT} bitop3:0x7e
            v_bitop3_b32 {t1}, {g + 1}, {g + 3}, {sThi} bitop3:0x7e
            v_or_b32 {t0}, {t0}, {t1}
            v_cmp_ne_u16 {sQ[q]}, 0, {t0}''')

    def chk2(g, h, q):
        a(f'''v_bitop3_b32 {t0}, {g + 1}, {h + 1}, {sTsh} bitop3:0x7e
            v_bitop3_b32 {t1}, {g + 3}, {h + 3}, {sT} bitop3:0x7e
            v_or_b32 {t0}, {t0}, {t1}
            v_cmp_lt_u32 {sQ[q]}, {sFF}, {t0}''')

    def tall_addr(region):
        a(f'''v_lshrrev_b32 {t0}, 2, {vN}
            v_lshl_add_u32 {t0}, {vRow}, 3, {t0}
            v_mul_u32_u24 {t0}, 80, {t0}
            v_and_b32 {t1}, 3, {vL}
            v_lshl_add_u32 {t0}, {t1}, 3, {t0}
            s_and_b32 {sT0}, {sI}, 1
            s_lshl_b32 {sT0}, {sT0}, 3
            s_mul_i32 {sT3}, {sW}, 24
            s_add_u32 {sT0}, {sT0}, {sT3}
            s_add_u32 {sT0}, {sT0}, {region}
            v_add_u32 {aTR}, {sT0}, {t0}''')

    def tall_tr(nk, AB):
        for k in range(nk):
            for u in range(2):
                a(f'ds_read_b64_tr_b16 {ar(AB + 4 * k + 2 * u, 2)}, {aTR} offset:{2560 * k + 320 * u}')

    def tall_stage(AB, ldsoff, extra):
        D = ACC[1]
        if extra:
            a(f'ds_read_b128 {(OP + 16).t(4)}, {aOD}')
        for k in range(4):
            a(f'ds_read_b128 {(OP + 4 * k).t(4)}, {aOR} offset:{ldsoff + 128 * k}')
        if extra:
            a('s_waitcnt lgkmcnt(4)')
            m16(D, (OP + 16).t(4), ar(AB + 32, 4), '0')
        for k in range(4):
            a(f's_waitcnt lgkmcnt({3 - k})')
            a(f'v_smfmac_f32_16x16x64_bf16 {D.t(4)}, {(OP + 4 * k).t(4)}, {ar(AB + 8 * k, 8)}, {vIDX}')
        if P['x4']:
            a(f'v_add_f32 {t0}, {D}, {D + 1}\nv_cvt_pk_bf16_f32 {XG}, {vTAX}, {t0}')
            for q in (1, 2, 3):
                a(f'v_mov_b32_dpp {XG + q}, {XG} quad_perm:[{q},{q},{q},{q}]{DPP}')
            a(f'buffer_store_dwordx4 {XG.t(4)}, {aXPUB}, {srd(S_W)}, {sSLOT} offen sc1', tag='XP')
            return
        a(f'v_add_f32 {t0}, {D}, {D + 1}\nv_cvt_pk_bf16_f32 {t1}, {vTAX}, {t0}')
        a(f'buffer_store_dword {t1}, {aXPUB}, {srd(S_W)}, {sSLOT} offen sc1', tag='XP')

    def cg_loads():
        for q, (ad, off) in enumerate(((aDG1, 0), (aDG1, 1536), (aDG1b, 0), (aDG1b, 1536), (aDG2, 0), (aDG2, 1536))):
            gload(G2[q], ad, sCG, off, 'CG')

    def cg_reduce(tag):
        a.label('CHECK_' + tag)
        for q in range(4):
            m16(ACC[2], SELD.t(4), G2[q].t(4), '0' if q == 0 else ACC[2].t(4))
        for q in range(2):
            m16(ACC[3], SELD.t(4), G2[4 + q].t(4), '0' if q == 0 else ACC[3].t(4))
        for q in range(3):
            chk_d(G2[2 * q], G2[2 * q + 1], q == 0)
        a(f'v_cmp_lt_u32 vcc, 0xffff, {vE2}\ns_cmp_lg_u64 vcc, 0')
        retry(tag, 'CHECK_' + tag, lambda: (cg_loads(), a('s_waitcnt vmcnt(0)')))
        a(f'''v_mov_b32 {CSG}, {ACC[2]}
            v_mov_b32 {CSG + 1}, {ACC[2] + 1}
            v_add_f32_dpp {CSG + 2}, {ACC[3]}, {ACC[3]} row_ror:8{DPP}
            v_add_f32_dpp {CSG + 3}, {ACC[3] + 1}, {ACC[3] + 1} row_ror:8{DPP}''')

    def cq_loads():
        for q in range(4):
            gload(G2[q], aAGET, sCQ, 1024 * q, 'CQ')

    def cq_reduce(tag):
        a.label('CHECK_' + tag)
        for q in range(4):
            m16(ACC[2], SEL4.t(4), G2[q].t(4), '0' if q == 0 else ACC[2].t(4))
            chk_ab(G2[q], q == 0, sTX, sTXh)
        a(f'v_cmp_ne_u16 vcc, 0, {vE2}\ns_cmp_lg_u64 vcc, 0')
        retry(tag, 'CHECK_' + tag, lambda: (cq_loads(), a('s_waitcnt vmcnt(0)')))
        a(f'v_mov_b32 {CSQ}, {ACC[2]}')

    def a_loads():
        gload(G[4], aASGET, '0', tag='A')
        for q in range(4):
            gload(G[q], aAGET, '0', 1024 * q, 'A')

    def b_loads():
        gload(G[4], aBSGET, '0', tag='B')
        for q in range(4):
            gload(G[q], aAGET, sBD, 1024 * q, 'B')

    def b_reduce(waits):
        a(f'v_cmp_ne_u32 {sP}, {sT}, {G[4] + 3}')
        lines(flat(ror_steps('v_max_f32', [vE0], [G[4]])))
        a(f'v_sub_f32 {vE0}, {G[4]}, {vE0}\nv_exp_f32 {vE0}, {vE0}\nv_mul_f32 {vE1}, {vE0}, {G[4] + 1}')
        lsum = flat(ror_steps('v_add_f32', [vE1]))
        for q in range(4):
            for d in range(4):
                a(f'v_and_b32_dpp {AW[q] + d}, {vE0}, {MASK4 + d} row_newbcast:{q}{DPP}')
            a(lsum[q])
            if waits:
                a(f's_waitcnt vmcnt({3 - q})')
            m16(ACC[0], AW[q].t(4), G[q].t(4), '0' if q == 0 else ACC[0].t(4))
            chk_ab(G[q], q == 0)
            if P['sel']:
                if q:
                    a(f's_or_b64 vcc, {sP if q == 1 else "vcc"}, {sQ[q - 1]}')
                chk1(G[q], q)
        if P['sel']:
            a(f'v_rcp_f32 {vE1}, {vE1}\ns_or_b64 vcc, vcc, {sQ[3]}')
        else:
            a(f'v_cmp_ne_u16 vcc, 0, {vE2}\nv_rcp_f32 {vE1}, {vE1}\ns_or_b64 vcc, vcc, {sP}')

    def d_loads():
        gload(G[6], aASGET, sDS)
        gload(G[4], aDG2, '0')
        gload(G[5], aDG2, '0', 1536)
        gload(G[0], aDG1, '0')
        gload(G[1], aDG1, '0', 1536)
        gload(G[2], aDG1b, '0')
        gload(G[3], aDG1b, '0', 1536)

    def a_reduce(waits):
        lo = ln_ops(G[4])
        fill = [lo[0] + lo[1], lo[2] + lo[3], lo[4] + lo[5] + lo[6],
                [f'v_mul_f32 {vC1}, {vDM}, {CSQ}', f'v_mul_f32 {vRS}, {sC}, {vRS}', f'v_mul_f32 {vC1}, {vC1}, {vRS}']]
        a(f'v_cmp_ne_u32 {sP}, {sT}, {G[4] + 3}')
        for q in range(4):
            lines(fill[q])
            if waits:
                a(f's_waitcnt vmcnt({3 - q})')
            m16(ACC[0], SEL4.t(4), G[q].t(4), '0' if q == 0 else ACC[0].t(4))
            chk_ab(G[q], q == 0)
        a(f'v_cmp_ne_u16 vcc, 0, {vE2}\ns_or_b64 vcc, vcc, {sP}')

    def xgather(tag):
        a.label('GX_ISSUE_' + tag)
        for q in range(4):
            gload(G[q], aXGET, sSLOT, 256 * q)
        for q in range(4):
            a(f's_waitcnt vmcnt({3 - q})')
            m16(XC, SELX.t(4), G[q].t(4), CI.t(4) if q == 0 else XC.t(4))
            chk_ab(G[q], q == 0, sTX, sTXh)
        a(f'v_cmp_ne_u16 vcc, 0, {vE2}\ns_cmp_lg_u64 vcc, 0')
        retry(tag, 'GX_ISSUE_' + tag)

    def xq_write():
        a(f'''v_cvt_pk_bf16_f32 {PK2}, {XC}, {XC + 1}
            v_cvt_pk_bf16_f32 {PK2 + 1}, {XC + 2}, {XC + 3}
            ds_write_b64 {aXQW}, {PK2.t(2)}''')

    def setlayer2():
        a(f's_mov_b32 {sLAY}, 1')
        a.act(lambda c: c.__setitem__('layer', 1))
        if P['stamps'] >= 2:
            a(f'v_writelane_b32 {vTS}, {sRC}, 30\ns_mov_b32 {sRC}, 0')

    def touch_setup():
        a(f'''; softmax stats of the o hand-off
            s_lshl_b32 {sT3}, {sI}, 4
            s_lshl_b32 {sT0}, {sG}, 9
            s_lshr_b32 {sT2}, {sW}, 1
            s_lshl_b32 {sT2}, {sT2}, 8
            s_add_u32 {sT0}, {sT0}, {sT2}
            s_add_u32 {sT0}, {sT0}, {OFF_BS:#x}
            v_lshl_add_u32 {t0}, {vRow}, 2, {vN}
            v_and_b32 {t0}, 15, {t0}
            v_lshl_add_u32 {aBSGET}, {t0}, 4, {sT0}
            s_add_u32 {sT0}, {sT0}, {sT3}
            v_mov_b32 {t0}, {sT0}
            v_and_b32 {t1}, 127, v0
            v_cmp_eq_u32 vcc, 0, {t1}
            s_nop 0
            v_cndmask_b32 {aBSPUB}, {vOOB}, {t0}, vcc
            s_lshr_b32 {sT0}, {sI}, 1
            s_lshl_b32 {sT0}, {sT0}, 14
            s_and_b32 {sT2}, {sI}, 1
            s_lshl_b32 {sT2}, {sT2}, 12
            s_add_u32 {sT0}, {sT0}, {sT2}
            s_add_u32 {sT0}, {sT0}, {OFF_X:#x}
            s_lshr_b32 {sT2}, {sXCC}, 2
            s_and_b32 {sT2}, {sT2}, 1
            s_xor_b32 {sT2}, {sT2}, {1 if P['near'] == 1 else 0}
            s_lshl_b32 {sT2}, {sT2}, 13
            s_and_b32 {sT2}, {sT2}, {0x2000 if P['near'] else 0}
            s_add_u32 {sT2}, {sT2}, {sT0}
            v_min_u32 {t0}, 8, {vN}
            v_mul_u32_u24 {t1}, 43, {t0}
            v_lshrrev_b32 {t1}, 7, {t1}
            v_add_u32 {t0}, {t0}, {t1}
            v_lshl_add_u32 {t1}, {vRow}, 10, {sT2}
            v_lshl_add_u32 {aXGET}, {t0}, 4, {t1}
            s_lshl_b32 {sT3}, {sG}, 8
            s_add_u32 {sT2}, {sT2}, {sT3}
            s_add_u32 {sT2}, {sT2}, 0x80000
            v_mov_b32 {aPB}, {sT2}
            s_lshl_b32 {sT2}, {sG}, 8
            s_add_u32 {sT0}, {sT0}, {sT2}
            s_lshl_b32 {sT2}, {sW}, 6
            s_add_u32 {sT2}, {sT0}, {sT2}
            v_lshl_add_u32 {t0}, {vN}, 2, {sT2}
            v_lshl_add_u32 {t0}, {vRow}, 13, {t0}
            s_mov_b32 vcc_lo, {0x01110111 if P['x4'] else 0x0fff0fff:#x}
            s_mov_b32 vcc_hi, 0
            v_cndmask_b32 {aXPUB}, {vOOB}, {t0}, vcc''')
        if P['prewrite']:
            a(f'''s_and_b32 {sT2}, {sW}, 1
                s_xor_b32 {sT2}, {sT2}, 1
                s_lshl_b32 {sT2}, {sT2}, 13
                s_add_u32 {sT2}, {sT2}, {sT0}
                v_lshl_add_u32 {t0}, {vRow}, 17, {sT2}
                v_lshl_add_u32 {t0}, {vN}, 4, {t0}
                v_cmp_le_u32 vcc, {128 if P['near'] else 192}, v0
                v_mov_b32 {G[5]}, 0
                v_mov_b32 {G[5] + 1}, 0
                v_mov_b32 {G[5] + 2}, 0
                v_mov_b32 {G[5] + 3}, 0
                v_cndmask_b32 {t0}, {vOOB}, {t0}, vcc
                buffer_store_dwordx4 {G[5].t(4)}, {t0}, {srd(S_W)}, 0 offen sc1''')
            if P['probe']:
                a(f'''s_mov_b64 vcc, 0xff
                    s_mov_b32 {sT2}, 0x80000
                    v_cndmask_b32 {t0}, {vOOB}, {t0}, vcc
                    buffer_store_dwordx4 {G[5].t(4)}, {t0}, {srd(S_W)}, {sT2} offen sc1''')
        if P['pretouch']:
            a(f'''s_lshl_b32 {sT0}, {sG}, 4
                s_add_u32 {sT0}, {sT0}, {sI}
                s_mul_i32 {sT2}, {sT0}, 1536
                s_add_u32 {sT2}, {sT2}, {OFF_DD - 16 * 128}
                v_lshl_add_u32 {t0}, {vL}, 7, {sT2}
                v_add_u32 {t1}, {OFF_CG - OFF_DD - 12 * 128}, {t0}
                v_cmp_gt_u32 vcc, 28, {vL}
                s_lshl_b32 {sT2}, {sT0}, 10
                s_add_u32 {sT2}, {sT2}, {OFF_BD}
                v_cndmask_b32 {t0}, {t1}, {t0}, vcc
                v_lshl_add_u32 {t1}, {vL}, 7, {sT2}
                s_mov_b64 vcc, 0xff
                v_cndmask_b32 {t0}, {t0}, {t1}, vcc
                v_add_u32 {t1}, {(OFF_CQ - OFF_BD - 1024) & 0xffffffff:#x}, {t1}
                s_mov_b64 vcc, 0xff00
                v_cndmask_b32 {t0}, {t0}, {t1}, vcc
                s_lshl_b32 {sT2}, {sG}, 8
                s_add_u32 {sT2}, {sT2}, {OFF_DS - 40 * 32}
                v_lshl_add_u32 {t1}, {vL}, 5, {sT2}
                s_mov_b32 vcc_lo, 0
                s_mov_b32 vcc_hi, 0xff00
                v_cndmask_b32 {t0}, {t0}, {t1}, vcc
                s_mov_b32 vcc_hi, 0xffff0000
                v_cndmask_b32 {t0}, {t0}, {aBSGET}, vcc
                v_cmp_eq_u32 vcc, {sW}, {vRow}
                s_and_b32 vcc_lo, vcc_lo, {0 if P['prestore'] else -1}
                s_and_b32 vcc_hi, vcc_hi, {0x1100 if P['prestore'] else -1}
                s_or_b32 vcc_hi, vcc_hi, 0x01010000
                v_cndmask_b32 {t0}, {vOOB}, {t0}, vcc''')
            a(f'buffer_load_dword {vDUM}, {t0}, {srd(S_W)}, 0 offen sc1', dummy=1)


    a('s_cmp_ge_u32 s2, 256')
    a.br('s_cbranch_scc1', 'END', lambda c: False)
    if P['stamps']:
        a('s_memtime s[86:87]')
        names.append('start')
    if P['stamps'] or P['hold']:
        a('s_memrealtime s[90:91]')
    a(f'''s_load_dwordx16 s[4:19], s[0:1], 0
        s_load_dwordx8 s[20:27], s[0:1], 64
        v_lshrrev_b32 {t0}, 6, v0
        v_and_b32 {vL}, 63, v0
        v_readfirstlane_b32 {sW}, {t0}
        s_and_b32 {sT0}, s2, 7
        s_lshl_b32 {sT0}, {sT0}, 1
        s_bfe_u32 {sT1}, s2, 0x10003
        s_add_u32 {sG}, {sT0}, {sT1}
        s_lshr_b32 {sI}, s2, 4
        s_lshl_b32 {sROT}, s2, 9
        s_and_b32 {sROT}, {sROT}, 0xf000
        s_mov_b32 {sLAY}, 0
        v_lshrrev_b32 {vRow}, 4, {vL}
        v_and_b32 {vN}, 15, {vL}
        v_lshrrev_b32 {t0}, 3, {vL}
        v_and_b32 {t1}, 7, {vL}
        v_lshlrev_b32 {t0}, 13, {t0}
        v_lshl_add_u32 {t0}, {t1}, 4, {t0}
        s_lshl_b32 {sT0}, {sW}, 7
        v_add_u32 {aWQ}, {sT0}, {t0}
        s_lshl_b32 {sT0}, {sW}, 10
        v_lshl_add_u32 {t0}, {vRow}, 8, {sT0}
        v_xor_b32 {t1}, {vN}, {vRow}
        v_lshl_add_u32 {aK[0]}, {t1}, 4, {t0}
        v_xor_b32 {aK[1]}, 64, {aK[0]}
        v_xor_b32 {aK[2]}, 128, {aK[0]}
        v_xor_b32 {aK[3]}, 192, {aK[0]}
        v_lshlrev_b32 {t1}, 2, {vRow}
        v_xor_b32 {t1}, {vN}, {t1}
        v_lshl_add_u32 {aV}, {t1}, 4, {t0}
        v_lshlrev_b32 {t2}, 4, {vL}
        s_mul_i32 {sT3}, {sI}, 72
        v_lshl_add_u32 {t3}, {vN}, 3, {sT3}
        s_mul_i32 {sT0}, {sI}, {36 * 8192}
        s_lshl_b32 {sT1}, {sG}, 9
        s_add_u32 {sT0}, {sT0}, {sT1}
        s_lshl_b32 {sT2}, {sG}, 23
        s_lshl_b32 {sT3}, {sI}, 16
        s_add_u32 {sT2}, {sT2}, {sT3}
        s_add_u32 {sT2}, {sT2}, {28672 * 256}
        s_mul_i32 {sT1}, {sW}, 4608
        s_cmp_lg_u32 {sW}, 3
        s_waitcnt lgkmcnt(0)''')
    a.br('s_cbranch_scc1', 'NOX', NW3)
    mk_srd(S_X, 4, None, 1152)
    a(f'''buffer_load_dwordx4 {G[0].t(4)}, {t2}, {srd(S_X)}, 0 offen
        buffer_load_dwordx4 {G[1].t(4)}, {t2}, {srd(S_X)}, 0 offen offset:1024
        buffer_load_dwordx2 {G[2].t(2)}, {t3}, {srd(S_X)}, 0 offen''', tag='X')
    a.label('NOX')
    if P['hold']:
        a('s_mov_b32 s3, s90')
    if P['stamps']:
        a(f'v_mov_b32 {vTS}, 0\nv_writelane_b32 {vTS}, s86, 0\nv_writelane_b32 {vTS}, s90, 63')
    estamp('kernarg')
    a(f's_load_dword {sE}, s[26:27], 0')
    mk_srd(S_WQ, 10, sT0, 35 * 8192 + 512)
    for k in range(5):
        a(f's_add_u32 m0, {sT1}, {L_WQ + 1024 * k}\ns_mov_b32 {sT0}, {65536 * k}')
        if k == 4:
            a('s_mov_b32 exec_hi, 0')
        a(f'buffer_load_dwordx4 {aWQ}, {srd(S_WQ)}, {sT0} offen nt lds', fills='WQ')
        if k == 4:
            a('s_mov_b32 exec_hi, -1')
    mk_srd(S_K, 6, sT2, 65536)
    if P['codepf']:
        a(f's_getpc_b64 {sP}')
        a.label('PCREF')
        a(f'''s_lshl_b32 {sT0}, {sW}, 12
            v_lshl_add_u32 {t2}, {vL}, 6, {sT0}
            s_cmp_lt_u32 s2, {P['codepf'] * 8}
            s_cselect_b32 {sT0}, CODE_END-PCREF-4, 0
            v_min_u32 {t2}, {sT0}, {t2}''')
        a(f'global_load_dword {vDUM}, {t2}, {sP}', dummy=1)
    wave16k()
    for j in range(P['ka']):
        kvdma(j, False)
    mk_srd(S_V, 8, sT2, 65536)
    if P['tlbpf']:
        a(f's_load_dword {sR0}, s[{S_V}:{S_V + 1}], 0', dummy=1)
        for ptr, mul, reg, b, end in ((12, 256 * 1152, sG, S_WO, 255 * 1152), (16, 36 * 9216, sI, S_WG, 35 * 9216),
                                      (18, 36 * 9216, sI, S_WU, 35 * 9216), (20, 288 * 1152, sG, S_WD, 287 * 1152)):
            a(f's_mul_i32 {sT3}, {reg}, {mul}\ns_add_u32 s{b}, s{ptr}, {sT3}\ns_addc_u32 s{b + 1}, s{ptr + 1}, 0')
            a(f's_load_dword {sR0}, s[{b}:{b + 1}], 0', dummy=1)
            a(f's_load_dword {sR0}, s[{b}:{b + 1}], {end:#x}', dummy=1)
        a(f's_add_u32 s{S_OUT}, s26, {OFF_X:#x}\ns_addc_u32 s{S_OUT + 1}, s27, 0')
        a(f's_load_dword {sR0}, s[{S_OUT}:{S_OUT + 1}], {WS_USED - OFF_X - 64:#x}', dummy=1)
        a(f's_load_dword {sR0}, s[22:23], 0', dummy=1)
    WSZ = WS_SRD if (P['dump'] or P['stamps']) else WS_USED
    mk_srd(S_W, 26, None, WSZ)
    mk_srd(S_F, 26, None, WS_USED if P['dbg_fast0'] else 0)
    mk_srd(S_S, 26, None, 0 if P['dbg_fast0'] else WS_USED)
    a(f'''s_mov_b32 {sINV}, 0x3ae38e39
        s_mov_b32 {sHIM}, 0xffff0000
        s_getreg_b32 {sXCC}, hwreg(HW_REG_XCC_ID)
        s_and_b32 {sXCC}, {sXCC}, 15
        s_mov_b32 s98, 0x01ff01ff
        s_mov_b32 s99, 0x01ff01ff
        v_mov_b32 {ONE}, 0x3f803f80
        v_mov_b32 {ONE + 1}, 0x3f803f80
        v_mov_b32 {ST + 2}, {sXCC}
        v_mov_b32 {vOOB}, {OOB:#x}
        s_mov_b32 {sT2}, {L_DUM}
        v_lshl_add_u32 {vSINK}, {vL}, 4, {sT2}
        v_lshrrev_b32 {t0}, 2, {vL}
        s_mov_b32 {sT0}, {L_X}
        v_lshl_add_u32 {t1}, {t0}, 3, {sT0}
        v_mov_b32 {t2}, {L_ONE}
        s_mov_b32 vcc_lo, 0x22222222
        s_mov_b32 vcc_hi, 0x22222222
        v_cndmask_b32 {aXQR}, {t1}, {t2}, vcc
        ds_write_b64 {t2}, {ONE.t(2)}
        v_lshl_add_u32 {t0}, {vN}, 3, {sT0}
        s_mov_b64 vcc, 0xffff
        v_cndmask_b32 {aXQW}, {vSINK}, {t0}, vcc
        s_lshl_b32 {sT0}, {sG}, 14
        s_lshl_b32 {sT2}, {sW}, 8
        s_add_u32 {sT0}, {sT0}, {sT2}
        s_add_u32 {sT0}, {sT0}, {OFF_AD:#x}
        v_lshl_add_u32 {t0}, {vRow}, 12, {sT0}
        v_lshl_add_u32 {aAGET}, {vN}, 4, {t0}
        s_lshl_b32 {sT3}, {sI}, 10
        s_add_u32 {sT0}, {sT0}, {sT3}
        v_lshl_add_u32 {aAPUB}, {vL}, 2, {sT0}
        s_lshl_b32 {sT0}, {sG}, 8
        s_add_u32 {sT0}, {sT0}, {OFF_AS:#x}
        v_lshl_add_u32 {aASGET}, {vN}, 4, {sT0}
        s_lshl_b32 {sT3}, {sI}, 4
        s_add_u32 {sT0}, {sT0}, {sT3}
        v_mov_b32 {t0}, {sT0}
        v_cmp_eq_u32 vcc, 192, v0
        v_lshrrev_b32 {t1}, 2, {vN}
        v_lshlrev_b32 {t1}, 7, {t1}
        v_cndmask_b32 {aASPUB}, {vOOB}, {t0}, vcc
        v_lshl_add_u32 {t1}, {vRow}, 5, {t1}
        v_and_b32 {t2}, 3, {vL}
        v_lshl_add_u32 {t1}, {t2}, 3, {t1}
        s_mul_i32 {sT0}, {sW}, 4608
        s_add_u32 {sT0}, {sT0}, {L_WQ}
        v_add_u32 {aTR}, {sT0}, {t1}''')
    if P['stamps']:
        a(f's_mov_b32 {sRC}, 0')
    if P['dump'] or P['stamps']:
        a(f's_lshl_b32 {sT0}, s2, 10\nv_lshl_add_u32 {aDM}, v0, 2, {sT0}')
    if P['early']:
        touch_setup()
    k0 = P['ka'] + P['kb']
    for j in range(P['ka'], k0):
        kvdma(j, False)
    a(f's_waitcnt lgkmcnt(0)\ns_mov_b32 {sT}, {sE}')
    set_tags()
    a(f's_mov_b32 {sTX}, {sT}\ns_mov_b32 {sTXh}, {sThi}\nv_mov_b32 {vTAX}, {vTAB}')
    if P['hold']:
        a('s_mov_b32 s11, 0')
    rstamp(6)
    stamp('set-up A', 3)
    a(f's_cmp_lg_u32 {sW}, 3')
    a.br('s_cbranch_scc1', 'Q_ENTRY', NW3)
    a.wait('X')
    a(f'v_mov_b32 {t0}, 0')
    for q in range(8):
        a(f'v_dot2c_f32_bf16 {t0}, {G[q >> 2] + (q & 3)}, {ONE}')
    a(f'''v_lshlrev_b32 {XC}, 16, {G[2]}
        v_and_b32 {XC + 1}, {sHIM}, {G[2]}
        v_lshlrev_b32 {XC + 2}, 16, {G[2] + 1}
        v_and_b32 {XC + 3}, {sHIM}, {G[2] + 1}''')
    lines(flat(ror_steps('v_add_f32', [t0]) + bcast_steps('v_add_f32', [t0])))
    a(f'v_readlane_b32 {sT0}, {t0}, 63\nv_mov_b32 {t0}, {sT0}\nv_mul_f32 {vMP}, {sINV}, {t0}')
    for r in range(4):
        a(f'v_sub_f32 {XC + r}, {XC + r}, {vMP}')
    xq_write()
    a.jmp('Q_WAIT')

    a.label('W3_E')
    a('s_waitcnt lgkmcnt(0)\ns_barrier')
    skip_l2('W3_E1')
    if P['probe']:
        a(f'v_xor_b32 {t2}, 0x2000, {aPB}\ns_waitcnt vmcnt(0)')
        a(f'buffer_load_dword {vDUM}, {aPB}, {srd(S_W)}, 0 offen sc1', dummy=1, tag='PB')
        a(f'buffer_load_dword {vDUM}, {t2}, {srd(S_W)}, 0 offen sc1', dummy=1)
    cq_loads()
    if P['probe']:
        a.wait('PB')
    lines(newmean_ops())
    set_tags()
    if P['probe']:
        a(f'''s_getreg_b32 {sT0}, hwreg(HW_REG_IB_STS, 0, 4)
            s_cmp_eq_u32 {sT0}, 5
            s_cselect_b32 {sT0}, 0, 0x2000
            v_xor_b32 {aXGET}, {sT0}, {aXGET}''')
        if P['stamps'] == 1:
            a(f's_add_u32 {sT0}, {sT0}, 1\nv_writelane_b32 {vTS}, {sT0}, 46')
    a('s_waitcnt vmcnt(0)')
    cq_reduce('CR')
    if P['xbar']:
        a('s_barrier')
    a.jmp('W3_E2')
    a.label('W3_E1')
    lines(newmean_ops())
    if P['xbar']:
        a('s_barrier')
    a(f's_cmp_lg_u32 {sG}, {sI}')
    a.br('s_cbranch_scc1', 'FINISH', lambda c: not c['final'])
    a.label('W3_E2')
    stamp('E poll', 3)
    xgather('E')
    dump(10, XC)

    def out_ops():
        lines([f'v_add_f32 {XR + r}, {XC + r}, {vMP}' for r in range(4)])
        a(f'''v_cvt_pk_bf16_f32 {Y}, {XR}, {XR + 1}
            v_cvt_pk_bf16_f32 {Y + 1}, {XR + 2}, {XR + 3}
            buffer_store_dwordx2 {Y.t(2)}, {aOUT}, {srd(S_OUT)}, 0 offen''')
    if P['outinl']:
        xq_write()
        out_ops()
        skip_l2('FINISH')
    else:
        skip_l2('W3_OUT')
        xq_write()
    a(f's_add_u32 {sSLOT}, {sSLOT}, 0x20000\ns_mov_b32 s{S_OUT + 2}, 1152')
    setlayer2()
    a.label('Q_WAIT')
    so = stats_ops()
    lines(so[:9])
    a('s_waitcnt lgkmcnt(0)')
    if P['qall']:
        a.label('Q_ENTRY')
    a(f's_barrier\nds_read_b64 {XQ.t(2)}, {aXQR}')
    if not P['qall']:
        lines(so[9:])
        pub_f('buffer_store_dwordx4', ST.t(4), aASPUB, '0')
        a.label('Q_JOIN')
    stamp('x ready', 3)

    def l1_wq():
        a.wait('WQ')
        for j in range(9):
            a(f'ds_read_b64_tr_b16 {(WQ + 2 * j).t(2)}, {aTR} offset:{512 * j}', needs=('WQ',))
    first_only('WQ', l1_wq)
    a('s_waitcnt lgkmcnt(0)')
    for j in range(9):
        m4(ACC[j % 3], XQ.t(2), (WQ + 2 * j).t(2), j < 3, j)
        if j < 8 and P['qall']:
            a(so[9 + j])
    if P['stfirst'] and P['qall']:
        pub('buffer_store_dwordx4', ST.t(4), aASPUB, '0')
    a(f'''v_pk_add_f32 {Y.t(2)}, {ACC[0].t(2)}, {ACC[1].t(2)}
        v_pk_add_f32 {Y.t(2)}, {Y.t(2)}, {ACC[2].t(2)}
        v_cvt_pk_bf16_f32 {t2}, {vTAB}, {Y}''')
    pub('buffer_store_dword', t2, aAPUB, '0')
    if not P['qall']:
        pub_s('buffer_store_dwordx4', ST.t(4), aASPUB, '0')
    dump(0, Y)
    stamp('A pub')
    lines(resid_ops())
    skip_l2('GA_PRE')
    a(f'v_cvt_pk_bf16_f32 {vCQ}, {vTAB}, {Y + 1}')
    wave16k()
    for j in range(k0, 16):
        kvdma(j, False)
    for j in range(P['v0']):
        kvdma(j, True)
    a(f'''s_mul_i32 {sT0}, {sG}, {256 * 1152}
        s_mul_i32 {sT2}, {sI}, 72
        s_and_b32 {sT2}, {sT2}, 0xfffffff0
        s_add_u32 {sT0}, {sT0}, {sT2}''')
    mk_srd(S_WO, 12, sT0, 255 * 1152 + 80)
    a(f's_mul_i32 {sT0}, {sG}, {288 * 1152}\ns_add_u32 {sT0}, {sT0}, {sT2}')
    mk_srd(S_WD, 20, sT0, 287 * 1152 + 80)
    a(f's_mul_i32 {sT0}, {sI}, {36 * 9216}\ns_mul_i32 {sT2}, {sG}, 576\ns_add_u32 {sT0}, {sT0}, {sT2}')
    mk_srd(S_WG, 16, sT0, 35 * 9216 + 576)
    mk_srd(S_WU, 18, sT0, 35 * 9216 + 576)
    mk_srd(S_OUT, 22, None, 0)
    a(f'''s_mov_b32 {sCQ}, {OFF_CQ - OFF_AD:#x}
        s_mov_b32 {sBD}, {OFF_BD - OFF_AD:#x}
        s_mov_b32 {sDS}, {OFF_DS - OFF_AS:#x}
        s_mov_b32 {sCG}, {OFF_CG - OFF_DD:#x}
        s_mov_b32 {sSLOT}, 0
        s_mov_b32 {sC}, 0x3e0293ee
        s_mov_b32 {sBUD}, 200000
        s_mov_b32 {sFF}, 0xffff
        s_mov_b32 {sDRY}, 0
        v_mov_b32 {vEPS}, 0x3727c5ac
        v_mov_b32 {BST + 2}, 0
        v_mov_b32 {CSQ}, 0
        v_mov_b32 {t0}, 0xffff0000
        v_mov_b32 {t1}, 0x3f800000
        v_mov_b32 {t2}, 0x3f80''')

    def lanemask(ns):
        m = sum(1 << n for n in ns) * 0x10001
        a(f's_mov_b32 vcc_lo, {m:#x}\ns_mov_b32 vcc_hi, {m:#x}')
    for q in range(4):
        lanemask([4 * q])
        a(f'v_cndmask_b32 {MASK4 + q}, 0, {t0}, vcc\nv_cndmask_b32 {SEL4 + q}, 0, {t1}, vcc')
        lanemask([q])
        a(f'v_cndmask_b32 {SELX + q}, 0, {t1}, vcc')
    for dst, lo_n, hi_n in ((SELD, 0, 1), (SELD + 1, 8, None), (SELD + 2, 4, 5), (SELD + 3, 9, None)):
        lanemask([lo_n])
        a(f'v_cndmask_b32 {dst}, 0, {t2}, vcc')
        if hi_n is not None:
            lanemask([hi_n])
            a(f'v_cndmask_b32 {dst}, {dst}, {t1}, vcc')
    a(f'''v_mov_b32 {t1}, 0x03020706
        v_mov_b32 {t2}, 0x05040100
        s_mov_b32 vcc_lo, 0x55555555
        s_mov_b32 vcc_hi, 0x55555555
        v_cndmask_b32 {vSELH}, {t1}, {t2}, vcc
        v_mov_b32 {t1}, 0xeeee
        v_mov_b32 {t2}, 0x4444
        v_cndmask_b32 {vIDX}, {t1}, {t2}, vcc
        s_mov_b32 {sT0}, {L_H + 512}
        v_lshl_add_u32 {t1}, {vRow}, 4, {sT0}
        v_mov_b32 {t2}, {L_ZERO}
        v_cndmask_b32 {aOD}, {t2}, {t1}, vcc
        v_mov_b32 {G[5]}, 0
        v_mov_b32 {G[5] + 1}, 0
        v_mov_b32 {G[5] + 2}, 0
        v_mov_b32 {G[5] + 3}, 0
        ds_write_b128 {t2}, {G[5].t(4)}
        v_and_b32 {t1}, 1, {vL}
        v_lshrrev_b32 {t0}, 2, {vL}
        v_lshlrev_b32 {t0}, 3, {t0}
        v_lshl_add_u32 {t0}, {t1}, 8, {t0}
        v_add_u32 {aQR}, {L_Q}, {t0}
        s_lshl_b32 {sT0}, {sW}, 7
        s_add_u32 {sT0}, {sT0}, {L_Q}
        v_lshl_add_u32 {t0}, {vN}, 2, {vRow}
        v_lshl_add_u32 {aQW}, {t0}, 1, {sT0}
        s_lshl_b32 {sT0}, {sW}, 8
        s_add_u32 {sT0}, {sT0}, {L_PO}
        v_lshl_add_u32 {aPOW}, {vL}, 2, {sT0}
        s_lshl_b32 {sT0}, {sW}, 10
        s_add_u32 {sT0}, {sT0}, {L_PO}
        v_lshl_add_u32 {aPOR}, {vL}, 2, {sT0}
        s_lshl_b32 {sT0}, {sW}, 2
        s_add_u32 {sT0}, {sT0}, {L_PS}
        v_mov_b32 {t0}, {sT0}
        s_mov_b32 {sT0}, {L_DUM}
        v_lshl_add_u32 {t1}, {vL}, 2, {sT0}
        s_mov_b32 vcc_lo, 0
        s_mov_b32 vcc_hi, 0x80000000
        v_cndmask_b32 {aPSW}, {t1}, {t0}, vcc
        s_lshr_b32 {sT0}, {sW}, 1
        s_lshl_b32 {sT0}, {sT0}, 5
        s_add_u32 {sT0}, {sT0}, {L_PS}
        v_mov_b32 {aPSR}, {sT0}
        s_mov_b32 {sT0}, {L_O}
        v_lshl_add_u32 {t0}, {vRow}, 5, {sT0}
        v_and_b32 {t1}, 1, {vL}
        v_lshl_add_u32 {aOR}, {t1}, 4, {t0}
        s_lshl_b32 {sT0}, {sW}, 7
        s_add_u32 {sT0}, {sT0}, {L_O}
        v_lshrrev_b32 {t0}, 2, {vN}
        v_lshl_add_u32 {t0}, {t0}, 5, {sT0}
        v_lshrrev_b32 {t1}, 1, {vRow}
        v_lshl_add_u32 {t0}, {t1}, 4, {t0}
        v_and_b32 {t1}, 3, {vN}
        v_lshl_add_u32 {t0}, {t1}, 2, {t0}
        v_and_b32 {t1}, 1, {vRow}
        v_lshl_add_u32 {aOW}, {t1}, 1, {t0}
        ''')
    if not P['early']:
        touch_setup()
    a(f'''s_mul_i32 {sT0}, {sI}, 72
        v_lshl_add_u32 {t0}, {vN}, 3, {sT0}
        s_cmp_eq_u32 {sW}, 3
        s_cselect_b64 vcc, 0x1ff, 0
        v_cndmask_b32 {aOUT}, {vOOB}, {t0}, vcc
        s_mul_i32 {sT0}, {sG}, {16 * 1536}
        s_add_u32 {sT0}, {sT0}, {OFF_DD:#x}
        s_mul_i32 {sT2}, {sI}, 1536
        s_lshl_b32 {sT3}, {sW}, 9
        s_add_u32 {sT2}, {sT2}, {sT3}
        s_add_u32 {sT2}, {sT2}, {sT0}
        v_lshrrev_b32 {t0}, 3, {vL}
        v_lshl_add_u32 {t0}, {t0}, 6, {sT2}
        v_and_b32 {t1}, 3, {vL}
        v_lshl_add_u32 {t0}, {t1}, 4, {t0}
        v_and_b32 {t1}, 4, {vL}
        v_cmp_gt_u32 vcc, 192, v0
        v_lshl_add_u32 {t0}, {t1}, 1, {t0}
        s_mul_i32 {sT2}, {sW}, 384
        v_cndmask_b32 {aDPUB}, {vOOB}, {t0}, vcc
        s_add_u32 {sT0}, {sT0}, {sT2}
        v_mul_u32_u24 {t0}, 6144, {vRow}
        v_add_u32 {t0}, {sT0}, {t0}
        v_lshl_add_u32 {aDG1}, {vN}, 4, {t0}
        v_add_u32 {aDG1b}, 3072, {aDG1}
        v_lshrrev_b32 {t1}, 3, {vN}
        v_mul_u32_u24 {t1}, 3072, {t1}
        v_and_b32 {t2}, 7, {vN}
        v_lshl_add_u32 {t1}, {t2}, 4, {t1}
        v_add_u32 {t0}, {t0}, {t1}
        v_add_u32 {aDG2}, 256, {t0}
        s_mul_i32 {sT0}, {sW}, 24''')
    for dst, base, src in ((aHW1, 0, vN), (aHW2, 16, t2)):
        a(f'''s_add_u32 {sT2}, {sT0}, {base}
            v_add_u32 {t0}, {sT2}, {src}
            v_lshrrev_b32 {t1}, 5, {t0}
            v_mul_u32_u24 {t1}, 96, {t1}
            v_and_b32 {t0}, 31, {t0}
            v_and_b32 {t3}, 28, {t0}
            v_add_u32 {t3}, {t3}, {t0}
            v_lshl_add_u32 {t3}, {vRow}, 2, {t3}
            v_add_u32 {t0}, 64, {t0}
            s_mov_b32 vcc_lo, 0
            s_mov_b32 vcc_hi, 0xffff
            v_cndmask_b32 {t0}, {t3}, {t0}, vcc
            v_add_u32 {t0}, {t0}, {t1}
            v_and_b32 {t1}, 0x1f1, {t0}
            v_and_b32 {t3}, 2, {t0}
            v_lshl_or_b32 {t1}, {t3}, 2, {t1}
            v_bfe_u32 {t3}, {t0}, 2, 2
            v_lshl_or_b32 {t1}, {t3}, 1, {t1}
            v_cmp_gt_u32 vcc, 0x100, {t0}
            v_cndmask_b32 {t0}, {t0}, {t1}, vcc
            v_lshlrev_b32 {t0}, 1, {t0}
            v_add_u32 {t0}, {L_H}, {t0}
            s_mov_b32 vcc_lo, 0
            s_mov_b32 vcc_hi, 0xffff0000
            v_cndmask_b32 {dst}, {t0}, {vSINK}, vcc''')
    a(f's_mul_i32 {sT0}, {sW}, {9 * 9216}')
    for j in range(2):
        a(f'''v_add_u32 {t0}, {54 * j}, {vL}
            v_mul_u32_u24 {t1}, 58255, {t0}
            v_lshrrev_b32 {t1}, 21, {t1}
            v_mul_u32_u24 {t1}, {9216 - 576}, {t1}
            v_lshl_add_u32 {t1}, {t0}, 4, {t1}
            v_add_u32 {aGU[j]}, {sT0}, {t1}''')
    for j in range(5):
        a(f'''v_add_u32 {t0}, {64 * j}, {vL}
            v_mul_u32_u24 {t1}, 52429, {t0}
            v_lshrrev_b32 {t1}, 18, {t1}
            v_mul_u32_u24 {t1}, 1072, {t1}
            v_lshl_add_u32 {aTL[j]}, {t0}, 4, {t1}''')
    a(f'''v_add_u32 {t0}, 1280, v0
        v_mul_u32_u24 {t1}, 52429, {t0}
        v_lshrrev_b32 {t1}, 18, {t1}
        v_mul_u32_u24 {t1}, 1072, {t1}
        v_lshl_add_u32 {aTL[5]}, {t0}, 4, {t1}''')
    if P['tlbpf'] >= 2:
        a(f'v_mul_u32_u24 {t0}, {287 * 1152}, {vRow}')
        a(f'buffer_load_dword {vDUM}, {t0}, {srd(S_WD)}, 0 offen nt', dummy=1)
        a(f'v_mov_b32 {t0}, 0')
        a(f'buffer_load_dword {vDUM}, {t0}, {srd(S_OUT)}, 0 offen nt', dummy=1)
    stamp('set-up B', 3)
    a(f'''v_lshlrev_b32 {t0}, 8, {vL}
        v_lshl_add_u32 {t0}, {vN}, 4, {t0}
        v_add_u32 {aTR}, {sT1}, {t0}''')
    a.wait('K')
    for p in range(16):
        a(f'v_xor_b32 {(t0, t1)[p & 1]}, {16 * p}, {aTR}')
        a(f'ds_read_b128 {ar(A_K + 4 * p, 4)}, {(t0, t1)[p & 1]}', needs=('K',))
    a('s_waitcnt lgkmcnt(0)\ns_barrier')
    rstamp(4)
    a_loads()
    gu_batch(0, 12)
    a.wait('A')
    a_reduce(False)
    a.jmp('GA_CHECK')
    a.label('GA_PRE')
    ack()
    a.label('GA_ISSUE')
    a_loads()
    a('s_waitcnt vmcnt(4)')
    a.label('GA_RED')
    a_reduce(True)
    a.label('GA_CHECK')
    if P['sel']:
        retry('A', 'GA_RED', reload([(sP, lambda: gload(G[4], aASGET, '0'))] +
                                    [(sQ[q], lambda q=q: gload(G[q], aAGET, '0', 1024 * q)) for q in range(4)]))
    else:
        retry('A', 'GA_ISSUE')
    a(f'''v_fma_f32 {t0}, {ACC[0]}, {vRS}, -{vC1}
        v_cvt_pk_bf16_f32 {t1}, {t0}, {t0}
        ds_write_b16 {aQW}, {t1}''')
    dump(1, t0)
    stamp('q sum', 3)
    a(f'''s_waitcnt lgkmcnt(0)
        s_barrier
        ds_read_b64 {QA.t(2)}, {aQR}
        ds_read_b64 {(QA + 2).t(2)}, {aQR} offset:128''')
    stamp('q ready')
    lines(newmean_ops())

    def l1_mode():
        a(f'v_cmp_ne_u32 vcc, {sXCC}, {G[4] + 2}\ns_cmp_eq_u64 vcc, 0')
        if P['forceslow']:
            a(f's_cmp_eq_u32 {sW}, 77')
        a(f's_cselect_b32 s{S_F + 2}, {WS_USED:#x}, 0\ns_cselect_b32 s{S_S + 2}, 0, {WS_USED:#x}')
        pub('buffer_store_dword', vCQ, aAPUB, sCQ)
        for j in range(P['v0'], 16):
            kvdma(j, True)
    first_only('MODE', l1_mode)
    a('s_waitcnt lgkmcnt(0)')
    for j in range(32):
        m4(ACC[j % 3], (QA + 2 * (j >> 4)).t(2), ar(A_K + 2 * j, 2), j < 3, j & 15)
    a(f'''v_pk_add_f32 {Y.t(2)}, {ACC[2].t(2)}, {ACC[0].t(2)}
        v_pk_add_f32 {Y.t(2)}, {Y.t(2)}, {ACC[1].t(2)}''')
    dump(2, Y)
    stamp('scores', 3)
    lines(flat(ror_steps('v_max_f32', [PSV, PSV + 2], [Y, Y + 1]) + bcast_steps('v_max_f32', [PSV, PSV + 2])))
    a(f'''v_ceil_f32 {PSV}, {PSV}
        v_ceil_f32 {PSV + 2}, {PSV + 2}
        v_readlane_b32 {sR0}, {PSV}, 63
        v_readlane_b32 {sR1}, {PSV + 2}, 63
        v_subrev_f32 {Y}, {sR0}, {Y}
        v_subrev_f32 {Y + 1}, {sR1}, {Y + 1}
        v_exp_f32 {Y}, {Y}
        v_exp_f32 {Y + 1}, {Y + 1}
        v_cvt_pk_bf16_f32 {t0}, {Y}, {Y + 1}
        v_mov_b32_dpp {t1}, {t0} quad_perm:[1,0,3,2]{DPP}
        v_perm_b32 {PA}, {t1}, {t0}, {vSELH}
        v_mov_b32_dpp {PA + 1}, {PA} quad_perm:[2,3,2,3]{DPP}''')
    stamp('p ready')

    def v_group(grp):
        a.wait('V%d' % grp)
        for b in range(4 * grp, 4 * grp + 4):
            for eta in range(2):
                a(f'ds_read_b64_tr_b16 {ar(A_V + 4 * b + 2 * eta, 2)}, {aTR2 if eta else aTR} offset:{1024 * b}',
                  needs=('V%d' % grp,))

    def l1_pv():
        a.wait('GU', 'PS')
        a('s_barrier', needs=('GU',))
        w3_to('NOGU')
        a(f'''v_lshrrev_b32 {t0}, 2, {vN}
            v_mul_u32_u24 {t0}, 576, {t0}
            s_mul_i32 {sT0}, {sW}, 192
            v_add_u32 {t0}, {sT0}, {t0}
            v_and_b32 {t1}, 3, {vL}
            v_lshl_add_u32 {t2}, {vRow}, 2, {t1}
            v_lshl_add_u32 {aTR}, {t2}, 3, {t0}
            v_lshrrev_b32 {t2}, 1, {t2}
            v_lshl_add_u32 {t0}, {t2}, 3, {t0}
            v_and_b32 {t1}, 1, {vL}
            v_mul_u32_u24 {t1}, 20736, {t1}
            v_add_u32 {aTR2}, {t0}, {t1}''')
        for j in range(9):
            a(f'ds_read_b64_tr_b16 {ar(A_GU + 2 * j, 2)}, {aTR} offset:{2304 * j}')
            a(f'ds_read_b64_tr_b16 {ar(A_GU + 18 + 2 * j, 2)}, {aTR} offset:{20736 + 2304 * j}')
            a(f'ds_read_b64_tr_b16 {ar(A_GU + 36 + 2 * j, 2)}, {aTR2} offset:{128 + 2304 * j}')
        a('s_waitcnt lgkmcnt(0)')
        for j in range(9):
            for b in range(3):
                m4(ACC[b], ONE.t(2), ar(A_GU + 18 * b + 2 * j, 2), j == 0, 0)
        a(f'v_cvt_pk_bf16_f32 {PK2}, {ACC[0]}, {ACC[1]}\nv_cvt_pk_bf16_f32 {PK2 + 1}, {ACC[2]}, {vTD}')
        a.label('NOGU')
        pub('buffer_store_dwordx2', PK2.t(2), aDPUB, sCG)
        a(f'''v_lshrrev_b32 {t0}, 2, {vN}
            v_lshlrev_b32 {t1}, 2, {t0}
            v_bfe_u32 {t2}, {vL}, 1, 1
            v_lshl_add_u32 {t2}, {vRow}, 1, {t2}
            v_xor_b32 {t2}, {t2}, {t1}
            v_lshlrev_b32 {t0}, 8, {t0}
            v_lshl_add_u32 {t0}, {t2}, 4, {t0}
            v_and_b32 {t1}, 1, {vL}
            v_lshl_add_u32 {t0}, {t1}, 3, {t0}
            s_add_u32 {sT0}, {sT1}, {L_V}
            v_add_u32 {aTR}, {sT0}, {t0}
            v_xor_b32 {aTR2}, 128, {aTR}''')
        tall_base()
        for k in range(5):
            tall_dma(S_WO, L_WO, k, 'WO')

        for grp in range(P['pvsplit']):
            v_group(grp)
        a('s_waitcnt lgkmcnt(0)')
    first_only('PV', l1_pv)
    ls = flat(ror_steps('v_add_f32', [PSV + 1, PSV + 3], [Y, Y + 1]) + bcast_steps('v_add_f32', [PSV + 1, PSV + 3]))
    ls.append(f'ds_write2_b32 {aPSW}, {PSV}, {PSV + 1} offset0:0 offset1:4')
    ls.append(f'ds_write2_b32 {aPSW}, {PSV + 2}, {PSV + 3} offset0:8 offset1:12')

    def pv(lo, hi):
        for b in range(lo, hi):
            for eta in range(2):
                m4(ACC[2 * (b & 1) + eta], PA.t(2), ar(A_V + 4 * b + 2 * eta, 2), b < 2, b)
                if ls:
                    a(ls.pop(0))

    def pv_tail():
        pv(4 * P['pvsplit'], 16)
        a(f'''v_pk_add_f32 {PO.t(2)}, {ACC[0].t(2)}, {ACC[2].t(2)}
            v_pk_add_f32 {(PO + 2).t(2)}, {ACC[1].t(2)}, {ACC[3].t(2)}
            ds_write2st64_b32 {aPOW}, {PO}, {PO + 1} offset0:0 offset1:8
            ds_write2st64_b32 {aPOW}, {PO + 2}, {PO + 3} offset0:4 offset1:12''')

    def l1_pv2():
        for grp in range(P['pvsplit'], 4):
            v_group(grp)
        a('s_waitcnt lgkmcnt(0)')
        stamp('V ready', 3)
        rstamp(3)
        if P['pv2dup']:
            pv_tail()
    pv(0, 4 * P['pvsplit'])
    assert not ls
    first_only('PV2', l1_pv2, 'PV_DONE' if P['pv2dup'] else None)
    pv_tail()
    a.label('PV_DONE')
    stamp('PV done', 3)
    a(f'''s_waitcnt lgkmcnt(0)
        s_barrier
        ds_read_b128 {PS.t(4)}, {aPSR}
        ds_read2st64_b32 {PO.t(2)}, {aPOR} offset0:0 offset1:1
        ds_read2st64_b32 {(PO + 2).t(2)}, {aPOR} offset0:2 offset1:3
        ds_read_b128 {(PS + 4).t(4)}, {aPSR} offset:16
        s_waitcnt lgkmcnt(3)
        v_max3_f32 {BST}, {PS}, {PS + 1}, {PS + 2}
        v_max_f32 {BST}, {BST}, {PS + 3}''')
    lines([f'v_sub_f32 {PS + q}, {PS + q}, {BST}' for q in range(4)])
    lines([f'v_exp_f32 {PS + q}, {PS + q}' for q in range(4)])
    a(f's_waitcnt lgkmcnt(0)\nv_mul_f32 {t0}, {PS}, {PO}')
    lines([f'v_fmac_f32 {t0}, {PS + q}, {PO + q}' for q in range(1, 4)])
    a(f'v_cvt_pk_bf16_f32 {t2}, {vTAB}, {t0}')
    pub_f('buffer_store_dword', t2, aAPUB, sBD)
    a(f'v_mul_f32 {BST + 1}, {PS}, {PS + 4}')
    lines([f'v_fmac_f32 {BST + 1}, {PS + q}, {PS + 4 + q}' for q in range(1, 4)])
    pub_f('buffer_store_dwordx4', BST.t(4), aBSPUB, '0')
    pub_s('buffer_store_dword', t2, aAPUB, sBD)
    pub_s('buffer_store_dwordx4', BST.t(4), aBSPUB, '0')
    dump(3, t0)
    stamp('B pub')
    rstamp(0)
    skip_l2('GB_PRE')
    if P['pd'] == 4:
        a(f's_lshl_b32 {sT0}, {sG}, 4\ns_add_u32 {sT0}, {sT0}, {sI}\ns_mul_i32 {sT0}, {sT0}, 20736')
        mk_srd(S_X, 20, sT0, 20736)
        a(f'v_lshlrev_b32 {aGU[0]}, 7, v0')
    tall_addr(L_WO)
    a.wait('WO')
    stamp('wo own', 3)
    a('s_barrier', needs=('WO',))
    tall_tr(8, A_WO)
    a.label('GB_PRE')
    ack()
    a.label('GB_ISSUE')
    b_loads()
    a('s_waitcnt vmcnt(4)')
    a.label('GB_RED')
    b_reduce(True)
    a.label('GB_CHECK')
    if P['sel']:
        retry('B', 'GB_RED', reload([(sP, lambda: gload(G[4], aBSGET, '0'))] +
                                    [(sQ[q], lambda q=q: gload(G[q], aAGET, sBD, 1024 * q)) for q in range(4)]))
    else:
        retry('B', 'GB_ISSUE')
    a(f'''v_mul_f32 {t0}, {ACC[0]}, {vE1}
        v_cvt_pk_bf16_f32 {t1}, {t0}, {t0}
        ds_write_b16 {aOW}, {t1}
        v_mov_b32 {ACC[1]}, 0
        v_mov_b32 {ACC[1] + 1}, 0''')
    if P['pd'] == 4:
        skip_l2('NOPD')
        a(f'buffer_load_dword {vDUM}, {aPB + 0 if False else aGU[0]}, {srd(S_X)}, 0 offen', dummy=1)
        a.label('NOPD')
    dump(4, t0)
    stamp('o sum', 3)
    w3_to('W3_C')
    a('s_waitcnt lgkmcnt(0)\ns_barrier')
    stamp('o ready')
    tall_stage(A_WO, 0, False)
    dump(5, t0)
    stamp('C pub')
    rstamp(2)
    skip_l2('C_WAIT')
    if P['pd'] == 7:
        a(f's_lshl_b32 {sT0}, {sG}, 4\ns_add_u32 {sT0}, {sT0}, {sI}\ns_mul_i32 {sT0}, {sT0}, 20736')
        mk_srd(S_X, 20, sT0, 20736)
        a(f'v_lshlrev_b32 {aGU[0]}, 7, v0')
    if P['xbar'] and not P['xack1']:
        a('s_barrier')
    cg_loads()
    if P['pd'] == 7:
        a(f'buffer_load_dword {vDUM}, {aGU[0]}, {srd(S_X)}, 0 offen', dummy=1)
    if P['wd_at'] == 1:
        wd_pieces()
    if P['xbar'] and P['xack1']:
        a.wait('XP')
        a('s_barrier')
    a.wait('CG')
    cg_reduce('CG')
    if P['dnl1']:
        tall_addr(L_WD)
    a.jmp('C_BAR')
    a.label('C_WAIT')
    if P['xbar']:
        a.wait('XP')
        a('s_barrier')
    a.label('C_BAR')
    a(f's_barrier\nds_read_b64 {XQ.t(2)}, {aXQR}')
    a(f's_add_u32 {sSLOT}, {sSLOT}, 0x20000\ns_waitcnt lgkmcnt(0)')
    for j in range(9):
        for b in range(3):
            m4(ACC[b], XQ.t(2), ar(A_GU + 18 * b + 2 * j, 2), j == 0, j)
    a(f'v_cvt_pk_bf16_f32 {PK2}, {ACC[0]}, {ACC[1]}\nv_cvt_pk_bf16_f32 {PK2 + 1}, {ACC[2]}, {vTD}')
    pub('buffer_store_dwordx2', PK2.t(2), aDPUB, '0')
    dump(6, ACC[0])
    stamp('D pub')
    if not P['dnl1']:
        skip_l2('GD_ACK')
    a.label('GD_L1')
    if not P['dnl1']:
        tall_addr(L_WD)
        a('s_waitcnt vmcnt(0)')
        stamp('wd own', 3)
        a('s_barrier', needs=('WD',))
        stamp('wd all', 3)
        tall_tr(9, A_WD)
    a.label('GD_ACK')
    if P['dbar']:
        skip_l1('GD_ISSUE')
        a('s_waitcnt vmcnt(0)\ns_barrier')
        if P['ddelay']:
            a('s_sleep %d' % P['ddelay'])
    elif not P['dnl1']:
        ack()
    elif P['ackwait']:
        skip_l1('GD_ISSUE')
        a('s_waitcnt vmcnt(0)')
    a.label('GD_ISSUE')
    d_loads()
    a.label('GD_WAIT')
    lo = ln_ops(G[6])
    a(f's_waitcnt vmcnt(6)\nv_cmp_ne_u32 {sP}, {sT}, {G[6] + 3}')
    lines(lo[0])
    a('s_waitcnt vmcnt(5)')
    m16(ACC[1], SELD.t(4), G[4].t(4), '0')
    lines(lo[1])
    a('s_waitcnt vmcnt(4)')
    m16(ACC[1], SELD.t(4), G[5].t(4), ACC[1].t(4))
    chk2(G[4], G[5], 0) if P['sel'] else chk_d(G[4], G[5], True)
    lines(lo[2])
    a('s_waitcnt vmcnt(3)')
    m16(ACC[0], SELD.t(4), G[0].t(4), '0')
    lines(lo[3])
    a('s_waitcnt vmcnt(2)')
    m16(ACC[0], SELD.t(4), G[1].t(4), ACC[0].t(4))
    if P['sel']:
        a(f's_or_b64 vcc, {sP}, {sQ[0]}')
    chk2(G[0], G[1], 1) if P['sel'] else chk_d(G[0], G[1], False)
    lines(lo[4] + lo[5] + lo[6])
    a('s_waitcnt vmcnt(1)')
    m16(ACC[0], SELD.t(4), G[2].t(4), ACC[0].t(4))
    a(f'''v_add_f32_dpp {t4}, {ACC[1]}, {ACC[1]} row_ror:8{DPP}
        v_add_f32_dpp {t5}, {ACC[1] + 1}, {ACC[1] + 1} row_ror:8{DPP}
        v_mul_f32 {vRS}, {vRS}, {vRS}
        s_waitcnt vmcnt(0)''')
    m16(ACC[0], SELD.t(4), G[3].t(4), ACC[0].t(4))
    if P['sel']:
        a(f's_or_b64 vcc, vcc, {sQ[1]}')
        chk2(G[2], G[3], 2)
    else:
        chk_d(G[2], G[3], False)
        a(f'v_cmp_lt_u32 vcc, 0xffff, {vE2}')
    a(f'''v_fma_f32 {t4}, -{vDM}, {CSG + 2}, {t4}
        v_fma_f32 {t5}, -{vDM}, {CSG + 3}, {t5}
        s_or_b64 vcc, vcc, {sQ[2] if P['sel'] else sP}''')
    if P['sel']:
        retry('D', 'GD_WAIT', reload([(sP, lambda: gload(G[6], aASGET, sDS)),
                                      (sQ[0], lambda: (gload(G[4], aDG2, '0'), gload(G[5], aDG2, '0', 1536))),
                                      (sQ[1], lambda: (gload(G[0], aDG1, '0'), gload(G[1], aDG1, '0', 1536))),
                                      (sQ[2], lambda: (gload(G[2], aDG1b, '0'), gload(G[3], aDG1b, '0', 1536)))]))
    else:
        retry('D', 'GD_ISSUE')
    a(f'''v_mul_f32 {t4}, {t4}, {vRS}
        v_mul_f32 {t4}, {t4}, {t5}
        v_fma_f32 {t0}, -{vDM}, {CSG}, {ACC[0]}
        v_fma_f32 {t1}, -{vDM}, {CSG + 1}, {ACC[0] + 1}
        v_mul_f32 {t0}, {t0}, {vRS}
        v_mul_f32 {t0}, {t0}, {t1}
        v_cvt_pk_bf16_f32 {t1}, {t0}, {t4}
        ds_write_b16 {aHW1}, {t1}
        ds_write_b16_d16_hi {aHW2}, {t1}''')
    dump(7, t0)
    stamp('h sum', 3)
    w3_to('W3_E')
    a('s_waitcnt lgkmcnt(0)\ns_barrier')
    stamp('h ready')
    if P['dnl1']:
        skip_l1('DN_FIRST')
    tall_stage(A_WD, L_H - L_O, True)
    dump(8, t0)
    stamp('E pub')
    rstamp(1)
    skip_l2('E_LAST')
    cq_loads()
    if P['xbar']:
        a('s_waitcnt vmcnt(4)\ns_barrier')
    a('s_waitcnt vmcnt(0)')
    cq_reduce('CQ')
    a(f's_add_u32 {sSLOT}, {sSLOT}, 0x20000')
    set_tags()
    if P['dry']:
        a(f's_cmp_lg_u32 {sW}, 0')
        a.br('s_cbranch_scc1', 'DRY_DONE', lambda c: c['wave'] != 0)
        if P['dry'] & 1:
            a.jmp('W3_OUT')
        a.label('DRY_OUT')
        if P['dry'] & 2:
            a(f's_mov_b32 {sDRY}, 1')
            a.act(lambda c: c.__setitem__('dry', True))
            a.jmp('GA_PRE')
        a.label('DRY_DONE')
    setlayer2()
    if P['qall']:
        a.jmp('Q_ENTRY')
    else:
        a.label('Q_ENTRY')
        a(f's_barrier\nds_read_b64 {XQ.t(2)}, {aXQR}')
        a.jmp('Q_JOIN')
    a.label('E_LAST')
    if P['xbar']:
        a('s_waitcnt vmcnt(0)\ns_barrier')
    a.jmp('FINISH')

    a.label('W3_C')
    a('s_waitcnt lgkmcnt(0)\ns_barrier')
    skip_l2('W3_C2')
    cg_loads()
    if P['pd'] == 3:
        a(f's_lshl_b32 {sT0}, {sG}, 4\ns_add_u32 {sT0}, {sT0}, {sI}\ns_mul_i32 {sT0}, {sT0}, 20736')
        mk_srd(S_X, 20, sT0, 20736)
        if P['pform'] == 0:
            a(f'v_lshlrev_b32 {t0}, 6, {vL}')
            for k in range(6):
                a(f's_mov_b32 {sT0}, {4096 * k}')
                a(f'buffer_load_dword {vDUM}, {t0}, {srd(S_X)}, {sT0} offen', dummy=1)
        elif P['pform'] == 1:
            a(f'v_lshlrev_b32 {t0}, 7, {vL}')
            for k in range(3):
                a(f's_mov_b32 {sT0}, {8192 * k}')
                a(f'buffer_load_dword {vDUM}, {t0}, {srd(S_X)}, {sT0} offen' + (' nt' if P['pnt'] else ''), dummy=1)
        else:
            a(f'v_lshlrev_b32 {t0}, 4, {vL}')
            for k in range(21):
                a(f's_mov_b32 m0, {L_K + 1024 * k}\ns_mov_b32 {sT0}, {1024 * k}')
                a(f'buffer_load_dwordx4 {t0}, {srd(S_X)}, {sT0} offen lds')
    if P['wd_at'] == 1:
        wd_pieces()
    if P['pd'] in (5, 6):
        pd_setup()
    a.wait('CG')
    stamp('cg w3', 3)
    cg_reduce('CH')
    if P['pd'] == 5:
        a('s_barrier')
        pd_loads()
        a.jmp('W3_C3')
    if P['pd'] == 6:
        a('s_barrier')
        for q in range(4):
            gload(G[q], aXGET, sSLOT, 256 * q, 'XG')
        pd_loads()
        a.wait('XG')
        for q in range(4):
            m16(XC, SELX.t(4), G[q].t(4), CI.t(4) if q == 0 else XC.t(4))
            if q & 1:
                a(f'v_bitop3_b32 {(t0, t1)[q >> 1]}, {G[q - 1] + 3}, {G[q] + 3}, {sTX} bitop3:0x7e')
        a.jmp('GX_TAIL_C')
    a.label('W3_C2')
    if P['xbar']:
        a('s_barrier')
    a.label('W3_C3')
    stamp('C poll', 3)
    xgather('C')
    xq_write()
    so = stats_ops()
    lines(so[:9])
    a('s_waitcnt lgkmcnt(0)')
    a('s_barrier')
    stamp('x1 ready')
    lines(so[9:])
    pub('buffer_store_dwordx4', ST.t(4), aASPUB, sDS)
    a(f's_add_u32 {sSLOT}, {sSLOT}, 0x20000')
    dump(9, XC)
    lines(resid_ops())
    skip_l2('W3_EPOCH')
    for k in range(23):
        a(f's_mov_b32 m0, {L_WD + 1024 * k}\ns_mov_b32 {sT0}, {(k // 5) * 64 * 1152}')
        a(f'buffer_load_dwordx4 {aTL[k % 5]}, {srd(S_WD)}, {sT0} offen{" nt" if P["tnt"] else ""} lds', fills='WD')
    a.jmp('GD_L1')
    a.label('W3_EPOCH')
    a('s_cmp_lg_u32 s2, 0')
    a.br('s_cbranch_scc1', 'GD_ACK', lambda c: not c['final'])
    a(f'''v_mov_b32 {t0}, 0
        s_mov_b64 exec, 1
        buffer_store_dword {ST + 3}, {t0}, {srd(S_W)}, 0 offen
        s_mov_b64 exec, -1''')
    a.jmp('GD_ACK')

    if P['dnl1']:
        a.label('DN_FIRST')
        tall_first(9, A_WD, L_H - L_O)
        a.jmp('DN_JOIN')
    if not P['outinl']:
        a.label('W3_OUT')
        out_ops()
    a.label('FINISH')
    if P['hold']:
        rstamp(5)
        a(f's_mul_i32 s11, s11, 10\ns_add_u32 s11, s11, {P["hold"]}')
        a.label('HOLD')
        a(f's_memrealtime {sTS}\ns_waitcnt lgkmcnt(0)\ns_sub_u32 {sT0}, {sTSlo}, s3\ns_cmp_lt_u32 {sT0}, s11')
        a.br('s_cbranch_scc1', 'HOLD', lambda c: False)
    if P['stamps']:
        stamp('end', 1)
        a(f'''s_memrealtime {sTS}
            s_waitcnt lgkmcnt(0)
            v_writelane_b32 {vTS}, {sTSlo}, 31
            v_writelane_b32 {vTS}, {sRC}, 62
            s_mov_b32 {sT3}, {OFF_DBG:#x}
            buffer_store_dword {vTS}, {aDM}, {srd(S_W)}, {sT3} offen''')
    a.label('END')
    a('s_endpgm')
    for name, body, back in ool:
        a.label('L1_' + name)
        body()
        a.jmp(back)
    for tag, issue, reissue in retry_blocks:
        a.label('RETRY_' + tag)
        if tag == 'A' and P['dry'] & 2:
            a(f's_cmp_lg_u32 {sDRY}, 0\ns_mov_b32 {sDRY}, 0')
            a.br('s_cbranch_scc1', 'DRY_DONE', lambda c: c.pop('dry', False))
        if P['stamps'] >= 2 and len(tag) == 1:
            a(f's_add_u32 {sRC}, {sRC}, {1 << (6 * "ABCDE".index(tag))}')
        a(f's_sub_u32 {sBUD}, {sBUD}, 1')
        if reissue:
            a.br('s_cbranch_scc1', 'GIVEUP_' + tag, lambda c: False)
            reissue()
            a.jmp(issue)
            a.label('GIVEUP_' + tag)
        else:
            a.br('s_cbranch_scc0', issue, lambda c: True)
        a(f's_mov_b32 {sBUD}, 0')
        a.jmp('CONT_' + tag)
    a.label('CODE_END')

    ctxs = []
    for w in (0, 1, 3):
        for fin in (True, False):
            for rt in (False, True):
                ctxs.append(lambda w=w, fin=fin, rt=rt: dict(layer=0, wave=w, final=fin, retry=rt,
                                                              name='w%d fin%d retry%d' % (w, fin, rt)))
    a.resolve_waits(ctxs)
    a.fix_hazards(ctxs)
    errs = a.check_waits(ctxs)
    return a, errs, v.n, names


HEADER = '''; Persistent decode kernel: 256 workgroups (one per CU) keep K, V and all weights on chip for both layers.
; @launch grid=(256,1,1) block=(256,1,1) lds=%d
.amdgcn_target "amdgcn-amd-amdhsa--gfx950"
.text
.globl %s
.p2align 8
.type %s,@function
%s:
'''
FOOTER = '''.section .rodata,"a"
.p2align 6
.amdhsa_kernel %s
  .amdhsa_next_free_vgpr 512
  .amdhsa_next_free_sgpr 102
  .amdhsa_accum_offset 256
  .amdhsa_group_segment_fixed_size 0
  .amdhsa_kernarg_size 96
  .amdhsa_user_sgpr_count 2
  .amdhsa_user_sgpr_kernarg_segment_ptr 1
  .amdhsa_system_sgpr_workgroup_id_x 1
.end_amdhsa_kernel
'''


def render(**kw):
    a, errs, nv, names = build(**kw)
    txt = HEADER % (LDS_BYTES, KNAME, KNAME, KNAME) + a.text() + FOOTER % KNAME
    if names:
        txt = '; stamps: ' + ','.join(names) + '\n' + txt
    return txt, a, errs, nv, names


if __name__ == '__main__':
    out = sys.argv[1]
    kw = {}
    for s in sys.argv[2:]:
        k, x = s.split('=')
        kw[k] = x if k == 'only' else int(x)
    txt, a, errs, nv, names = render(**kw)
    for e in sorted(set(errs)):
        print('WAIT ERROR', e)
    open(out, 'w').write(txt)
    print('vgprs', nv, 'lds', LDS_BYTES, 'pads', sum(p for p, _ in a.pads()))
    if errs:
        sys.exit(1)
```

```python
import sys
from asmlib import Asm

KNAME = 'interleave_layers__sliding_block_cached__glu_gated_bilinear__decode_kernel'

DEFAULTS = dict(
    ka=5,
    kb=5,
    v0=4,
    tnt=1,
    codepf=2,
    near=1,
    pv2dup=0, stfirst=1, oolmask=15, outinl=0, qall=0, x4=0, only='',
    pvsplit=3,
    stamps=0, dump=0, forceslow=0, amp=-1, amp0=-1, hold=0, touch=0,
)

OFF_AD, OFF_CQ, OFF_BD = 0x1000, 0x41000, 0x81000
OFF_DD, OFF_CG = 0xC1000, 0x121000
OFF_AS, OFF_DS, OFF_BS = 0x181000, 0x182000, 0x183000
OFF_X = 0x200000
WS_USED = 0x2A0000
OFF_DBG = 0x300000
WS_SRD = 0x1000000
OOB = 0x80000000
L_K, L_V = 0, 65536
L_GU, L_WD = 0, 65536
L_X = 131072
L_ONE = L_X + 128
L_ZERO = L_X + 144
L_Q = L_X + 192
L_O = L_Q + 512
L_H = L_O + 512
L_PS = L_H + 640
L_DUM = L_PS + 64
L_PO = (L_DUM + 1024 + 255) // 256 * 256
L_WQ = L_PO + 4096
L_WO = L_WQ
LDS_BYTES = L_WO + 20480 + 256
assert 81920 < LDS_BYTES <= 163840

S_K, S_V, S_WQ, S_WO, S_WG, S_WU, S_WD, S_X, S_OUT, S_W, S_F, S_S = range(28, 76, 4)
(sW, sG, sI, sROT, sT, sThi, sTsh, sLAY, sBUD, sXCC, sCQ, sBD, sDS, sCG, sSLOT,
 sR0, sR1, sT0, sT1, sT2, sT3, sE) = ['s%d' % n for n in range(76, 98)]
sM9, sP = 's[98:99]', 's[100:101]'
sQ = ['s[16:17]', 's[18:19]', 's[22:23]', 's[24:25]']
sFF, sDRY = 's15', 's12'
sC, sINV, sHIM, sRC, sTS, sTSlo, sTX, sTXh = 's4', 's5', 's6', 's7', 's[8:9]', 's8', 's10', 's14'
A_K, A_V, A_GU, A_WO, A_WD = 0, 64, 128, 184, 216
DPP = ' row_mask:0xf bank_mask:0xf'


def srd(b):
    return 's[%d:%d]' % (b, b + 3)


class R(int):
    def __str__(self):
        return 'v%d' % int(self)
    __format__ = lambda self, spec: str(self)

    def __add__(self, o):
        return R(int(self) + o)

    def t(self, k):
        return 'v[%d:%d]' % (int(self), int(self) + k - 1)


def ar(b, k):
    return 'a[%d:%d]' % (b, b + k - 1)


class V:
    def __init__(self):
        self.n = 1

    def __call__(self, k=1, al=1):
        if k > 1:
            al = max(al, 2)
        self.n = (self.n + al - 1) // al * al
        r = self.n
        self.n += k
        assert self.n <= 256
        return R(r)


def build(**kw):
    P = dict(DEFAULTS)
    for k in kw:
        assert k in P, k
    P.update(kw)
    P.update({'pretouch': 1, 'prewrite': 1, 'tlbpf': 0, 'ackwait': 1, 'xbar': 1, 'xdelay': 0, 'v2': 16, 'wo_at': 0, 'po': 0, 'pd': 3, 'wd_at': 2, 'pnt': 0, 'probe': 1, 'xack1': 0, 'pform': 1, 'dnl1': 0, 'dbg_fast0': 0, 'early': 1, 'prestore': 0, 'adelay': 0, 'dbar': 1, 'ddelay': 0, 'sel': 0, 'dry': 0})
    a = Asm()
    v = V()
    L1 = lambda c: c['layer'] == 0
    L2 = lambda c: c['layer'] == 1
    W3 = lambda c: c['wave'] == 3
    NW3 = lambda c: c['wave'] != 3

    vL, vRow, vN = v(), v(), v()
    t0, t1, t2, t3, t4, t5, vSINK, vOOB = [v() for _ in range(8)]
    (aXQR, aAPUB, aAGET, aASGET, aASPUB, aBSGET, aBSPUB, aQW, aQR, aPOW, aPOR, aPSW, aPSR, aOR, aXPUB,
     aXGET, aXQW, aDPUB, aDG1, aDG1b, aDG2, aHW1, aHW2, aOUT) = [v() for _ in range(24)]
    SEL4, MASK4, SELX, SELD = v(4, 4), v(4, 4), v(4, 4), v(4, 4)
    vSELH, vTAB, vTD, vEPS, vMP, t6 = v(), v(), v(), v(), v(), v()
    XG, ST, BST, PSV = v(4, 4), v(4, 4), v(4, 4), v(4, 4)
    vTAX, vIDX, aOW, aOD, vC1 = v(), v(), v(), v(), v()
    WQ = v(18, 2)
    XQ, QA, PA, ONE = v(2), v(4, 2), v(2), v(2)
    ACC = [v(4, 4) for _ in range(4)]
    G = [v(4, 4) for _ in range(7)]
    OP = v(24, 4)
    G2 = [OP + 4 * q for q in range(6)]
    AW = [OP + 4 * q for q in range(4)]
    XC, XR, CI = v(4, 4), v(4, 4), v(4, 4)
    CSQ, CSG = v(), v(4, 2)
    Y, PK2 = v(2), v(2)
    PO, PS = v(4, 2), v(8, 4)
    vDM, vRS, vE0, vE1, vE2 = v(), v(), v(), v(), v()
    aK = [v() for _ in range(4)]
    aV, aWQ, aTR, aTR2, aDM = v(), v(), v(), v(), v()
    aGU = [v() for _ in range(2)]
    aTL = [v() for _ in range(6)]
    vCQ, aPB = v(), v()
    vTS, vDUM = v(), v()
    names = []

    def lines(xs):
        for x in xs:
            a(x)

    def stamp(name, level=2):
        if P['stamps'] < level or (P['only'] and name != 'end' and name not in P['only'].split(',')):
            return
        k = len(names)
        names.append(name)
        assert k < 30
        a(f'''s_memtime {sTS}
            s_lshl_b32 {sT3}, {sLAY}, 5
            s_add_u32 m0, {sT3}, {k}
            s_waitcnt lgkmcnt(0)
            v_writelane_b32 {vTS}, {sTSlo}, m0''')

    def rstamp(k):
        if P['amp0'] in (k, k + 8):
            a(f's_cmp_lg_u32 {sLAY}, {P["amp0"] >> 3}')
            a.br('s_cbranch_scc1', 'AMQ%d' % k, lambda c: c['layer'] != P['amp0'] >> 3)
            a(f's_memrealtime {sTS}\ns_waitcnt lgkmcnt(0)\ns_mov_b32 s13, {sTSlo}')
            a.label('AMQ%d' % k)
        if P['amp'] in (k, k + 8):
            a(f's_cmp_lg_u32 {sLAY}, {P["amp"] >> 3}')
            a.br('s_cbranch_scc1', 'AMP%d' % k, lambda c: c['layer'] != P['amp'] >> 3)
            a(f's_memrealtime {sTS}\ns_waitcnt lgkmcnt(0)\ns_sub_u32 s11, {sTSlo}, {"s13" if P["amp0"] >= 0 else "s3"}')
            a.label('AMP%d' % k)
        if P['stamps'] != 1:
            return
        a(f'''s_memrealtime {sTS}
            s_lshl_b32 {sT3}, {sLAY}, 3
            s_add_u32 m0, {sT3}, {40 + k}
            s_waitcnt lgkmcnt(0)
            v_writelane_b32 {vTS}, {sTSlo}, m0''')

    def estamp(name):
        if P['stamps'] < 3 or P['only']:
            return
        k = len(names)
        names.append(name)
        a(f's_memtime s[86:87]\ns_waitcnt lgkmcnt(0)\nv_writelane_b32 {vTS}, s86, {k}')

    def dump(idx, reg):
        if not P['dump']:
            return
        a(f'''s_lshl_b32 {sT3}, {sLAY}, 18
            s_add_u32 {sT3}, {sT3}, {OFF_DBG + 0x100000 + idx * 0x80000:#x}
            buffer_store_dword {reg}, {aDM}, {srd(S_W)}, {sT3} offen
            s_waitcnt vmcnt(0)''')

    def mk_srd(b, ptr, off, size):
        if off is None:
            a(f's_mov_b32 s{b}, s{ptr}\ns_and_b32 s{b + 1}, s{ptr + 1}, 0xffff')
        else:
            a(f's_add_u32 s{b}, s{ptr}, {off}\ns_addc_u32 s{b + 1}, s{ptr + 1}, 0\ns_and_b32 s{b + 1}, s{b + 1}, 0xffff')
        a(f's_mov_b32 s{b + 2}, {size:#x}\ns_mov_b32 s{b + 3}, 0x20000')

    def pub(op, data, addr, soff):
        a(f'{op} {data}, {addr}, {srd(S_F)}, {soff} offen')
        a(f'{op} {data}, {addr}, {srd(S_S)}, {soff} offen sc1')

    def pub_f(op, data, addr, soff):
        a(f'{op} {data}, {addr}, {srd(S_F)}, {soff} offen')

    def pub_s(op, data, addr, soff):
        a(f'{op} {data}, {addr}, {srd(S_S)}, {soff} offen sc1')

    def gload(dst, addr, soff, off=0, tag=None):
        a(f'buffer_load_dwordx4 {dst.t(4)}, {addr}, {srd(S_W)}, {soff} offen' + (f' offset:{off}' if off else '') + ' sc1', tag=tag)

    retry_blocks = []

    def retry(tag, issue_label, reissue=None):
        def taken(c):
            k = (tag, c['layer'])
            if tag == 'A' and c.get('dry'):
                return True
            if c.get('retry') and k not in c.setdefault('_done', set()):
                c['_done'].add(k)
                return True
            return False
        a.br('s_cbranch_scc1', 'RETRY_' + tag, taken)
        a.label('CONT_' + tag)
        retry_blocks.append((tag, issue_label, reissue))

    def skip_l2(label):
        a(f's_cmp_lg_u32 {sLAY}, 0')
        a.br('s_cbranch_scc1', label, L2)

    def ack():
        if P['ackwait']:
            a('s_waitcnt vmcnt(0)')
        if P['adelay']:
            a('s_sleep %d' % P['adelay'])

    ool = []
    stubs = [0]

    def stub():
        if P['touch']:
            stubs[0] += 1
            a.label('TOUCH%d' % stubs[0])
            a.jmp('TOUCH%d' % (stubs[0] + 1))

    def first_only(name, body, back=None):
        if not P['oolmask'] >> ['WQ', 'MODE', 'PV', 'PV2'].index(name) & 1:
            skip_l2('BACK_' + name)
            body()
            a.label('BACK_' + name)
            return
        skip_l1('L1_' + name)
        if back is None:
            back = 'BACK_' + name
            a.label(back)
        ool.append((name, body, back))

    def skip_l1(label):
        a(f's_cmp_eq_u32 {sLAY}, 0')
        a.br('s_cbranch_scc1', label, L1)

    def w3_to(label):
        a(f's_cmp_eq_u32 {sW}, 3')
        a.br('s_cbranch_scc1', label, W3)

    def wave16k():
        a(f's_lshl_b32 {sT1}, {sW}, 14')

    def kvdma(j, isv):
        a(f'''s_add_u32 m0, {sT1}, {(L_V if isv else L_K) + 1024 * j}
            s_add_u32 {sT0}, {sROT}, {j << 12}
            s_and_b32 {sT0}, {sT0}, 0xf000''')
        if isv:
            a(f'buffer_load_dwordx4 {aV}, {srd(S_V)}, {sT0} offen nt lds', fills='V%d' % (j // 4))
        else:
            a(f'buffer_load_dwordx4 {aK[j & 3]}, {srd(S_K)}, {sT0} offen nt lds', fills='K')

    def tall_base():
        a(f's_mul_i32 {sT2}, {sW}, 5120\ns_mul_i32 {sT3}, {sW}, {64 * 1152}')

    def tall_dma(S, region, k, fills):
        if k < 5:
            a(f's_add_u32 m0, {sT2}, {region + 1024 * k}')
            a(f'buffer_load_dwordx4 {aTL[k]}, {srd(S)}, {sT3} offen{" nt" if P["tnt"] else ""} lds', fills=fills)
        else:
            a(f's_lshl_b32 {sT0}, {sW}, 10\ns_add_u32 m0, {sT0}, {region + 20480}')
            a(f'buffer_load_dwordx4 {aTL[5]}, {srd(S)}, 0 offen{" nt" if P["tnt"] else ""} lds', fills=fills)

    def prefetch(ptr, size):
        a(f's_lshl_b32 {sT0}, {sG}, 4\ns_add_u32 {sT0}, {sT0}, {sI}\ns_mul_i32 {sT0}, {sT0}, {size}')
        mk_srd(S_X, ptr, sT0, size)
        a(f'v_lshlrev_b32 {t0}, 6, v0\ns_mov_b32 {sT0}, 16384')
        nt = ' nt' if P['pnt'] else ''
        a(f'buffer_load_dword {vDUM}, {t0}, {srd(S_X)}, 0 offen{nt}', dummy=1)
        a(f'buffer_load_dword {vDUM}, {t0}, {srd(S_X)}, {sT0} offen{nt}', dummy=1)

    def pd_setup():
        a(f's_lshl_b32 {sT0}, {sG}, 4\ns_add_u32 {sT0}, {sT0}, {sI}\ns_mul_i32 {sT0}, {sT0}, 20736')
        mk_srd(S_X, 20, sT0, 20736)
        a(f'v_lshlrev_b32 {aGU[0]}, 7, {vL}')

    def pd_loads():
        for k in range(3):
            a(f's_mov_b32 {sT0}, {8192 * k}')
            a(f'buffer_load_dword {vDUM}, {aGU[0]}, {srd(S_X)}, {sT0} offen', dummy=1)

    def wd_pieces():
        tall_base()
        for k in range(6):
            tall_dma(S_WD, L_WD, k, 'WD')

    def gu_batch(lo, hi):
        if hi > lo:
            a(f's_mul_i32 {sT2}, {sW}, 5184\ns_mov_b32 exec_hi, 0x3fffff')
            for k in range(lo, hi):
                gudma(k)
            a('s_mov_b32 exec_hi, -1')

    def gudma(k):
        j, mu = k >> 1, k & 1
        a(f's_add_u32 m0, {sT2}, {L_GU + 20736 * mu + 864 * j}\ns_mov_b32 {sT0}, {(j >> 1) * 3 * 9216}')
        a(f'buffer_load_dwordx4 {aGU[j & 1]}, {srd(S_WU if mu else S_WG)}, {sT0} offen nt lds', fills='GU')

    def set_tags():
        a(f'''s_and_b32 {sT}, {sT}, 0x1fff1fff
            s_add_u32 {sT}, {sT}, 0x10001
            s_and_b32 {sT}, {sT}, 0x1fff1fff
            s_or_b32 {sT}, {sT}, 0x20002000
            s_lshr_b32 {sThi}, {sT}, 16
            s_lshl_b32 {sTsh}, {sT}, 16
            s_and_b32 {sT0}, {sT}, 0xffff0000
            v_mov_b32 {t0}, {sTsh}
            v_mov_b32 {t1}, {sT0}
            s_mov_b32 vcc_lo, 0x55555555
            s_mov_b32 vcc_hi, 0x55555555
            v_cndmask_b32 {vTAB}, {t1}, {t0}, vcc
            s_mov_b32 vcc_lo, 0x0f0f0f0f
            s_mov_b32 vcc_hi, 0x0f0f0f0f
            v_cndmask_b32 {vTD}, {t1}, {t0}, vcc
            v_mov_b32 {ST + 3}, {sT}
            v_mov_b32 {BST + 3}, {sT}''')

    def ror_steps(op, regs, first_src=None):
        out = []
        for k, sh in enumerate((8, 4, 2, 1)):
            grp = []
            for q, r in enumerate(regs):
                s = first_src[q] if (k == 0 and first_src) else r
                grp.append(f'{op}_dpp {r}, {s}, {s} row_ror:{sh}{DPP}')
            out.append(grp)
        return out

    def bcast_steps(op, regs):
        return [[f'{op}_dpp {r}, {r}, {r} row_bcast:{bc} row_mask:{rm} bank_mask:0xf' for r in regs]
                for bc, rm in ((15, '0xa'), (31, '0xc'))]

    def flat(groups):
        return [x for g in groups for x in g]

    def stats_ops():
        return [f'v_add_f32 {t4}, {XC}, {XC + 1}',
                f'v_mul_f32 {t5}, {XC}, {XC}',
                f'v_add_f32 {t6}, {XC + 2}, {XC + 3}',
                f'v_fmac_f32 {t5}, {XC + 1}, {XC + 1}',
                f'v_add_f32 {t4}, {t4}, {t6}',
                f'v_fmac_f32 {t5}, {XC + 2}, {XC + 2}',
                f'v_cndmask_b32 {ST}, 0, {t4}, {sM9}',
                f'v_fmac_f32 {t5}, {XC + 3}, {XC + 3}',
                f'v_cndmask_b32 {ST + 1}, 0, {t5}, {sM9}'] + flat(ror_steps('v_add_f32', [ST, ST + 1]))

    def resid_ops():
        return [f'v_add_f32 {XR + r}, {XC + r}, {vMP}' for r in range(4)] + [
            f'v_cvt_pk_bf16_f32 {XR + 1}, {XR}, {XR + 1}',
            f'v_cvt_pk_bf16_f32 {XR + 3}, {XR + 2}, {XR + 3}',
            f'v_lshlrev_b32 {XR}, 16, {XR + 1}',
            f'v_lshlrev_b32 {XR + 2}, 16, {XR + 3}',
            f'v_and_b32 {XR + 1}, {sHIM}, {XR + 1}',
            f'v_and_b32 {XR + 3}, {sHIM}, {XR + 3}']

    def ln_ops(S):
        return ror_steps('v_add_f32', [vE0, vE1], [S, S + 1]) + [
            [f'v_mul_f32 {vDM}, {sINV}, {vE0}', f'v_fma_f32 {vRS}, {vE1}, {sINV}, {vEPS}'],
            [f'v_fma_f32 {vRS}, -{vDM}, {vDM}, {vRS}'],
            [f'v_rsq_f32 {vRS}, {vRS}']]

    def newmean_ops():
        return [f'v_add_f32 {vMP}, {vMP}, {vDM}'] + [f'v_sub_f32 {CI + r}, {XR + r}, {vMP}' for r in range(4)]

    def m16(d, A, B, C):
        a(f'v_mfma_f32_16x16x32_bf16 {d.t(4)}, {A}, {B}, {C}')

    def m4(d, A, B, first, abid):
        a(f'v_mfma_f32_4x4x4_16b_bf16 {d.t(4)}, {A}, {B}, {"0" if first else d.t(4)} cbsz:4 abid:{abid}')

    def chk_ab(g, first, lo=sT, hi=sThi):
        a(f'v_bitop3_b32 {t0}, {g}, {g + 2}, {lo} bitop3:0x7e\nv_bitop3_b32 {t1}, {g + 1}, {g + 3}, {hi} bitop3:0x7e')
        a(f'v_or_b32 {vE2}, {t0}, {t1}' if first else f'v_or3_b32 {vE2}, {t0}, {t1}, {vE2}')

    def chk_d(g, h, first):
        a(f'v_bitop3_b32 {t0}, {g + 1}, {h + 1}, {sTsh} bitop3:0x7e\nv_bitop3_b32 {t1}, {g + 3}, {h + 3}, {sT} bitop3:0x7e')
        a(f'v_or_b32 {vE2}, {t0}, {t1}' if first else f'v_or3_b32 {vE2}, {t0}, {t1}, {vE2}')

    nsel = [0]

    def reload(items):
        def f():
            for m, fn in items:
                nsel[0] += 1
                a(f's_cmp_eq_u64 {m}, 0')
                a.br('s_cbranch_scc1', 'SEL%d' % nsel[0], lambda c: False)
                fn()
                a.label('SEL%d' % nsel[0])
            a('s_waitcnt vmcnt(0)')
        return f

    def chk1(g, q):
        a(f'''v_bitop3_b32 {t0}, {g}, {g + 2}, {sT} bitop3:0x7e
            v_bitop3_b32 {t1}, {g + 1}, {g + 3}, {sThi} bitop3:0x7e
            v_or_b32 {t0}, {t0}, {t1}
            v_cmp_ne_u16 {sQ[q]}, 0, {t0}''')

    def chk2(g, h, q):
        a(f'''v_bitop3_b32 {t0}, {g + 1}, {h + 1}, {sTsh} bitop3:0x7e
            v_bitop3_b32 {t1}, {g + 3}, {h + 3}, {sT} bitop3:0x7e
            v_or_b32 {t0}, {t0}, {t1}
            v_cmp_lt_u32 {sQ[q]}, {sFF}, {t0}''')

    def tall_addr(region):
        a(f'''v_lshrrev_b32 {t0}, 2, {vN}
            v_lshl_add_u32 {t0}, {vRow}, 3, {t0}
            v_mul_u32_u24 {t0}, 80, {t0}
            v_and_b32 {t1}, 3, {vL}
            v_lshl_add_u32 {t0}, {t1}, 3, {t0}
            s_and_b32 {sT0}, {sI}, 1
            s_lshl_b32 {sT0}, {sT0}, 3
            s_mul_i32 {sT3}, {sW}, 24
            s_add_u32 {sT0}, {sT0}, {sT3}
            s_add_u32 {sT0}, {sT0}, {region}
            v_add_u32 {aTR}, {sT0}, {t0}''')

    def tall_tr(nk, AB):
        for k in range(nk):
            for u in range(2):
                a(f'ds_read_b64_tr_b16 {ar(AB + 4 * k + 2 * u, 2)}, {aTR} offset:{2560 * k + 320 * u}')

    def tall_stage(AB, ldsoff, extra):
        D = ACC[1]
        if extra:
            a(f'ds_read_b128 {(OP + 16).t(4)}, {aOD}')
        for k in range(4):
            a(f'ds_read_b128 {(OP + 4 * k).t(4)}, {aOR} offset:{ldsoff + 128 * k}')
        if extra:
            a('s_waitcnt lgkmcnt(4)')
            m16(D, (OP + 16).t(4), ar(AB + 32, 4), '0')
        for k in range(4):
            a(f's_waitcnt lgkmcnt({3 - k})')
            a(f'v_smfmac_f32_16x16x64_bf16 {D.t(4)}, {(OP + 4 * k).t(4)}, {ar(AB + 8 * k, 8)}, {vIDX}')
        if P['x4']:
            a(f'v_add_f32 {t0}, {D}, {D + 1}\nv_cvt_pk_bf16_f32 {XG}, {vTAX}, {t0}')
            for q in (1, 2, 3):
                a(f'v_mov_b32_dpp {XG + q}, {XG} quad_perm:[{q},{q},{q},{q}]{DPP}')
            a(f'buffer_store_dwordx4 {XG.t(4)}, {aXPUB}, {srd(S_W)}, {sSLOT} offen sc1', tag='XP')
            return
        a(f'v_add_f32 {t0}, {D}, {D + 1}\nv_cvt_pk_bf16_f32 {t1}, {vTAX}, {t0}')
        a(f'buffer_store_dword {t1}, {aXPUB}, {srd(S_W)}, {sSLOT} offen sc1', tag='XP')

    def cg_loads():
        for q, (ad, off) in enumerate(((aDG1, 0), (aDG1, 1536), (aDG1b, 0), (aDG1b, 1536), (aDG2, 0), (aDG2, 1536))):
            gload(G2[q], ad, sCG, off, 'CG')

    def cg_reduce(tag):
        a.label('CHECK_' + tag)
        for q in range(4):
            m16(ACC[2], SELD.t(4), G2[q].t(4), '0' if q == 0 else ACC[2].t(4))
        for q in range(2):
            m16(ACC[3], SELD.t(4), G2[4 + q].t(4), '0' if q == 0 else ACC[3].t(4))
        for q in range(3):
            chk_d(G2[2 * q], G2[2 * q + 1], q == 0)
        a(f'v_cmp_lt_u32 vcc, 0xffff, {vE2}\ns_cmp_lg_u64 vcc, 0')
        retry(tag, 'CHECK_' + tag, lambda: (cg_loads(), a('s_waitcnt vmcnt(0)')))
        a(f'''v_mov_b32 {CSG}, {ACC[2]}
            v_mov_b32 {CSG + 1}, {ACC[2] + 1}
            v_add_f32_dpp {CSG + 2}, {ACC[3]}, {ACC[3]} row_ror:8{DPP}
            v_add_f32_dpp {CSG + 3}, {ACC[3] + 1}, {ACC[3] + 1} row_ror:8{DPP}''')

    def cq_loads():
        for q in range(4):
            gload(G2[q], aAGET, sCQ, 1024 * q, 'CQ')

    def cq_reduce(tag):
        a.label('CHECK_' + tag)
        for q in range(4):
            m16(ACC[2], SEL4.t(4), G2[q].t(4), '0' if q == 0 else ACC[2].t(4))
            chk_ab(G2[q], q == 0, sTX, sTXh)
        a(f'v_cmp_ne_u16 vcc, 0, {vE2}\ns_cmp_lg_u64 vcc, 0')
        retry(tag, 'CHECK_' + tag, lambda: (cq_loads(), a('s_waitcnt vmcnt(0)')))
        a(f'v_mov_b32 {CSQ}, {ACC[2]}')

    def a_loads():
        gload(G[4], aASGET, '0', tag='A')
        for q in range(4):
            gload(G[q], aAGET, '0', 1024 * q, 'A')

    def b_loads():
        gload(G[4], aBSGET, '0', tag='B')
        for q in range(4):
            gload(G[q], aAGET, sBD, 1024 * q, 'B')

    def b_reduce(waits):
        a(f'v_cmp_ne_u32 {sP}, {sT}, {G[4] + 3}')
        lines(flat(ror_steps('v_max_f32', [vE0], [G[4]])))
        a(f'v_sub_f32 {vE0}, {G[4]}, {vE0}\nv_exp_f32 {vE0}, {vE0}\nv_mul_f32 {vE1}, {vE0}, {G[4] + 1}')
        lsum = flat(ror_steps('v_add_f32', [vE1]))
        for q in range(4):
            for d in range(4):
                a(f'v_and_b32_dpp {AW[q] + d}, {vE0}, {MASK4 + d} row_newbcast:{q}{DPP}')
            a(lsum[q])
            if waits:
                a(f's_waitcnt vmcnt({3 - q})')
            m16(ACC[0], AW[q].t(4), G[q].t(4), '0' if q == 0 else ACC[0].t(4))
            chk_ab(G[q], q == 0)
            if P['sel']:
                if q:
                    a(f's_or_b64 vcc, {sP if q == 1 else "vcc"}, {sQ[q - 1]}')
                chk1(G[q], q)
        if P['sel']:
            a(f'v_rcp_f32 {vE1}, {vE1}\ns_or_b64 vcc, vcc, {sQ[3]}')
        else:
            a(f'v_cmp_ne_u16 vcc, 0, {vE2}\nv_rcp_f32 {vE1}, {vE1}\ns_or_b64 vcc, vcc, {sP}')

    def d_loads():
        gload(G[6], aASGET, sDS)
        gload(G[4], aDG2, '0')
        gload(G[5], aDG2, '0', 1536)
        gload(G[0], aDG1, '0')
        gload(G[1], aDG1, '0', 1536)
        gload(G[2], aDG1b, '0')
        gload(G[3], aDG1b, '0', 1536)

    def a_reduce(waits):
        lo = ln_ops(G[4])
        fill = [lo[0] + lo[1], lo[2] + lo[3], lo[4] + lo[5] + lo[6],
                [f'v_mul_f32 {vC1}, {vDM}, {CSQ}', f'v_mul_f32 {vRS}, {sC}, {vRS}', f'v_mul_f32 {vC1}, {vC1}, {vRS}']]
        a(f'v_cmp_ne_u32 {sP}, {sT}, {G[4] + 3}')
        for q in range(4):
            lines(fill[q])
            if waits:
                a(f's_waitcnt vmcnt({3 - q})')
            m16(ACC[0], SEL4.t(4), G[q].t(4), '0' if q == 0 else ACC[0].t(4))
            chk_ab(G[q], q == 0)
        a(f'v_cmp_ne_u16 vcc, 0, {vE2}\ns_or_b64 vcc, vcc, {sP}')

    def xgather(tag):
        a.label('GX_ISSUE_' + tag)
        for q in range(4):
            gload(G[q], aXGET, sSLOT, 256 * q)
        for q in range(4):
            a(f's_waitcnt vmcnt({3 - q})')
            m16(XC, SELX.t(4), G[q].t(4), CI.t(4) if q == 0 else XC.t(4))
            chk_ab(G[q], q == 0, sTX, sTXh)
        a(f'v_cmp_ne_u16 vcc, 0, {vE2}\ns_cmp_lg_u64 vcc, 0')
        retry(tag, 'GX_ISSUE_' + tag)

    def xq_write():
        a(f'''v_cvt_pk_bf16_f32 {PK2}, {XC}, {XC + 1}
            v_cvt_pk_bf16_f32 {PK2 + 1}, {XC + 2}, {XC + 3}
            ds_write_b64 {aXQW}, {PK2.t(2)}''')

    def setlayer2():
        a(f's_mov_b32 {sLAY}, 1')
        a.act(lambda c: c.__setitem__('layer', 1))
        if P['stamps'] >= 2:
            a(f'v_writelane_b32 {vTS}, {sRC}, 30\ns_mov_b32 {sRC}, 0')

    def touch_setup():
        a(f'''; softmax stats of the o hand-off
            s_lshl_b32 {sT3}, {sI}, 4
            s_lshl_b32 {sT0}, {sG}, 9
            s_lshr_b32 {sT2}, {sW}, 1
            s_lshl_b32 {sT2}, {sT2}, 8
            s_add_u32 {sT0}, {sT0}, {sT2}
            s_add_u32 {sT0}, {sT0}, {OFF_BS:#x}
            v_lshl_add_u32 {t0}, {vRow}, 2, {vN}
            v_and_b32 {t0}, 15, {t0}
            v_lshl_add_u32 {aBSGET}, {t0}, 4, {sT0}
            s_add_u32 {sT0}, {sT0}, {sT3}
            v_mov_b32 {t0}, {sT0}
            v_and_b32 {t1}, 127, v0
            v_cmp_eq_u32 vcc, 0, {t1}
            s_nop 0
            v_cndmask_b32 {aBSPUB}, {vOOB}, {t0}, vcc
            s_lshr_b32 {sT0}, {sI}, 1
            s_lshl_b32 {sT0}, {sT0}, 14
            s_and_b32 {sT2}, {sI}, 1
            s_lshl_b32 {sT2}, {sT2}, 12
            s_add_u32 {sT0}, {sT0}, {sT2}
            s_add_u32 {sT0}, {sT0}, {OFF_X:#x}
            s_lshr_b32 {sT2}, {sXCC}, 2
            s_and_b32 {sT2}, {sT2}, 1
            s_xor_b32 {sT2}, {sT2}, {1 if P['near'] == 1 else 0}
            s_lshl_b32 {sT2}, {sT2}, 13
            s_and_b32 {sT2}, {sT2}, {0x2000 if P['near'] else 0}
            s_add_u32 {sT2}, {sT2}, {sT0}
            v_min_u32 {t0}, 8, {vN}
            v_mul_u32_u24 {t1}, 43, {t0}
            v_lshrrev_b32 {t1}, 7, {t1}
            v_add_u32 {t0}, {t0}, {t1}
            v_lshl_add_u32 {t1}, {vRow}, 10, {sT2}
            v_lshl_add_u32 {aXGET}, {t0}, 4, {t1}
            s_lshl_b32 {sT3}, {sG}, 8
            s_add_u32 {sT2}, {sT2}, {sT3}
            s_add_u32 {sT2}, {sT2}, 0x80000
            v_mov_b32 {aPB}, {sT2}
            s_lshl_b32 {sT2}, {sG}, 8
            s_add_u32 {sT0}, {sT0}, {sT2}
            s_lshl_b32 {sT2}, {sW}, 6
            s_add_u32 {sT2}, {sT0}, {sT2}
            v_lshl_add_u32 {t0}, {vN}, 2, {sT2}
            v_lshl_add_u32 {t0}, {vRow}, 13, {t0}
            s_mov_b32 vcc_lo, {0x01110111 if P['x4'] else 0x0fff0fff:#x}
            s_mov_b32 vcc_hi, 0
            v_cndmask_b32 {aXPUB}, {vOOB}, {t0}, vcc''')
        if P['prewrite']:
            a(f'''s_and_b32 {sT2}, {sW}, 1
                s_xor_b32 {sT2}, {sT2}, 1
                s_lshl_b32 {sT2}, {sT2}, 13
                s_add_u32 {sT2}, {sT2}, {sT0}
                v_lshl_add_u32 {t0}, {vRow}, 17, {sT2}
                v_lshl_add_u32 {t0}, {vN}, 4, {t0}
                v_cmp_le_u32 vcc, {128 if P['near'] else 192}, v0
                v_mov_b32 {G[5]}, 0
                v_mov_b32 {G[5] + 1}, 0
                v_mov_b32 {G[5] + 2}, 0
                v_mov_b32 {G[5] + 3}, 0
                v_cndmask_b32 {t0}, {vOOB}, {t0}, vcc
                buffer_store_dwordx4 {G[5].t(4)}, {t0}, {srd(S_W)}, 0 offen sc1''')
            if P['probe']:
                a(f'''s_mov_b64 vcc, 0xff
                    s_mov_b32 {sT2}, 0x80000
                    v_cndmask_b32 {t0}, {vOOB}, {t0}, vcc
                    buffer_store_dwordx4 {G[5].t(4)}, {t0}, {srd(S_W)}, {sT2} offen sc1''')
        if P['pretouch']:
            a(f'''s_lshl_b32 {sT0}, {sG}, 4
                s_add_u32 {sT0}, {sT0}, {sI}
                s_mul_i32 {sT2}, {sT0}, 1536
                s_add_u32 {sT2}, {sT2}, {OFF_DD - 16 * 128}
                v_lshl_add_u32 {t0}, {vL}, 7, {sT2}
                v_add_u32 {t1}, {OFF_CG - OFF_DD - 12 * 128}, {t0}
                v_cmp_gt_u32 vcc, 28, {vL}
                s_lshl_b32 {sT2}, {sT0}, 10
                s_add_u32 {sT2}, {sT2}, {OFF_BD}
                v_cndmask_b32 {t0}, {t1}, {t0}, vcc
                v_lshl_add_u32 {t1}, {vL}, 7, {sT2}
                s_mov_b64 vcc, 0xff
                v_cndmask_b32 {t0}, {t0}, {t1}, vcc
                v_add_u32 {t1}, {(OFF_CQ - OFF_BD - 1024) & 0xffffffff:#x}, {t1}
                s_mov_b64 vcc, 0xff00
                v_cndmask_b32 {t0}, {t0}, {t1}, vcc
                s_lshl_b32 {sT2}, {sG}, 8
                s_add_u32 {sT2}, {sT2}, {OFF_DS - 40 * 32}
                v_lshl_add_u32 {t1}, {vL}, 5, {sT2}
                s_mov_b32 vcc_lo, 0
                s_mov_b32 vcc_hi, 0xff00
                v_cndmask_b32 {t0}, {t0}, {t1}, vcc
                s_mov_b32 vcc_hi, 0xffff0000
                v_cndmask_b32 {t0}, {t0}, {aBSGET}, vcc
                v_cmp_eq_u32 vcc, {sW}, {vRow}
                s_and_b32 vcc_lo, vcc_lo, {0 if P['prestore'] else -1}
                s_and_b32 vcc_hi, vcc_hi, {0x1100 if P['prestore'] else -1}
                s_or_b32 vcc_hi, vcc_hi, 0x01010000
                v_cndmask_b32 {t0}, {vOOB}, {t0}, vcc''')
            a(f'buffer_load_dword {vDUM}, {t0}, {srd(S_W)}, 0 offen sc1', dummy=1)


    a('s_cmp_ge_u32 s2, 256')
    a.br('s_cbranch_scc1', 'END', lambda c: False)
    if P['stamps']:
        a('s_memtime s[86:87]')
        names.append('start')
    if P['stamps'] or P['hold']:
        a('s_memrealtime s[90:91]')
    a(f'''s_load_dwordx16 s[4:19], s[0:1], 0
        s_load_dwordx8 s[20:27], s[0:1], 64
        v_lshrrev_b32 {t0}, 6, v0
        v_and_b32 {vL}, 63, v0
        v_readfirstlane_b32 {sW}, {t0}
        s_and_b32 {sT0}, s2, 7
        s_lshl_b32 {sT0}, {sT0}, 1
        s_bfe_u32 {sT1}, s2, 0x10003
        s_add_u32 {sG}, {sT0}, {sT1}
        s_lshr_b32 {sI}, s2, 4
        s_lshl_b32 {sROT}, s2, 9
        s_and_b32 {sROT}, {sROT}, 0xf000
        s_mov_b32 {sLAY}, 0
        v_lshrrev_b32 {vRow}, 4, {vL}
        v_and_b32 {vN}, 15, {vL}
        v_lshrrev_b32 {t0}, 3, {vL}
        v_and_b32 {t1}, 7, {vL}
        v_lshlrev_b32 {t0}, 13, {t0}
        v_lshl_add_u32 {t0}, {t1}, 4, {t0}
        s_lshl_b32 {sT0}, {sW}, 7
        v_add_u32 {aWQ}, {sT0}, {t0}
        s_lshl_b32 {sT0}, {sW}, 10
        v_lshl_add_u32 {t0}, {vRow}, 8, {sT0}
        v_xor_b32 {t1}, {vN}, {vRow}
        v_lshl_add_u32 {aK[0]}, {t1}, 4, {t0}
        v_xor_b32 {aK[1]}, 64, {aK[0]}
        v_xor_b32 {aK[2]}, 128, {aK[0]}
        v_xor_b32 {aK[3]}, 192, {aK[0]}
        v_lshlrev_b32 {t1}, 2, {vRow}
        v_xor_b32 {t1}, {vN}, {t1}
        v_lshl_add_u32 {aV}, {t1}, 4, {t0}
        v_lshlrev_b32 {t2}, 4, {vL}
        s_mul_i32 {sT3}, {sI}, 72
        v_lshl_add_u32 {t3}, {vN}, 3, {sT3}
        s_mul_i32 {sT0}, {sI}, {36 * 8192}
        s_lshl_b32 {sT1}, {sG}, 9
        s_add_u32 {sT0}, {sT0}, {sT1}
        s_lshl_b32 {sT2}, {sG}, 23
        s_lshl_b32 {sT3}, {sI}, 16
        s_add_u32 {sT2}, {sT2}, {sT3}
        s_add_u32 {sT2}, {sT2}, {28672 * 256}
        s_mul_i32 {sT1}, {sW}, 4608
        s_cmp_lg_u32 {sW}, 3
        s_waitcnt lgkmcnt(0)''')
    a.br('s_cbranch_scc1', 'NOX', NW3)
    mk_srd(S_X, 4, None, 1152)
    a(f'''buffer_load_dwordx4 {G[0].t(4)}, {t2}, {srd(S_X)}, 0 offen
        buffer_load_dwordx4 {G[1].t(4)}, {t2}, {srd(S_X)}, 0 offen offset:1024
        buffer_load_dwordx2 {G[2].t(2)}, {t3}, {srd(S_X)}, 0 offen''', tag='X')
    a.label('NOX')
    if P['hold']:
        a('s_mov_b32 s3, s90')
    if P['stamps']:
        a(f'v_mov_b32 {vTS}, 0\nv_writelane_b32 {vTS}, s86, 0\nv_writelane_b32 {vTS}, s90, 63')
    estamp('kernarg')
    a(f's_load_dword {sE}, s[26:27], 0')
    mk_srd(S_WQ, 10, sT0, 35 * 8192 + 512)
    for k in range(5):
        a(f's_add_u32 m0, {sT1}, {L_WQ + 1024 * k}\ns_mov_b32 {sT0}, {65536 * k}')
        if k == 4:
            a('s_mov_b32 exec_hi, 0')
        a(f'buffer_load_dwordx4 {aWQ}, {srd(S_WQ)}, {sT0} offen nt lds', fills='WQ')
        if k == 4:
            a('s_mov_b32 exec_hi, -1')
    mk_srd(S_K, 6, sT2, 65536)
    if P['codepf']:
        a(f's_getpc_b64 {sP}')
        a.label('PCREF')
        a(f'''s_lshl_b32 {sT0}, {sW}, 12
            v_lshl_add_u32 {t2}, {vL}, 6, {sT0}
            s_cmp_lt_u32 s2, {P['codepf'] * 8}
            s_cselect_b32 {sT0}, CODE_END-PCREF-4, 0
            v_min_u32 {t2}, {sT0}, {t2}''')
        a(f'global_load_dword {vDUM}, {t2}, {sP}', dummy=1)
    wave16k()
    for j in range(P['ka']):
        kvdma(j, False)
    mk_srd(S_V, 8, sT2, 65536)
    if P['tlbpf']:
        a(f's_load_dword {sR0}, s[{S_V}:{S_V + 1}], 0', dummy=1)
        for ptr, mul, reg, b, end in ((12, 256 * 1152, sG, S_WO, 255 * 1152), (16, 36 * 9216, sI, S_WG, 35 * 9216),
                                      (18, 36 * 9216, sI, S_WU, 35 * 9216), (20, 288 * 1152, sG, S_WD, 287 * 1152)):
            a(f's_mul_i32 {sT3}, {reg}, {mul}\ns_add_u32 s{b}, s{ptr}, {sT3}\ns_addc_u32 s{b + 1}, s{ptr + 1}, 0')
            a(f's_load_dword {sR0}, s[{b}:{b + 1}], 0', dummy=1)
            a(f's_load_dword {sR0}, s[{b}:{b + 1}], {end:#x}', dummy=1)
        a(f's_add_u32 s{S_OUT}, s26, {OFF_X:#x}\ns_addc_u32 s{S_OUT + 1}, s27, 0')
        a(f's_load_dword {sR0}, s[{S_OUT}:{S_OUT + 1}], {WS_USED - OFF_X - 64:#x}', dummy=1)
        a(f's_load_dword {sR0}, s[22:23], 0', dummy=1)
    WSZ = WS_SRD if (P['dump'] or P['stamps']) else WS_USED
    mk_srd(S_W, 26, None, WSZ)
    mk_srd(S_F, 26, None, WS_USED if P['dbg_fast0'] else 0)
    mk_srd(S_S, 26, None, 0 if P['dbg_fast0'] else WS_USED)
    a(f'''s_mov_b32 {sINV}, 0x3ae38e39
        s_mov_b32 {sHIM}, 0xffff0000
        s_getreg_b32 {sXCC}, hwreg(HW_REG_XCC_ID)
        s_and_b32 {sXCC}, {sXCC}, 15
        s_mov_b32 s98, 0x01ff01ff
        s_mov_b32 s99, 0x01ff01ff
        v_mov_b32 {ONE}, 0x3f803f80
        v_mov_b32 {ONE + 1}, 0x3f803f80
        v_mov_b32 {ST + 2}, {sXCC}
        v_mov_b32 {vOOB}, {OOB:#x}
        s_mov_b32 {sT2}, {L_DUM}
        v_lshl_add_u32 {vSINK}, {vL}, 4, {sT2}
        v_lshrrev_b32 {t0}, 2, {vL}
        s_mov_b32 {sT0}, {L_X}
        v_lshl_add_u32 {t1}, {t0}, 3, {sT0}
        v_mov_b32 {t2}, {L_ONE}
        s_mov_b32 vcc_lo, 0x22222222
        s_mov_b32 vcc_hi, 0x22222222
        v_cndmask_b32 {aXQR}, {t1}, {t2}, vcc
        ds_write_b64 {t2}, {ONE.t(2)}
        v_lshl_add_u32 {t0}, {vN}, 3, {sT0}
        s_mov_b64 vcc, 0xffff
        v_cndmask_b32 {aXQW}, {vSINK}, {t0}, vcc
        s_lshl_b32 {sT0}, {sG}, 14
        s_lshl_b32 {sT2}, {sW}, 8
        s_add_u32 {sT0}, {sT0}, {sT2}
        s_add_u32 {sT0}, {sT0}, {OFF_AD:#x}
        v_lshl_add_u32 {t0}, {vRow}, 12, {sT0}
        v_lshl_add_u32 {aAGET}, {vN}, 4, {t0}
        s_lshl_b32 {sT3}, {sI}, 10
        s_add_u32 {sT0}, {sT0}, {sT3}
        v_lshl_add_u32 {aAPUB}, {vL}, 2, {sT0}
        s_lshl_b32 {sT0}, {sG}, 8
        s_add_u32 {sT0}, {sT0}, {OFF_AS:#x}
        v_lshl_add_u32 {aASGET}, {vN}, 4, {sT0}
        s_lshl_b32 {sT3}, {sI}, 4
        s_add_u32 {sT0}, {sT0}, {sT3}
        v_mov_b32 {t0}, {sT0}
        v_cmp_eq_u32 vcc, 192, v0
        v_lshrrev_b32 {t1}, 2, {vN}
        v_lshlrev_b32 {t1}, 7, {t1}
        v_cndmask_b32 {aASPUB}, {vOOB}, {t0}, vcc
        v_lshl_add_u32 {t1}, {vRow}, 5, {t1}
        v_and_b32 {t2}, 3, {vL}
        v_lshl_add_u32 {t1}, {t2}, 3, {t1}
        s_mul_i32 {sT0}, {sW}, 4608
        s_add_u32 {sT0}, {sT0}, {L_WQ}
        v_add_u32 {aTR}, {sT0}, {t1}''')
    if P['stamps']:
        a(f's_mov_b32 {sRC}, 0')
    if P['dump'] or P['stamps']:
        a(f's_lshl_b32 {sT0}, s2, 10\nv_lshl_add_u32 {aDM}, v0, 2, {sT0}')
    if P['early']:
        touch_setup()
    k0 = P['ka'] + P['kb']
    for j in range(P['ka'], k0):
        kvdma(j, False)
    a(f's_waitcnt lgkmcnt(0)\ns_mov_b32 {sT}, {sE}')
    set_tags()
    a(f's_mov_b32 {sTX}, {sT}\ns_mov_b32 {sTXh}, {sThi}\nv_mov_b32 {vTAX}, {vTAB}')
    if P['hold']:
        a('s_mov_b32 s11, 0')
    rstamp(6)
    stamp('set-up A', 3)
    a(f's_cmp_lg_u32 {sW}, 3')
    a.br('s_cbranch_scc1', 'Q_ENTRY', NW3)
    a.wait('X')
    a(f'v_mov_b32 {t0}, 0')
    for q in range(8):
        a(f'v_dot2c_f32_bf16 {t0}, {G[q >> 2] + (q & 3)}, {ONE}')
    a(f'''v_lshlrev_b32 {XC}, 16, {G[2]}
        v_and_b32 {XC + 1}, {sHIM}, {G[2]}
        v_lshlrev_b32 {XC + 2}, 16, {G[2] + 1}
        v_and_b32 {XC + 3}, {sHIM}, {G[2] + 1}''')
    lines(flat(ror_steps('v_add_f32', [t0]) + bcast_steps('v_add_f32', [t0])))
    a(f'v_readlane_b32 {sT0}, {t0}, 63\nv_mov_b32 {t0}, {sT0}\nv_mul_f32 {vMP}, {sINV}, {t0}')
    for r in range(4):
        a(f'v_sub_f32 {XC + r}, {XC + r}, {vMP}')
    xq_write()
    a.jmp('Q_WAIT')

    a.label('W3_E')
    a('s_waitcnt lgkmcnt(0)\ns_barrier')
    skip_l2('W3_E1')
    if P['probe']:
        a(f'v_xor_b32 {t2}, 0x2000, {aPB}\ns_waitcnt vmcnt(0)')
        a(f'buffer_load_dword {vDUM}, {aPB}, {srd(S_W)}, 0 offen sc1', dummy=1, tag='PB')
        a(f'buffer_load_dword {vDUM}, {t2}, {srd(S_W)}, 0 offen sc1', dummy=1)
    cq_loads()
    if P['probe']:
        a.wait('PB')
    lines(newmean_ops())
    set_tags()
    if P['probe']:
        a(f'''s_getreg_b32 {sT0}, hwreg(HW_REG_IB_STS, 0, 4)
            s_cmp_eq_u32 {sT0}, 5
            s_cselect_b32 {sT0}, 0, 0x2000
            v_xor_b32 {aXGET}, {sT0}, {aXGET}''')
        if P['stamps'] == 1:
            a(f's_add_u32 {sT0}, {sT0}, 1\nv_writelane_b32 {vTS}, {sT0}, 46')
    a('s_waitcnt vmcnt(0)')
    cq_reduce('CR')
    if P['xbar']:
        a('s_barrier')
    a.jmp('W3_E2')
    a.label('W3_E1')
    lines(newmean_ops())
    if P['xbar']:
        a('s_barrier')
    a(f's_cmp_lg_u32 {sG}, {sI}')
    a.br('s_cbranch_scc1', 'FINISH', lambda c: not c['final'])
    a.label('W3_E2')
    stamp('E poll', 3)
    xgather('E')
    dump(10, XC)

    def out_ops():
        lines([f'v_add_f32 {XR + r}, {XC + r}, {vMP}' for r in range(4)])
        a(f'''v_cvt_pk_bf16_f32 {Y}, {XR}, {XR + 1}
            v_cvt_pk_bf16_f32 {Y + 1}, {XR + 2}, {XR + 3}
            buffer_store_dwordx2 {Y.t(2)}, {aOUT}, {srd(S_OUT)}, 0 offen''')
    if P['outinl']:
        xq_write()
        out_ops()
        skip_l2('FINISH')
    else:
        skip_l2('W3_OUT')
        xq_write()
    a(f's_add_u32 {sSLOT}, {sSLOT}, 0x20000\ns_mov_b32 s{S_OUT + 2}, 1152')
    setlayer2()
    a.label('Q_WAIT')
    so = stats_ops()
    lines(so[:9])
    a('s_waitcnt lgkmcnt(0)')
    if P['qall']:
        a.label('Q_ENTRY')
    a(f's_barrier\nds_read_b64 {XQ.t(2)}, {aXQR}')
    if not P['qall']:
        lines(so[9:])
        pub_f('buffer_store_dwordx4', ST.t(4), aASPUB, '0')
        a.label('Q_JOIN')
    stamp('x ready', 3)

    def l1_wq():
        a.wait('WQ')
        for j in range(9):
            a(f'ds_read_b64_tr_b16 {(WQ + 2 * j).t(2)}, {aTR} offset:{512 * j}', needs=('WQ',))
    first_only('WQ', l1_wq)
    a('s_waitcnt lgkmcnt(0)')
    for j in range(9):
        m4(ACC[j % 3], XQ.t(2), (WQ + 2 * j).t(2), j < 3, j)
        if j < 8 and P['qall']:
            a(so[9 + j])
    if P['stfirst'] and P['qall']:
        pub('buffer_store_dwordx4', ST.t(4), aASPUB, '0')
    a(f'''v_pk_add_f32 {Y.t(2)}, {ACC[0].t(2)}, {ACC[1].t(2)}
        v_pk_add_f32 {Y.t(2)}, {Y.t(2)}, {ACC[2].t(2)}
        v_cvt_pk_bf16_f32 {t2}, {vTAB}, {Y}''')
    pub('buffer_store_dword', t2, aAPUB, '0')
    if not P['qall']:
        pub_s('buffer_store_dwordx4', ST.t(4), aASPUB, '0')
    dump(0, Y)
    stamp('A pub')
    lines(resid_ops())
    skip_l2('GA_PRE')
    a(f'v_cvt_pk_bf16_f32 {vCQ}, {vTAB}, {Y + 1}')
    wave16k()
    for j in range(k0, 16):
        kvdma(j, False)
    for j in range(P['v0']):
        kvdma(j, True)
    a(f'''s_mul_i32 {sT0}, {sG}, {256 * 1152}
        s_mul_i32 {sT2}, {sI}, 72
        s_and_b32 {sT2}, {sT2}, 0xfffffff0
        s_add_u32 {sT0}, {sT0}, {sT2}''')
    mk_srd(S_WO, 12, sT0, 255 * 1152 + 80)
    a(f's_mul_i32 {sT0}, {sG}, {288 * 1152}\ns_add_u32 {sT0}, {sT0}, {sT2}')
    mk_srd(S_WD, 20, sT0, 287 * 1152 + 80)
    a(f's_mul_i32 {sT0}, {sI}, {36 * 9216}\ns_mul_i32 {sT2}, {sG}, 576\ns_add_u32 {sT0}, {sT0}, {sT2}')
    mk_srd(S_WG, 16, sT0, 35 * 9216 + 576)
    mk_srd(S_WU, 18, sT0, 35 * 9216 + 576)
    mk_srd(S_OUT, 22, None, 0)
    a(f'''s_mov_b32 {sCQ}, {OFF_CQ - OFF_AD:#x}
        s_mov_b32 {sBD}, {OFF_BD - OFF_AD:#x}
        s_mov_b32 {sDS}, {OFF_DS - OFF_AS:#x}
        s_mov_b32 {sCG}, {OFF_CG - OFF_DD:#x}
        s_mov_b32 {sSLOT}, 0
        s_mov_b32 {sC}, 0x3e0293ee
        s_mov_b32 {sBUD}, 200000
        s_mov_b32 {sFF}, 0xffff
        s_mov_b32 {sDRY}, 0
        v_mov_b32 {vEPS}, 0x3727c5ac
        v_mov_b32 {BST + 2}, 0
        v_mov_b32 {CSQ}, 0
        v_mov_b32 {t0}, 0xffff0000
        v_mov_b32 {t1}, 0x3f800000
        v_mov_b32 {t2}, 0x3f80''')

    def lanemask(ns):
        m = sum(1 << n for n in ns) * 0x10001
        a(f's_mov_b32 vcc_lo, {m:#x}\ns_mov_b32 vcc_hi, {m:#x}')
    for q in range(4):
        lanemask([4 * q])
        a(f'v_cndmask_b32 {MASK4 + q}, 0, {t0}, vcc\nv_cndmask_b32 {SEL4 + q}, 0, {t1}, vcc')
        lanemask([q])
        a(f'v_cndmask_b32 {SELX + q}, 0, {t1}, vcc')
    for dst, lo_n, hi_n in ((SELD, 0, 1), (SELD + 1, 8, None), (SELD + 2, 4, 5), (SELD + 3, 9, None)):
        lanemask([lo_n])
        a(f'v_cndmask_b32 {dst}, 0, {t2}, vcc')
        if hi_n is not None:
            lanemask([hi_n])
            a(f'v_cndmask_b32 {dst}, {dst}, {t1}, vcc')
    a(f'''v_mov_b32 {t1}, 0x03020706
        v_mov_b32 {t2}, 0x05040100
        s_mov_b32 vcc_lo, 0x55555555
        s_mov_b32 vcc_hi, 0x55555555
        v_cndmask_b32 {vSELH}, {t1}, {t2}, vcc
        v_mov_b32 {t1}, 0xeeee
        v_mov_b32 {t2}, 0x4444
        v_cndmask_b32 {vIDX}, {t1}, {t2}, vcc
        s_mov_b32 {sT0}, {L_H + 512}
        v_lshl_add_u32 {t1}, {vRow}, 4, {sT0}
        v_mov_b32 {t2}, {L_ZERO}
        v_cndmask_b32 {aOD}, {t2}, {t1}, vcc
        v_mov_b32 {G[5]}, 0
        v_mov_b32 {G[5] + 1}, 0
        v_mov_b32 {G[5] + 2}, 0
        v_mov_b32 {G[5] + 3}, 0
        ds_write_b128 {t2}, {G[5].t(4)}
        v_and_b32 {t1}, 1, {vL}
        v_lshrrev_b32 {t0}, 2, {vL}
        v_lshlrev_b32 {t0}, 3, {t0}
        v_lshl_add_u32 {t0}, {t1}, 8, {t0}
        v_add_u32 {aQR}, {L_Q}, {t0}
        s_lshl_b32 {sT0}, {sW}, 7
        s_add_u32 {sT0}, {sT0}, {L_Q}
        v_lshl_add_u32 {t0}, {vN}, 2, {vRow}
        v_lshl_add_u32 {aQW}, {t0}, 1, {sT0}
        s_lshl_b32 {sT0}, {sW}, 8
        s_add_u32 {sT0}, {sT0}, {L_PO}
        v_lshl_add_u32 {aPOW}, {vL}, 2, {sT0}
        s_lshl_b32 {sT0}, {sW}, 10
        s_add_u32 {sT0}, {sT0}, {L_PO}
        v_lshl_add_u32 {aPOR}, {vL}, 2, {sT0}
        s_lshl_b32 {sT0}, {sW}, 2
        s_add_u32 {sT0}, {sT0}, {L_PS}
        v_mov_b32 {t0}, {sT0}
        s_mov_b32 {sT0}, {L_DUM}
        v_lshl_add_u32 {t1}, {vL}, 2, {sT0}
        s_mov_b32 vcc_lo, 0
        s_mov_b32 vcc_hi, 0x80000000
        v_cndmask_b32 {aPSW}, {t1}, {t0}, vcc
        s_lshr_b32 {sT0}, {sW}, 1
        s_lshl_b32 {sT0}, {sT0}, 5
        s_add_u32 {sT0}, {sT0}, {L_PS}
        v_mov_b32 {aPSR}, {sT0}
        s_mov_b32 {sT0}, {L_O}
        v_lshl_add_u32 {t0}, {vRow}, 5, {sT0}
        v_and_b32 {t1}, 1, {vL}
        v_lshl_add_u32 {aOR}, {t1}, 4, {t0}
        s_lshl_b32 {sT0}, {sW}, 7
        s_add_u32 {sT0}, {sT0}, {L_O}
        v_lshrrev_b32 {t0}, 2, {vN}
        v_lshl_add_u32 {t0}, {t0}, 5, {sT0}
        v_lshrrev_b32 {t1}, 1, {vRow}
        v_lshl_add_u32 {t0}, {t1}, 4, {t0}
        v_and_b32 {t1}, 3, {vN}
        v_lshl_add_u32 {t0}, {t1}, 2, {t0}
        v_and_b32 {t1}, 1, {vRow}
        v_lshl_add_u32 {aOW}, {t1}, 1, {t0}
        ''')
    if not P['early']:
        touch_setup()
    a(f'''s_mul_i32 {sT0}, {sI}, 72
        v_lshl_add_u32 {t0}, {vN}, 3, {sT0}
        s_cmp_eq_u32 {sW}, 3
        s_cselect_b64 vcc, 0x1ff, 0
        v_cndmask_b32 {aOUT}, {vOOB}, {t0}, vcc
        s_mul_i32 {sT0}, {sG}, {16 * 1536}
        s_add_u32 {sT0}, {sT0}, {OFF_DD:#x}
        s_mul_i32 {sT2}, {sI}, 1536
        s_lshl_b32 {sT3}, {sW}, 9
        s_add_u32 {sT2}, {sT2}, {sT3}
        s_add_u32 {sT2}, {sT2}, {sT0}
        v_lshrrev_b32 {t0}, 3, {vL}
        v_lshl_add_u32 {t0}, {t0}, 6, {sT2}
        v_and_b32 {t1}, 3, {vL}
        v_lshl_add_u32 {t0}, {t1}, 4, {t0}
        v_and_b32 {t1}, 4, {vL}
        v_cmp_gt_u32 vcc, 192, v0
        v_lshl_add_u32 {t0}, {t1}, 1, {t0}
        s_mul_i32 {sT2}, {sW}, 384
        v_cndmask_b32 {aDPUB}, {vOOB}, {t0}, vcc
        s_add_u32 {sT0}, {sT0}, {sT2}
        v_mul_u32_u24 {t0}, 6144, {vRow}
        v_add_u32 {t0}, {sT0}, {t0}
        v_lshl_add_u32 {aDG1}, {vN}, 4, {t0}
        v_add_u32 {aDG1b}, 3072, {aDG1}
        v_lshrrev_b32 {t1}, 3, {vN}
        v_mul_u32_u24 {t1}, 3072, {t1}
        v_and_b32 {t2}, 7, {vN}
        v_lshl_add_u32 {t1}, {t2}, 4, {t1}
        v_add_u32 {t0}, {t0}, {t1}
        v_add_u32 {aDG2}, 256, {t0}
        s_mul_i32 {sT0}, {sW}, 24''')
    for dst, base, src in ((aHW1, 0, vN), (aHW2, 16, t2)):
        a(f'''s_add_u32 {sT2}, {sT0}, {base}
            v_add_u32 {t0}, {sT2}, {src}
            v_lshrrev_b32 {t1}, 5, {t0}
            v_mul_u32_u24 {t1}, 96, {t1}
            v_and_b32 {t0}, 31, {t0}
            v_and_b32 {t3}, 28, {t0}
            v_add_u32 {t3}, {t3}, {t0}
            v_lshl_add_u32 {t3}, {vRow}, 2, {t3}
            v_add_u32 {t0}, 64, {t0}
            s_mov_b32 vcc_lo, 0
            s_mov_b32 vcc_hi, 0xffff
            v_cndmask_b32 {t0}, {t3}, {t0}, vcc
            v_add_u32 {t0}, {t0}, {t1}
            v_and_b32 {t1}, 0x1f1, {t0}
            v_and_b32 {t3}, 2, {t0}
            v_lshl_or_b32 {t1}, {t3}, 2, {t1}
            v_bfe_u32 {t3}, {t0}, 2, 2
            v_lshl_or_b32 {t1}, {t3}, 1, {t1}
            v_cmp_gt_u32 vcc, 0x100, {t0}
            v_cndmask_b32 {t0}, {t0}, {t1}, vcc
            v_lshlrev_b32 {t0}, 1, {t0}
            v_add_u32 {t0}, {L_H}, {t0}
            s_mov_b32 vcc_lo, 0
            s_mov_b32 vcc_hi, 0xffff0000
            v_cndmask_b32 {dst}, {t0}, {vSINK}, vcc''')
    a(f's_mul_i32 {sT0}, {sW}, {9 * 9216}')
    for j in range(2):
        a(f'''v_add_u32 {t0}, {54 * j}, {vL}
            v_mul_u32_u24 {t1}, 58255, {t0}
            v_lshrrev_b32 {t1}, 21, {t1}
            v_mul_u32_u24 {t1}, {9216 - 576}, {t1}
            v_lshl_add_u32 {t1}, {t0}, 4, {t1}
            v_add_u32 {aGU[j]}, {sT0}, {t1}''')
    for j in range(5):
        a(f'''v_add_u32 {t0}, {64 * j}, {vL}
            v_mul_u32_u24 {t1}, 52429, {t0}
            v_lshrrev_b32 {t1}, 18, {t1}
            v_mul_u32_u24 {t1}, 1072, {t1}
            v_lshl_add_u32 {aTL[j]}, {t0}, 4, {t1}''')
    a(f'''v_add_u32 {t0}, 1280, v0
        v_mul_u32_u24 {t1}, 52429, {t0}
        v_lshrrev_b32 {t1}, 18, {t1}
        v_mul_u32_u24 {t1}, 1072, {t1}
        v_lshl_add_u32 {aTL[5]}, {t0}, 4, {t1}''')
    if P['tlbpf'] >= 2:
        a(f'v_mul_u32_u24 {t0}, {287 * 1152}, {vRow}')
        a(f'buffer_load_dword {vDUM}, {t0}, {srd(S_WD)}, 0 offen nt', dummy=1)
        a(f'v_mov_b32 {t0}, 0')
        a(f'buffer_load_dword {vDUM}, {t0}, {srd(S_OUT)}, 0 offen nt', dummy=1)
    if P['touch']:
        a.jmp('TOUCH1')
        a.label('TOUCH_BACK')
    stamp('set-up B', 3)
    a(f'''v_lshlrev_b32 {t0}, 8, {vL}
        v_lshl_add_u32 {t0}, {vN}, 4, {t0}
        v_add_u32 {aTR}, {sT1}, {t0}''')
    a.wait('K')
    for p in range(16):
        a(f'v_xor_b32 {(t0, t1)[p & 1]}, {16 * p}, {aTR}')
        a(f'ds_read_b128 {ar(A_K + 4 * p, 4)}, {(t0, t1)[p & 1]}', needs=('K',))
    a('s_waitcnt lgkmcnt(0)\ns_barrier')
    rstamp(4)
    a_loads()
    gu_batch(0, 12)
    a.wait('A')
    a_reduce(False)
    a.jmp('GA_CHECK')
    stub()
    a.label('GA_PRE')
    ack()
    a.label('GA_ISSUE')
    a_loads()
    a('s_waitcnt vmcnt(4)')
    a.label('GA_RED')
    a_reduce(True)
    a.label('GA_CHECK')
    if P['sel']:
        retry('A', 'GA_RED', reload([(sP, lambda: gload(G[4], aASGET, '0'))] +
                                    [(sQ[q], lambda q=q: gload(G[q], aAGET, '0', 1024 * q)) for q in range(4)]))
    else:
        retry('A', 'GA_ISSUE')
    a(f'''v_fma_f32 {t0}, {ACC[0]}, {vRS}, -{vC1}
        v_cvt_pk_bf16_f32 {t1}, {t0}, {t0}
        ds_write_b16 {aQW}, {t1}''')
    dump(1, t0)
    stamp('q sum', 3)
    a(f'''s_waitcnt lgkmcnt(0)
        s_barrier
        ds_read_b64 {QA.t(2)}, {aQR}
        ds_read_b64 {(QA + 2).t(2)}, {aQR} offset:128''')
    stamp('q ready')
    lines(newmean_ops())

    def l1_mode():
        a(f'v_cmp_ne_u32 vcc, {sXCC}, {G[4] + 2}\ns_cmp_eq_u64 vcc, 0')
        if P['forceslow']:
            a(f's_cmp_eq_u32 {sW}, 77')
        a(f's_cselect_b32 s{S_F + 2}, {WS_USED:#x}, 0\ns_cselect_b32 s{S_S + 2}, 0, {WS_USED:#x}')
        pub('buffer_store_dword', vCQ, aAPUB, sCQ)
        for j in range(P['v0'], 16):
            kvdma(j, True)
    first_only('MODE', l1_mode)
    a('s_waitcnt lgkmcnt(0)')
    for j in range(32):
        m4(ACC[j % 3], (QA + 2 * (j >> 4)).t(2), ar(A_K + 2 * j, 2), j < 3, j & 15)
    a(f'''v_pk_add_f32 {Y.t(2)}, {ACC[2].t(2)}, {ACC[0].t(2)}
        v_pk_add_f32 {Y.t(2)}, {Y.t(2)}, {ACC[1].t(2)}''')
    dump(2, Y)
    stamp('scores', 3)
    lines(flat(ror_steps('v_max_f32', [PSV, PSV + 2], [Y, Y + 1]) + bcast_steps('v_max_f32', [PSV, PSV + 2])))
    a(f'''v_ceil_f32 {PSV}, {PSV}
        v_ceil_f32 {PSV + 2}, {PSV + 2}
        v_readlane_b32 {sR0}, {PSV}, 63
        v_readlane_b32 {sR1}, {PSV + 2}, 63
        v_subrev_f32 {Y}, {sR0}, {Y}
        v_subrev_f32 {Y + 1}, {sR1}, {Y + 1}
        v_exp_f32 {Y}, {Y}
        v_exp_f32 {Y + 1}, {Y + 1}
        v_cvt_pk_bf16_f32 {t0}, {Y}, {Y + 1}
        v_mov_b32_dpp {t1}, {t0} quad_perm:[1,0,3,2]{DPP}
        v_perm_b32 {PA}, {t1}, {t0}, {vSELH}
        v_mov_b32_dpp {PA + 1}, {PA} quad_perm:[2,3,2,3]{DPP}''')
    stamp('p ready')

    def v_group(grp):
        a.wait('V%d' % grp)
        for b in range(4 * grp, 4 * grp + 4):
            for eta in range(2):
                a(f'ds_read_b64_tr_b16 {ar(A_V + 4 * b + 2 * eta, 2)}, {aTR2 if eta else aTR} offset:{1024 * b}',
                  needs=('V%d' % grp,))

    def l1_pv():
        a.wait('GU', 'PS')
        a('s_barrier', needs=('GU',))
        w3_to('NOGU')
        a(f'''v_lshrrev_b32 {t0}, 2, {vN}
            v_mul_u32_u24 {t0}, 576, {t0}
            s_mul_i32 {sT0}, {sW}, 192
            v_add_u32 {t0}, {sT0}, {t0}
            v_and_b32 {t1}, 3, {vL}
            v_lshl_add_u32 {t2}, {vRow}, 2, {t1}
            v_lshl_add_u32 {aTR}, {t2}, 3, {t0}
            v_lshrrev_b32 {t2}, 1, {t2}
            v_lshl_add_u32 {t0}, {t2}, 3, {t0}
            v_and_b32 {t1}, 1, {vL}
            v_mul_u32_u24 {t1}, 20736, {t1}
            v_add_u32 {aTR2}, {t0}, {t1}''')
        for j in range(9):
            a(f'ds_read_b64_tr_b16 {ar(A_GU + 2 * j, 2)}, {aTR} offset:{2304 * j}')
            a(f'ds_read_b64_tr_b16 {ar(A_GU + 18 + 2 * j, 2)}, {aTR} offset:{20736 + 2304 * j}')
            a(f'ds_read_b64_tr_b16 {ar(A_GU + 36 + 2 * j, 2)}, {aTR2} offset:{128 + 2304 * j}')
        a('s_waitcnt lgkmcnt(0)')
        for j in range(9):
            for b in range(3):
                m4(ACC[b], ONE.t(2), ar(A_GU + 18 * b + 2 * j, 2), j == 0, 0)
        a(f'v_cvt_pk_bf16_f32 {PK2}, {ACC[0]}, {ACC[1]}\nv_cvt_pk_bf16_f32 {PK2 + 1}, {ACC[2]}, {vTD}')
        a.label('NOGU')
        pub('buffer_store_dwordx2', PK2.t(2), aDPUB, sCG)
        a(f'''v_lshrrev_b32 {t0}, 2, {vN}
            v_lshlrev_b32 {t1}, 2, {t0}
            v_bfe_u32 {t2}, {vL}, 1, 1
            v_lshl_add_u32 {t2}, {vRow}, 1, {t2}
            v_xor_b32 {t2}, {t2}, {t1}
            v_lshlrev_b32 {t0}, 8, {t0}
            v_lshl_add_u32 {t0}, {t2}, 4, {t0}
            v_and_b32 {t1}, 1, {vL}
            v_lshl_add_u32 {t0}, {t1}, 3, {t0}
            s_add_u32 {sT0}, {sT1}, {L_V}
            v_add_u32 {aTR}, {sT0}, {t0}
            v_xor_b32 {aTR2}, 128, {aTR}''')
        tall_base()
        for k in range(5):
            tall_dma(S_WO, L_WO, k, 'WO')

        for grp in range(P['pvsplit']):
            v_group(grp)
        a('s_waitcnt lgkmcnt(0)')
    first_only('PV', l1_pv)
    ls = flat(ror_steps('v_add_f32', [PSV + 1, PSV + 3], [Y, Y + 1]) + bcast_steps('v_add_f32', [PSV + 1, PSV + 3]))
    ls.append(f'ds_write2_b32 {aPSW}, {PSV}, {PSV + 1} offset0:0 offset1:4')
    ls.append(f'ds_write2_b32 {aPSW}, {PSV + 2}, {PSV + 3} offset0:8 offset1:12')

    def pv(lo, hi):
        for b in range(lo, hi):
            for eta in range(2):
                m4(ACC[2 * (b & 1) + eta], PA.t(2), ar(A_V + 4 * b + 2 * eta, 2), b < 2, b)
                if ls:
                    a(ls.pop(0))

    def pv_tail():
        pv(4 * P['pvsplit'], 16)
        a(f'''v_pk_add_f32 {PO.t(2)}, {ACC[0].t(2)}, {ACC[2].t(2)}
            v_pk_add_f32 {(PO + 2).t(2)}, {ACC[1].t(2)}, {ACC[3].t(2)}
            ds_write2st64_b32 {aPOW}, {PO}, {PO + 1} offset0:0 offset1:8
            ds_write2st64_b32 {aPOW}, {PO + 2}, {PO + 3} offset0:4 offset1:12''')

    def l1_pv2():
        for grp in range(P['pvsplit'], 4):
            v_group(grp)
        a('s_waitcnt lgkmcnt(0)')
        stamp('V ready', 3)
        rstamp(3)
        if P['pv2dup']:
            pv_tail()
    pv(0, 4 * P['pvsplit'])
    assert not ls
    first_only('PV2', l1_pv2, 'PV_DONE' if P['pv2dup'] else None)
    pv_tail()
    a.label('PV_DONE')
    stamp('PV done', 3)
    a(f'''s_waitcnt lgkmcnt(0)
        s_barrier
        ds_read_b128 {PS.t(4)}, {aPSR}
        ds_read2st64_b32 {PO.t(2)}, {aPOR} offset0:0 offset1:1
        ds_read2st64_b32 {(PO + 2).t(2)}, {aPOR} offset0:2 offset1:3
        ds_read_b128 {(PS + 4).t(4)}, {aPSR} offset:16
        s_waitcnt lgkmcnt(3)
        v_max3_f32 {BST}, {PS}, {PS + 1}, {PS + 2}
        v_max_f32 {BST}, {BST}, {PS + 3}''')
    lines([f'v_sub_f32 {PS + q}, {PS + q}, {BST}' for q in range(4)])
    lines([f'v_exp_f32 {PS + q}, {PS + q}' for q in range(4)])
    a(f's_waitcnt lgkmcnt(0)\nv_mul_f32 {t0}, {PS}, {PO}')
    lines([f'v_fmac_f32 {t0}, {PS + q}, {PO + q}' for q in range(1, 4)])
    a(f'v_cvt_pk_bf16_f32 {t2}, {vTAB}, {t0}')
    pub_f('buffer_store_dword', t2, aAPUB, sBD)
    a(f'v_mul_f32 {BST + 1}, {PS}, {PS + 4}')
    lines([f'v_fmac_f32 {BST + 1}, {PS + q}, {PS + 4 + q}' for q in range(1, 4)])
    pub_f('buffer_store_dwordx4', BST.t(4), aBSPUB, '0')
    pub_s('buffer_store_dword', t2, aAPUB, sBD)
    pub_s('buffer_store_dwordx4', BST.t(4), aBSPUB, '0')
    dump(3, t0)
    stamp('B pub')
    rstamp(0)
    skip_l2('GB_PRE')
    if P['pd'] == 4:
        a(f's_lshl_b32 {sT0}, {sG}, 4\ns_add_u32 {sT0}, {sT0}, {sI}\ns_mul_i32 {sT0}, {sT0}, 20736')
        mk_srd(S_X, 20, sT0, 20736)
        a(f'v_lshlrev_b32 {aGU[0]}, 7, v0')
    tall_addr(L_WO)
    a.wait('WO')
    stamp('wo own', 3)
    a('s_barrier', needs=('WO',))
    tall_tr(8, A_WO)
    a.label('GB_PRE')
    ack()
    a.label('GB_ISSUE')
    b_loads()
    a('s_waitcnt vmcnt(4)')
    a.label('GB_RED')
    b_reduce(True)
    a.label('GB_CHECK')
    if P['sel']:
        retry('B', 'GB_RED', reload([(sP, lambda: gload(G[4], aBSGET, '0'))] +
                                    [(sQ[q], lambda q=q: gload(G[q], aAGET, sBD, 1024 * q)) for q in range(4)]))
    else:
        retry('B', 'GB_ISSUE')
    a(f'''v_mul_f32 {t0}, {ACC[0]}, {vE1}
        v_cvt_pk_bf16_f32 {t1}, {t0}, {t0}
        ds_write_b16 {aOW}, {t1}
        v_mov_b32 {ACC[1]}, 0
        v_mov_b32 {ACC[1] + 1}, 0''')
    if P['pd'] == 4:
        skip_l2('NOPD')
        a(f'buffer_load_dword {vDUM}, {aPB + 0 if False else aGU[0]}, {srd(S_X)}, 0 offen', dummy=1)
        a.label('NOPD')
    dump(4, t0)
    stamp('o sum', 3)
    w3_to('W3_C')
    a('s_waitcnt lgkmcnt(0)\ns_barrier')
    stamp('o ready')
    tall_stage(A_WO, 0, False)
    dump(5, t0)
    stamp('C pub')
    rstamp(2)
    skip_l2('C_WAIT')
    if P['pd'] == 7:
        a(f's_lshl_b32 {sT0}, {sG}, 4\ns_add_u32 {sT0}, {sT0}, {sI}\ns_mul_i32 {sT0}, {sT0}, 20736')
        mk_srd(S_X, 20, sT0, 20736)
        a(f'v_lshlrev_b32 {aGU[0]}, 7, v0')
    if P['xbar'] and not P['xack1']:
        a('s_barrier')
    cg_loads()
    if P['pd'] == 7:
        a(f'buffer_load_dword {vDUM}, {aGU[0]}, {srd(S_X)}, 0 offen', dummy=1)
    if P['wd_at'] == 1:
        wd_pieces()
    if P['xbar'] and P['xack1']:
        a.wait('XP')
        a('s_barrier')
    a.wait('CG')
    cg_reduce('CG')
    if P['dnl1']:
        tall_addr(L_WD)
    a.jmp('C_BAR')
    stub()
    a.label('C_WAIT')
    if P['xbar']:
        a.wait('XP')
        a('s_barrier')
    a.label('C_BAR')
    a(f's_barrier\nds_read_b64 {XQ.t(2)}, {aXQR}')
    a(f's_add_u32 {sSLOT}, {sSLOT}, 0x20000\ns_waitcnt lgkmcnt(0)')
    for j in range(9):
        for b in range(3):
            m4(ACC[b], XQ.t(2), ar(A_GU + 18 * b + 2 * j, 2), j == 0, j)
    a(f'v_cvt_pk_bf16_f32 {PK2}, {ACC[0]}, {ACC[1]}\nv_cvt_pk_bf16_f32 {PK2 + 1}, {ACC[2]}, {vTD}')
    pub('buffer_store_dwordx2', PK2.t(2), aDPUB, '0')
    dump(6, ACC[0])
    stamp('D pub')
    if not P['dnl1']:
        skip_l2('GD_ACK')
    a.label('GD_L1')
    if not P['dnl1']:
        tall_addr(L_WD)
        a('s_waitcnt vmcnt(0)')
        stamp('wd own', 3)
        a('s_barrier', needs=('WD',))
        stamp('wd all', 3)
        tall_tr(9, A_WD)
    a.label('GD_ACK')
    if P['dbar']:
        skip_l1('GD_ISSUE')
        a('s_waitcnt vmcnt(0)\ns_barrier')
        if P['ddelay']:
            a('s_sleep %d' % P['ddelay'])
    elif not P['dnl1']:
        ack()
    elif P['ackwait']:
        skip_l1('GD_ISSUE')
        a('s_waitcnt vmcnt(0)')
    a.label('GD_ISSUE')
    d_loads()
    a.label('GD_WAIT')
    lo = ln_ops(G[6])
    a(f's_waitcnt vmcnt(6)\nv_cmp_ne_u32 {sP}, {sT}, {G[6] + 3}')
    lines(lo[0])
    a('s_waitcnt vmcnt(5)')
    m16(ACC[1], SELD.t(4), G[4].t(4), '0')
    lines(lo[1])
    a('s_waitcnt vmcnt(4)')
    m16(ACC[1], SELD.t(4), G[5].t(4), ACC[1].t(4))
    chk2(G[4], G[5], 0) if P['sel'] else chk_d(G[4], G[5], True)
    lines(lo[2])
    a('s_waitcnt vmcnt(3)')
    m16(ACC[0], SELD.t(4), G[0].t(4), '0')
    lines(lo[3])
    a('s_waitcnt vmcnt(2)')
    m16(ACC[0], SELD.t(4), G[1].t(4), ACC[0].t(4))
    if P['sel']:
        a(f's_or_b64 vcc, {sP}, {sQ[0]}')
    chk2(G[0], G[1], 1) if P['sel'] else chk_d(G[0], G[1], False)
    lines(lo[4] + lo[5] + lo[6])
    a('s_waitcnt vmcnt(1)')
    m16(ACC[0], SELD.t(4), G[2].t(4), ACC[0].t(4))
    a(f'''v_add_f32_dpp {t4}, {ACC[1]}, {ACC[1]} row_ror:8{DPP}
        v_add_f32_dpp {t5}, {ACC[1] + 1}, {ACC[1] + 1} row_ror:8{DPP}
        v_mul_f32 {vRS}, {vRS}, {vRS}
        s_waitcnt vmcnt(0)''')
    m16(ACC[0], SELD.t(4), G[3].t(4), ACC[0].t(4))
    if P['sel']:
        a(f's_or_b64 vcc, vcc, {sQ[1]}')
        chk2(G[2], G[3], 2)
    else:
        chk_d(G[2], G[3], False)
        a(f'v_cmp_lt_u32 vcc, 0xffff, {vE2}')
    a(f'''v_fma_f32 {t4}, -{vDM}, {CSG + 2}, {t4}
        v_fma_f32 {t5}, -{vDM}, {CSG + 3}, {t5}
        s_or_b64 vcc, vcc, {sQ[2] if P['sel'] else sP}''')
    if P['sel']:
        retry('D', 'GD_WAIT', reload([(sP, lambda: gload(G[6], aASGET, sDS)),
                                      (sQ[0], lambda: (gload(G[4], aDG2, '0'), gload(G[5], aDG2, '0', 1536))),
                                      (sQ[1], lambda: (gload(G[0], aDG1, '0'), gload(G[1], aDG1, '0', 1536))),
                                      (sQ[2], lambda: (gload(G[2], aDG1b, '0'), gload(G[3], aDG1b, '0', 1536)))]))
    else:
        retry('D', 'GD_ISSUE')
    a(f'''v_mul_f32 {t4}, {t4}, {vRS}
        v_mul_f32 {t4}, {t4}, {t5}
        v_fma_f32 {t0}, -{vDM}, {CSG}, {ACC[0]}
        v_fma_f32 {t1}, -{vDM}, {CSG + 1}, {ACC[0] + 1}
        v_mul_f32 {t0}, {t0}, {vRS}
        v_mul_f32 {t0}, {t0}, {t1}
        v_cvt_pk_bf16_f32 {t1}, {t0}, {t4}
        ds_write_b16 {aHW1}, {t1}
        ds_write_b16_d16_hi {aHW2}, {t1}''')
    dump(7, t0)
    stamp('h sum', 3)
    w3_to('W3_E')
    a('s_waitcnt lgkmcnt(0)\ns_barrier')
    stamp('h ready')
    if P['dnl1']:
        skip_l1('DN_FIRST')
    tall_stage(A_WD, L_H - L_O, True)
    dump(8, t0)
    stamp('E pub')
    rstamp(1)
    skip_l2('E_LAST')
    cq_loads()
    if P['xbar']:
        a('s_waitcnt vmcnt(4)\ns_barrier')
    a('s_waitcnt vmcnt(0)')
    cq_reduce('CQ')
    a(f's_add_u32 {sSLOT}, {sSLOT}, 0x20000')
    set_tags()
    if P['dry']:
        a(f's_cmp_lg_u32 {sW}, 0')
        a.br('s_cbranch_scc1', 'DRY_DONE', lambda c: c['wave'] != 0)
        if P['dry'] & 1:
            a.jmp('W3_OUT')
        a.label('DRY_OUT')
        if P['dry'] & 2:
            a(f's_mov_b32 {sDRY}, 1')
            a.act(lambda c: c.__setitem__('dry', True))
            a.jmp('GA_PRE')
        a.label('DRY_DONE')
    setlayer2()
    if P['qall']:
        a.jmp('Q_ENTRY')
    else:
        a.label('Q_ENTRY')
        a(f's_barrier\nds_read_b64 {XQ.t(2)}, {aXQR}')
        a.jmp('Q_JOIN')
    stub()
    a.label('E_LAST')
    if P['xbar']:
        a('s_waitcnt vmcnt(0)\ns_barrier')
    a.jmp('FINISH')

    stub()
    a.label('W3_C')
    a('s_waitcnt lgkmcnt(0)\ns_barrier')
    skip_l2('W3_C2')
    cg_loads()
    if P['pd'] == 3:
        a(f's_lshl_b32 {sT0}, {sG}, 4\ns_add_u32 {sT0}, {sT0}, {sI}\ns_mul_i32 {sT0}, {sT0}, 20736')
        mk_srd(S_X, 20, sT0, 20736)
        if P['pform'] == 0:
            a(f'v_lshlrev_b32 {t0}, 6, {vL}')
            for k in range(6):
                a(f's_mov_b32 {sT0}, {4096 * k}')
                a(f'buffer_load_dword {vDUM}, {t0}, {srd(S_X)}, {sT0} offen', dummy=1)
        elif P['pform'] == 1:
            a(f'v_lshlrev_b32 {t0}, 7, {vL}')
            for k in range(3):
                a(f's_mov_b32 {sT0}, {8192 * k}')
                a(f'buffer_load_dword {vDUM}, {t0}, {srd(S_X)}, {sT0} offen' + (' nt' if P['pnt'] else ''), dummy=1)
        else:
            a(f'v_lshlrev_b32 {t0}, 4, {vL}')
            for k in range(21):
                a(f's_mov_b32 m0, {L_K + 1024 * k}\ns_mov_b32 {sT0}, {1024 * k}')
                a(f'buffer_load_dwordx4 {t0}, {srd(S_X)}, {sT0} offen lds')
    if P['wd_at'] == 1:
        wd_pieces()
    if P['pd'] in (5, 6):
        pd_setup()
    a.wait('CG')
    stamp('cg w3', 3)
    cg_reduce('CH')
    if P['pd'] == 5:
        a('s_barrier')
        pd_loads()
        a.jmp('W3_C3')
    if P['pd'] == 6:
        a('s_barrier')
        for q in range(4):
            gload(G[q], aXGET, sSLOT, 256 * q, 'XG')
        pd_loads()
        a.wait('XG')
        for q in range(4):
            m16(XC, SELX.t(4), G[q].t(4), CI.t(4) if q == 0 else XC.t(4))
            if q & 1:
                a(f'v_bitop3_b32 {(t0, t1)[q >> 1]}, {G[q - 1] + 3}, {G[q] + 3}, {sTX} bitop3:0x7e')
        a.jmp('GX_TAIL_C')
    a.label('W3_C2')
    if P['xbar']:
        a('s_barrier')
    a.label('W3_C3')
    stamp('C poll', 3)
    xgather('C')
    xq_write()
    so = stats_ops()
    lines(so[:9])
    a('s_waitcnt lgkmcnt(0)')
    a('s_barrier')
    stamp('x1 ready')
    lines(so[9:])
    pub('buffer_store_dwordx4', ST.t(4), aASPUB, sDS)
    a(f's_add_u32 {sSLOT}, {sSLOT}, 0x20000')
    dump(9, XC)
    lines(resid_ops())
    skip_l2('W3_EPOCH')
    for k in range(23):
        a(f's_mov_b32 m0, {L_WD + 1024 * k}\ns_mov_b32 {sT0}, {(k // 5) * 64 * 1152}')
        a(f'buffer_load_dwordx4 {aTL[k % 5]}, {srd(S_WD)}, {sT0} offen{" nt" if P["tnt"] else ""} lds', fills='WD')
    a.jmp('GD_L1')
    stub()
    a.label('W3_EPOCH')
    a('s_cmp_lg_u32 s2, 0')
    a.br('s_cbranch_scc1', 'GD_ACK', lambda c: not c['final'])
    a(f'''v_mov_b32 {t0}, 0
        s_mov_b64 exec, 1
        buffer_store_dword {ST + 3}, {t0}, {srd(S_W)}, 0 offen
        s_mov_b64 exec, -1''')
    a.jmp('GD_ACK')

    if P['dnl1']:
        a.label('DN_FIRST')
        tall_first(9, A_WD, L_H - L_O)
        a.jmp('DN_JOIN')
    if not P['outinl']:
        a.label('W3_OUT')
        out_ops()
    a.label('FINISH')
    if P['hold']:
        rstamp(5)
        if P['amp0'] >= 0:
            a(f's_min_u32 s11, s11, {P["hold"] // 10}\ns_mul_i32 s11, s11, 10\ns_sub_u32 s11, {P["hold"]}, s11\ns_cmp_eq_u32 {sW}, 3\ns_cselect_b32 s11, 0, s11')
        else:
            a(f's_min_u32 s11, s11, 20000\ns_mul_i32 s11, s11, 10\ns_add_u32 s11, s11, {P["hold"]}')
        a.label('HOLD')
        a(f's_memrealtime {sTS}\ns_waitcnt lgkmcnt(0)\ns_sub_u32 {sT0}, {sTSlo}, s3\ns_cmp_lt_u32 {sT0}, s11')
        a.br('s_cbranch_scc1', 'HOLD', lambda c: False)
    if P['stamps']:
        stamp('end', 1)
        a(f'''s_memrealtime {sTS}
            s_waitcnt lgkmcnt(0)
            v_writelane_b32 {vTS}, {sTSlo}, 31
            v_writelane_b32 {vTS}, {sRC}, 62
            s_mov_b32 {sT3}, {OFF_DBG:#x}
            buffer_store_dword {vTS}, {aDM}, {srd(S_W)}, {sT3} offen''')
    a.label('END')
    a('s_endpgm')
    for name, body, back in ool:
        a.label('L1_' + name)
        body()
        a.jmp(back)
        stub()
    for tag, issue, reissue in retry_blocks:
        a.label('RETRY_' + tag)
        if tag == 'A' and P['dry'] & 2:
            a(f's_cmp_lg_u32 {sDRY}, 0\ns_mov_b32 {sDRY}, 0')
            a.br('s_cbranch_scc1', 'DRY_DONE', lambda c: c.pop('dry', False))
        if P['stamps'] >= 2 and len(tag) == 1:
            a(f's_add_u32 {sRC}, {sRC}, {1 << (6 * "ABCDE".index(tag))}')
        a(f's_sub_u32 {sBUD}, {sBUD}, 1')
        if reissue:
            a.br('s_cbranch_scc1', 'GIVEUP_' + tag, lambda c: False)
            reissue()
            a.jmp(issue)
            a.label('GIVEUP_' + tag)
        else:
            a.br('s_cbranch_scc0', issue, lambda c: True)
        a(f's_mov_b32 {sBUD}, 0')
        a.jmp('CONT_' + tag)
    if P['touch']:
        a.label('TOUCH%d' % (stubs[0] + 1))
        a.jmp('TOUCH_BACK')
    a.label('CODE_END')

    ctxs = []
    for w in (0, 1, 3):
        for fin in (True, False):
            for rt in (False, True):
                ctxs.append(lambda w=w, fin=fin, rt=rt: dict(layer=0, wave=w, final=fin, retry=rt,
                                                              name='w%d fin%d retry%d' % (w, fin, rt)))
    a.resolve_waits(ctxs)
    a.fix_hazards(ctxs)
    errs = a.check_waits(ctxs)
    return a, errs, v.n, names


HEADER = '''; Persistent decode kernel: 256 workgroups (one per CU) keep K, V and all weights on chip for both layers.
; @launch grid=(256,1,1) block=(256,1,1) lds=%d
.amdgcn_target "amdgcn-amd-amdhsa--gfx950"
.text
.globl %s
.p2align 8
.type %s,@function
%s:
'''
FOOTER = '''.section .rodata,"a"
.p2align 6
.amdhsa_kernel %s
  .amdhsa_next_free_vgpr 512
  .amdhsa_next_free_sgpr 102
  .amdhsa_accum_offset 256
  .amdhsa_group_segment_fixed_size 0
  .amdhsa_kernarg_size 96
  .amdhsa_user_sgpr_count 2
  .amdhsa_user_sgpr_kernarg_segment_ptr 1
  .amdhsa_system_sgpr_workgroup_id_x 1
.end_amdhsa_kernel
'''


def render(**kw):
    a, errs, nv, names = build(**kw)
    txt = HEADER % (LDS_BYTES, KNAME, KNAME, KNAME) + a.text() + FOOTER % KNAME
    if names:
        txt = '; stamps: ' + ','.join(names) + '\n' + txt
    return txt, a, errs, nv, names


if __name__ == '__main__':
    out = sys.argv[1]
    kw = {}
    for s in sys.argv[2:]:
        k, x = s.split('=')
        kw[k] = x if k == 'only' else int(x)
    txt, a, errs, nv, names = render(**kw)
    for e in sorted(set(errs)):
        print('WAIT ERROR', e)
    open(out, 'w').write(txt)
    print('vgprs', nv, 'lds', LDS_BYTES, 'pads', sum(p for p, _ in a.pads()))
    if errs:
        sys.exit(1)
```
